```python
import torch

def _softmax(x, axis=-1):
    return torch.softmax(x, dim=axis)
def _gelu(x):
    return torch.nn.functional.gelu(x, approximate="tanh")
def _silu(x):
    return torch.nn.functional.silu(x)
def _sigmoid(x):
    return torch.sigmoid(x)
def _layernorm(x, axis=-1, eps=1e-5):
    m = x.mean(dim=axis, keepdim=True)
    v = x.var(dim=axis, keepdim=True, unbiased=False)
    return (x - m) / torch.sqrt(v + eps)
def _scatter_add(tgt, idx, src, axis=0):
    return tgt.clone().index_add_(axis, idx, src)
def _segment_sum(src, seg, n):
    out = torch.zeros((n,) + src.shape[1:], dtype=src.dtype)
    return out.index_add_(0, seg, src)
def _pad(x, pw):
    flat = tuple(v for pair in reversed(pw) for v in pair)
    return torch.nn.functional.pad(x, flat)

kernel_name = 'standalone__structured_sparse_n_m__ragged'

def setup_inputs():

    _w = (lambda a: (lambda t: t.to(torch.bfloat16) if t.is_floating_point() else t)(torch.as_tensor(a)))
    B, S, D = 16, 4096, 576
    assert D % 4 == 0, "d_model must be divisible by M=4 for 2:4 sparsity"
    return {
        "x": _w((lambda *s: torch.randn(*s, dtype=torch.bfloat16) * 0.05)(B, S, D)),
        "w": _w((lambda *s: torch.randn(*s, dtype=torch.bfloat16) * 0.05)(D, D)),
        "b": _w((lambda *s: torch.randn(*s, dtype=torch.bfloat16) * 0.05)(D)),
    }

def reference(x, w, b):
    B, S, D = x.shape
    N, M = 2, 4
    G = D // M
    wg = w.reshape(G, M, D)
    mag = torch.abs(wg)
    order = torch.argsort(mag, 1)
    thr = (lambda x, i, axis: torch.take_along_dim(x, i, dim=axis))(mag, order[:, M - N:M - N + 1, :], 1)
    mask = (lambda x, dt: x.to(dt))(mag >= thr, w.dtype)
    wp = (wg * mask).reshape(D, D)
    return torch.einsum("bsd,df->bsf", x, wp) + b
```

```python
import re

def regs(spec):
    m = re.fullmatch(r"([vas])\[(\d+):(\d+)\]", spec)
    if m:
        return {(m.group(1), i) for i in range(int(m.group(2)), int(m.group(3)) + 1)}
    m = re.fullmatch(r"([vas])(\d+)", spec)
    if m:
        return {(m.group(1), int(m.group(2)))}
    return set()

def vr(base, n=1, f="v"):
    return f"{f}{base}" if n == 1 else f"{f}[{base}:{base+n-1}]"

class I:
    def __init__(self, text, kind, rd=(), wr=()):
        self.text = text
        self.kind = kind
        self.rd = set().union(*[regs(r) for r in rd]) if rd else set()
        self.wr = set().union(*[regs(r) for r in wr]) if wr else set()

def smfmac(d, a, b, idx, abid, shape="16x16x64"):
    t = f"v_smfmac_f32_{shape}_bf16 {d}, {a}, {b}, {idx}" + (f" abid:{abid}" if abid else "")
    return I(t, "mfma", rd=[d, a, b, idx], wr=[d])

def valu(text, rd, wr):
    return I(text, "valu", rd=rd, wr=wr)

def ds_read(op, d, addr, suffix=""):
    return I(f"{op} {d}, {addr} {suffix}".rstrip(), "ds", rd=[addr], wr=[d])

def salu(text):
    return I(text, "salu")

def nslots(ins):
    m = re.fullmatch(r"s_nop (\d+)", ins.text)
    if m:
        return int(m.group(1)) + 1
    if ins.kind == "label":
        return 0
    return 1

def finalize(seq, mfma_wait=8):
    out = []
    pend = []
    for ins in seq:
        if ins.kind == "lgkm0":
            pend = []
            out.append(ins)
            continue
        touch = ins.rd | ins.wr
        need = -1
        for j, d in enumerate(pend):
            if d & touch:
                need = j
        if need >= 0:
            n = len(pend) - 1 - need
            n = min(n, 15)
            out.append(I(f"s_waitcnt lgkmcnt({n})", "wait"))
            pend = pend[len(pend) - n:] if n else []
        req = 0
        dist = 0
        for prev in reversed(out):
            if dist >= 24:
                break
            r = 0
            if prev.kind == "mfma":
                if ins.kind == "mfma":
                    if prev.wr & (ins.rd - ins.wr):
                        r = mfma_wait
                    elif (prev.wr & ins.wr) and prev.wr != ins.wr:
                        r = mfma_wait
                    elif (prev.wr & ins.wr) and prev.text.split()[0] != ins.text.split()[0]:
                        r = mfma_wait
                elif ins.kind in ("valu", "ds", "store", "load", "dma"):
                    if prev.wr & touch:
                        r = mfma_wait
            if prev.kind == "valu" and ins.kind == "mfma" and (prev.wr & ins.rd):
                r = max(r, 2)
            if prev.kind == "store" and ins.kind in ("valu", "ds", "load", "mfma") and (prev.rd & ins.wr):
                r = max(r, 2)
            if prev.kind == "salu" and prev.text.split()[1].startswith("m0") and ins.kind == "dma":
                r = max(r, 1)
            req = max(req, r - dist)
            dist += nslots(prev)
        while req > 0:
            k = min(req, 16)
            out.append(I(f"s_nop {k-1}", "nop"))
            req -= k
        out.append(ins)
        if ins.kind == "ds":
            pend.append(ins.wr)
            assert len(pend) <= 15 or True
    return out

def text(seq):
    return "\n".join(("" if i.kind == "label" else "    ") + i.text for i in seq)
```

```python
import sys
from asmlib import *

NAME = "standalone__structured_sparse_n_m__ragged"
XB = 16 * 4096 * 576 * 2
WSB = 301989888
WF = 0
IDX = 331776
TAB = IDX + 45056
OV = TAB + 4 * 10368
CNT = OV + 36 * 16 * 544
WS_USED = CNT + 256
SLOT = 36864
NSLOT = 3
LTAB = NSLOT * SLOT
LTABW = 13088
NPOOL = 5
LDS_BYTES = LTAB + 4 * LTABW

DEF = dict(xnt="nt", stf="", inter=1, wflag="")

def lut_tables():
    l64 = 0
    l32 = 0
    for nk in range(16):
        keep = [j for j in range(4) if not (nk >> j) & 1]
        e = 0
        if len(keep) >= 2:
            ia, ib = keep[-2], keep[-1]
            for j in keep[:-2]:
                assert j < 2
                e |= 1 << j
        elif len(keep) == 1:
            ib = keep[0]
            ia = (ib + 1) % 4
            if ia > ib:
                ia, ib = ib, ia
        else:
            ia, ib = 0, 1
        l64 |= (ia | ib << 2) << (4 * nk)
        l32 |= e << (2 * nk)
    return l64, l32

def gen_prep(o):
    L = []
    A = L.append
    l64, l32 = lut_tables()
    A(f""".p2align 8
.type prep_kernel,@function
prep_kernel:
    s_cmp_ge_u32 s2, 36
    s_cbranch_scc1 P_end
    s_load_dwordx4 s[4:7], s[0:1], 8          ; w, b
    s_load_dwordx2 s[16:17], s[0:1], 40       ; ws
    v_lshrrev_b32 v1, 6, v0
    v_and_b32 v2, 63, v0                      ; lane
    v_readfirstlane_b32 s20, v1               ; s = kstep
    v_lshrrev_b32 v3, 4, v2                   ; qa
    v_and_b32 v4, 15, v2                      ; i
    s_mul_i32 s21, s2, 57                     ; w = tau/9
    s_lshr_b32 s21, s21, 9
    s_mul_i32 s22, s21, 9
    s_sub_u32 s22, s2, s22                    ; t
    s_lshr_b32 s23, s22, 1
    s_lshl_b32 s23, s23, 5
    s_and_b32 s24, s22, 1
    s_lshl_b32 s24, s24, 2
    s_add_u32 s23, s23, s24
    s_lshl_b32 s24, s21, 7
    s_add_u32 s23, s23, s24                   ; 128w + 32u + 4hf
    s_lshl_b32 s24, s21, 4
    s_add_u32 s24, s24, 512
    s_cmp_lt_u32 s22, 8
    s_cselect_b32 s23, s23, s24
    s_cselect_b32 s24, 8, 4
    v_lshrrev_b32 v5, 2, v4
    v_mul_lo_u32 v5, v5, s24
    v_and_b32 v6, 3, v4
    v_add3_u32 v5, v5, v6, s23                ; col
    v_lshlrev_b32 v5, 1, v5                   ; col*2
    v_lshrrev_b32 v6, 4, v0                   ; s*4+qa
    v_mul_u32_u24 v6, {16*1152}, v6
    v_add_u32 v6, v6, v5
    s_mov_b32 s25, 4608
    s_mov_b32 s26, 9216
    s_mov_b32 s27, 13824
    s_mov_b32 s18, {WS_USED}
    s_mov_b32 s19, 0x20000
    s_waitcnt lgkmcnt(0)
    s_mov_b32 s8, s4
    s_mov_b32 s9, s5
    s_mov_b32 s10, {576*576*2}
    s_mov_b32 s11, 0x20000
    s_mov_b32 s12, s6
    s_mov_b32 s13, s7
    s_mov_b32 s14, 1152
    s_mov_b32 s15, 0x20000""")
    so = ["0", "s25", "s26", "s27"]
    for j in range(16):
        A(f"    buffer_load_ushort v{16+j}, v6, s[8:11], {so[j//4]} offen offset:{(j%4)*1152}")
    A("    buffer_load_ushort v15, v5, s[12:15], 0 offen")
    A(f"""    s_mov_b32 s28, {l64 & 0xffffffff}
    s_mov_b32 s29, {l64 >> 32}
    s_mov_b32 s30, {l32}
    s_mov_b32 s31, 0x0202
    s_mov_b32 s33, 0xffff
    v_mov_b32 v14, 0x01000100
    v_mov_b32 v40, 0                          ; idx16
    v_mov_b32 v41, 0
    v_and_b32 v13, 48, v2""")
    for g in range(4):
        a = 16 + 4 * g
        A(f"    s_waitcnt vmcnt({13 - 4*g})")
        A(f"""    v_and_b32 v44, 0x7fff, v{a}
    v_and_b32 v45, 0x7fff, v{a+1}
    v_and_b32 v46, 0x7fff, v{a+2}
    v_and_b32 v47, 0x7fff, v{a+3}
    v_max_u32 v48, v44, v45
    v_min_u32 v49, v44, v45
    v_max_u32 v50, v46, v47
    v_min_u32 v51, v46, v47
    v_min_u32 v48, v48, v50
    v_max3_u32 v48, v48, v49, v51
    v_max_u32 v48, 1, v48
    v_sub_u32 v47, v47, v48
    v_sub_u32 v46, v46, v48
    v_sub_u32 v45, v45, v48
    v_sub_u32 v44, v44, v48
    v_lshrrev_b32 v49, 31, v47
    v_alignbit_b32 v49, v49, v46, 31
    v_alignbit_b32 v49, v49, v45, 31
    v_alignbit_b32 v49, v49, v44, 31
    v_lshlrev_b32 v50, 2, v49
    v_lshrrev_b64 v[52:53], v50, s[28:29]
    v_and_b32 v52, 15, v52
    v_lshl_or_b32 v40, v52, {4*g}, v40
    v_lshl_or_b32 v44, v{a+1}, 16, v{a}       ; P01
    v_lshl_or_b32 v45, v{a+3}, 16, v{a+2}     ; P23
    v_and_b32 v46, 3, v52
    v_lshrrev_b32 v47, 2, v52
    v_lshl_or_b32 v46, v47, 16, v46
    v_mad_u32_u24 v46, v46, s31, v14
    v_perm_b32 v{32+g}, v45, v44, v46
    v_lshlrev_b32 v50, 1, v49
    v_lshrrev_b32 v50, v50, s30
    v_and_b32 v46, 1, v50
    v_bfe_u32 v47, v50, 1, 1
    v_lshl_or_b32 v46, v47, 16, v46
    v_mul_u32_u24 v46, s33, v46
    v_and_b32 v{36+g}, v44, v46
    v_cmp_ne_u32 s[34:35], 0, v{36+g}
    s_nop 1
    v_lshrrev_b64 v[52:53], v13, s[34:35]
    v_and_b32 v52, 0xffff, v52
    v_min_u32 v52, 1, v52
    v_lshl_or_b32 v41, v52, {g}, v41""")
    A(f"""    ; store fragment + index
    s_mul_i32 s36, s20, 9
    s_add_u32 s36, s36, s22                   ; p
    s_mul_i32 s37, s21, 81
    s_add_u32 s37, s37, s36
    s_lshl_b32 s37, s37, 10
    v_lshlrev_b32 v7, 4, v2                   ; lane*16
    buffer_store_dwordx4 v[32:35], v7, s[16:19], s37 offen
    s_lshr_b32 s37, s36, 3                    ; r4
    s_mul_i32 s38, s21, 11
    s_add_u32 s37, s37, s38
    s_lshl_b32 s37, s37, 10
    s_and_b32 s38, s36, 7
    s_lshl_b32 s38, s38, 1
    s_add_u32 s37, s37, s38
    s_add_u32 s37, s37, {IDX}
    buffer_store_short v40, v7, s[16:19], s37 offen
    v_readlane_b32 s36, v41, 0
    v_readlane_b32 s37, v41, 16
    v_readlane_b32 s38, v41, 32
    v_readlane_b32 s39, v41, 48
    s_nop 3
    s_lshl_b32 s37, s37, 4
    s_lshl_b32 s38, s38, 8
    s_lshl_b32 s39, s39, 12
    s_or_b32 s36, s36, s37
    s_or_b32 s38, s38, s39
    s_or_b32 s36, s36, s38                    ; M_s
    s_lshl_b32 s37, s20, 2
    v_mov_b32 v8, s36
    v_mov_b32 v9, s37
    ds_write_b32 v9, v8
    v_mov_b32 v9, 0
    s_waitcnt lgkmcnt(0)
    s_barrier
    ds_read_b128 v[44:47], v9
    ds_read_b128 v[48:51], v9 offset:16
    ds_read_b32 v52, v9 offset:32
    s_mov_b32 s40, 0                          ; prefix
    s_mov_b32 s41, 0                          ; total
    s_waitcnt lgkmcnt(0)""")
    for j in range(9):
        A(f"""    v_readfirstlane_b32 s37, v{44+j}
    s_nop 3
    s_bcnt1_i32_b32 s37, s37
    s_add_u32 s41, s41, s37
    s_cmp_gt_u32 s20, {j}
    s_cselect_b32 s37, s37, 0
    s_add_u32 s40, s40, s37""")
    A(f"""    ; table bases
    s_mul_i32 s42, s21, 10368
    s_add_u32 s42, s42, {TAB}
    s_lshl_b32 s37, s22, 6
    s_add_u32 s43, s42, s37
    s_add_u32 s43, s43, 9216                  ; T0 base
    s_add_u32 s46, s43, 576
    s_lshl_b32 s37, s22, 10
    s_add_u32 s42, s42, s37                   ; A0 base
    s_mul_i32 s44, s2, {16*544}
    s_add_u32 s44, s44, {OV}
    s_mov_b32 s47, 544
    s_add_u32 s45, s41, 7
    s_and_b32 s45, s45, -8
    s_max_u32 s45, s45, 16""")
    def scatter(tag):
        A(f"""    v_lshrrev_b32 v57, 2, v54                 ; qa'
    v_and_b32 v58, 3, v54                     ; g'
    v_lshl_add_u32 v59, v57, 4, v4
    v_lshlrev_b32 v59, 4, v59
    v_lshl_add_u32 v59, v58, 2, v59
    v_add_u32 v59, s42, v59
    v_and_b32 v60, 1, v57
    v_lshlrev_b32 v60, 1, v60
    v_lshrrev_b32 v61, 1, v58
    v_add_u32 v60, v60, v61                   ; qb
    v_lshrrev_b32 v61, 1, v57
    v_lshlrev_b32 v61, 1, v61
    v_and_b32 v62, 1, v58
    v_add_u32 v61, v61, v62                   ; jj
    v_lshl_add_u32 v60, v60, 2, v61
    v_lshl_add_u32 v60, v60, 2, s43
    v_subrev_u32 v61, 16, v54                 ; o
    v_lshrrev_b32 v62, 3, v61
    v_and_b32 v62, 15, v62
    v_mul_lo_u32 v62, v62, s47
    v_add_u32 v62, s44, v62
    v_and_b32 v61, 7, v61                     ; sl
    v_lshrrev_b32 v57, 1, v61
    v_lshl_add_u32 v57, v57, 4, v4
    v_lshlrev_b32 v57, 3, v57
    v_and_b32 v58, 1, v61
    v_lshl_add_u32 v57, v58, 2, v57
    v_add_u32 v57, v57, v62
    v_lshl_add_u32 v58, v61, 2, v62
    v_add_u32 v58, 512, v58
    v_cmp_gt_u32 vcc, 16, v54
    s_nop 1
    v_cndmask_b32 v59, v57, v59, vcc
    v_cndmask_b32 v60, v58, v60, vcc
    buffer_store_dword v55, v59, s[16:19], 0 offen
    buffer_store_dword v56, v60, s[16:19], 0 offen""")
    for g in range(4):
        A(f"""    v_lshl_add_u32 v57, v3, 2, {g}
    v_bfm_b32 v57, v57, 0
    v_and_b32 v57, s36, v57
    v_bcnt_u32_b32 v54, v57, s40              ; slot
    v_mov_b32 v55, v{36+g}
    s_lshl_b32 s37, s20, 10
    v_lshl_add_u32 v56, v3, 5, s37
    v_add_u32 v56, {(g//2)*16 + (g%2)*8}, v56
    v_and_b32 v57, {1<<g}, v41
    v_cmp_ne_u32 vcc, 0, v57
    s_and_saveexec_b64 s[48:49], vcc
    s_cbranch_execz P_skip{g}""")
        scatter(g)
        A(f"""P_skip{g}:
    s_mov_b64 exec, s[48:49]""")
    A(f"""    ; zero-fill unused slots
    v_lshrrev_b32 v54, 4, v0
    v_add_u32 v54, s41, v54
    v_mov_b32 v55, 0
    v_mov_b32 v56, 0
    v_cmp_gt_u32 vcc, s45, v54
    s_and_saveexec_b64 s[48:49], vcc
    s_cbranch_execz P_skip4""")
    scatter(4)
    A(f"""P_skip4:
    s_mov_b64 exec, s[48:49]
    v_cmp_gt_u32 vcc, 16, v0
    s_and_saveexec_b64 s[48:49], vcc
    s_cbranch_execz P_end
    s_waitcnt vmcnt(0)
    v_lshlrev_b32 v15, 16, v15
    v_lshlrev_b32 v8, 2, v4
    buffer_store_dword v15, v8, s[16:19], s46 offen
    s_sub_u32 s45, s45, 16
    s_lshr_b32 s45, s45, 3
    s_lshl_b32 s37, s2, 2
    s_add_u32 s37, s37, {CNT}
    v_mov_b32 v8, 0
    v_mov_b32 v9, s45
    buffer_store_dword v9, v8, s[16:19], s37 offen
P_end:
    s_endpgm""")
    return "\n".join(L)

vB0, vB1, vXor, vRow, vDma, vS4, vS2, vTA, vTQ, vCI, vL16 = range(1, 12)
vIDX = 12
vL8, vQ8 = 53, 54
vWF = 56
vACC = (124, 160)
vBB = 196
vT = (220, 224)
vA = (228, 232)
vG = (236, 244)
vTMP = 252

def wfrag(p):
    return vr(4 * p, 4, "a") if p < 64 else vr(vWF + 4 * (p - 64), 4)

def main_smf(sig, t):
    rb, s = divmod(sig, 9)
    p = s * 9 + t
    return smfmac(vr(vACC[rb] + 4 * t, 4), wfrag(p), vr(vBB + 8 * (sig % 3), 8), vr(vIDX + p // 2), p & 1)

def bread(sig):
    rb, s = divmod(sig, 9)
    b = vBB + 8 * (sig % 3)
    off = rb * 18432 + s * 1024
    return [ds_read("ds_read_b128", vr(b, 4), vr(vB0), f"offset:{off}"),
            ds_read("ds_read_b128", vr(b + 4, 4), vr(vB1), f"offset:{off}")]

def bias_init(rb, t):
    return ds_read("ds_read_b128", vr(vACC[rb] + 4 * t, 4), vr(vTQ), f"offset:{9792 + t*64}")

def epilogue(rb, soff, o, init=True):
    g = []
    for u in range(4):
        a = vACC[rb] + 8 * u
        for j in range(4):
            g.append(valu(f"v_cvt_pk_bf16_f32 v{a+j}, v{a+2*j}, v{a+2*j+1}", [vr(a + 2 * j, 2)], [vr(a + j)]))
        g.append(I(f"buffer_store_dwordx4 {vr(a,4)}, v{vS4}, s[12:15], {soff} offen offset:{u*64} {o['stf']}".rstrip(), "store", rd=[vr(a, 4), vr(vS4)]))
        if init:
            g.append(bias_init(rb, 2 * u + 1))
            g.append(bias_init(rb, 2 * u))
    a = vACC[rb] + 32
    for j in range(2):
        g.append(valu(f"v_cvt_pk_bf16_f32 v{a+j}, v{a+2*j}, v{a+2*j+1}", [vr(a + 2 * j, 2)], [vr(a + j)]))
    g.append(I(f"buffer_store_dwordx2 {vr(a,2)}, v{vS2}, s[12:15], {soff} offen {o['stf']}".rstrip(), "store", rd=[vr(a, 2), vr(vS2)]))
    if init:
        g.append(bias_init(rb, 8))
    return g

def xdma(o, m0base, soff):
    g = []
    for s in range(9):
        if s == 0:
            g.append(salu(f"s_mov_b32 m0, {m0base}"))
        else:
            g.append(salu("s_add_u32 m0, m0, 896"))
        g.append(I(f"buffer_load_dwordx4 v{vDma}, s[8:11], {soff} offen offset:{s*128} {o['xnt']} lds", "dma", rd=[vr(vDma)]))
    return g

def gen_main(o):
    L = []
    A = L.append
    bstride = 256 * SLOT if o["inter"] else SLOT
    wgmul = SLOT if o["inter"] else 8 * SLOT
    A(f""".p2align 8
.type main_kernel,@function
main_kernel:
    s_cmp_ge_u32 s2, 256
    s_cbranch_scc1 M_end
    s_load_dwordx2 s[8:9], s[0:1], 0          ; x
    s_load_dwordx2 s[12:13], s[0:1], 24       ; out
    s_load_dwordx2 s[16:17], s[0:1], 40       ; ws
    v_lshrrev_b32 v20, 6, v0
    v_and_b32 v21, 63, v0                     ; lane
    v_readfirstlane_b32 s20, v20              ; wave
    s_mov_b32 s10, {XB}
    s_mov_b32 s11, 0x20000
    s_mov_b32 s14, 0
    s_mov_b32 s15, 0x20000
    s_mov_b32 s18, {WS_USED}
    s_mov_b32 s19, 0x20000
    s_mul_i32 s22, s2, {wgmul}
    ; x DMA lane offset: (tid/8)*1152 + ((tid%8) ^ ((tid/16)%8))*16
    v_lshrrev_b32 v22, 3, v0
    v_mul_u32_u24 v22, 1152, v22
    v_lshrrev_b32 v23, 4, v0
    v_xor_b32 v23, v23, v0
    v_and_b32 v23, 7, v23
    v_lshl_add_u32 v{vDma}, v23, 4, v22
    v_lshlrev_b32 v{vL16}, 4, v21
    s_mul_i32 s26, s20, 9216
    s_mul_i32 s28, s20, 36
    s_add_u32 s28, s28, {CNT}
    s_waitcnt lgkmcnt(0)""")
    A(text(finalize(xdma(o, "s26", "s22"))))
    A(f"""    s_add_u32 s30, s16, s28
    s_addc_u32 s31, s17, 0
    s_load_dwordx8 s[32:39], s[30:31], 0
    s_load_dword s40, s[30:31], 32
    s_mul_i32 s29, s20, {LTABW}
    s_add_u32 s29, s29, {LTAB}
    s_mul_i32 s28, s20, 10368
    s_add_u32 s28, s28, {TAB}
    s_mov_b32 m0, s29""")
    for j in range(11):
        if j % 4 == 0 and j:
            A("    s_add_u32 s28, s28, 4096\n    s_add_u32 m0, m0, 4096")
        if j == 10:
            A("    s_mov_b64 exec, 0xff")
        A("    s_nop 0")
        A(f"    buffer_load_dwordx4 v{vL16}, s[16:19], s28 offen offset:{(j%4)*1024} lds")
    A("    s_mov_b64 exec, -1")
    A(f"""    v_lshrrev_b32 v22, 4, v21                 ; q
    v_and_b32 v23, 15, v21                    ; m
    v_lshrrev_b32 v24, 1, v23                 ; f(m)
    v_and_b32 v25, 7, v23
    v_lshlrev_b32 v25, 7, v25
    v_lshl_or_b32 v{vXor}, v24, 4, v25        ; (f<<4) | (m%8)<<7
    v_lshrrev_b32 v25, 3, v23
    v_mul_u32_u24 v{vRow}, 9216, v25
    v_lshlrev_b32 v25, 4, v22
    v_xad_u32 v{vB0}, v25, v{vXor}, v{vRow}
    v_xor_b32 v{vB1}, 64, v{vB0}
    v_add_u32 v{vTQ}, s29, v25
    v_add_u32 v{vTA}, s29, v{vL16}
    v_mul_u32_u24 v24, 1152, v23
    s_lshl_b32 s28, s20, 8
    v_add3_u32 v{vS4}, v24, v25, s28
    s_lshl_b32 s28, s20, 5
    s_add_u32 s28, s28, 1024
    v_lshlrev_b32 v25, 3, v22
    v_add3_u32 v{vS2}, v24, v25, s28
    v_add_u32 v{vQ8}, 512, v25
    v_lshlrev_b32 v{vL8}, 3, v21
    v_mov_b32 v{vCI}, 0xeeee4444
    s_mov_b32 s24, s22
    s_mov_b32 s23, s22
    s_mul_i32 s28, s20, {81*1024}
    s_mul_i32 s30, s20, {11*1024}
    s_add_u32 s30, s30, {IDX}""")
    wl = []
    for r in range(11):
        if r % 4 == 0 and r:
            wl.append("    s_add_u32 s30, s30, 4096")
        if r < 10:
            wl.append(f"    buffer_load_dwordx4 {vr(vIDX+4*r,4)}, v{vL16}, s[16:19], s30 offen offset:{(r%4)*1024} {o['wflag']}")
        else:
            wl.append(f"    buffer_load_dword v{vIDX+40}, v{vL16}, s[16:19], s30 offen offset:{(r%4)*1024} {o['wflag']}")
    A("\n".join(wl))
    def wloads(p0, p1):
        for p in range(p0, p1):
            if p % 4 == 0 and p:
                A("    s_add_u32 s28, s28, 4096")
            A(f"    buffer_load_dwordx4 {wfrag(p)}, v{vL16}, s[16:19], s28 offen offset:{(p%4)*1024} {o['wflag']}")
    wloads(0, 20)
    A(f"    s_add_u32 s22, s22, {bstride}\n    s_add_u32 s26, s26, {SLOT}")
    A(text(finalize(xdma(o, "s26", "s22"))))
    wloads(20, 50)
    A(f"""    s_waitcnt lgkmcnt(0)
    s_mov_b32 s27, 0
    s_add_u32 s54, s29, 10368
    s_mul_i32 s55, s20, {9*16*544}
    s_add_u32 s55, s55, {OV}
    s_mov_b32 exec_lo, -1
    s_mov_b32 exec_hi, 3""")
    for t in range(9):
        A(f"""    s_min_u32 s{32+t}, s{32+t}, 16
    s_mov_b32 s{44+t}, s27
    s_mov_b32 s56, 0
M_pool{t}:
    s_cmp_lt_u32 s56, s{32+t}
    s_cbranch_scc0 M_poole{t}
    s_add_u32 s57, s27, s56
    s_cmp_lt_u32 s57, {NPOOL}
    s_cbranch_scc0 M_poole{t}
    s_mul_i32 s57, s57, 544
    s_add_u32 m0, s57, s54
    s_add_u32 s57, s56, {t*16}
    s_mul_i32 s57, s57, 544
    s_add_u32 s57, s57, s55
    buffer_load_dwordx4 v{vL16}, s[16:19], s57 offen lds
    s_add_u32 s56, s56, 1
    s_branch M_pool{t}
M_poole{t}:
    s_add_u32 s27, s27, s{32+t}""")
    A("    s_mov_b64 exec, -1")
    A(f"    s_add_u32 s22, s22, {bstride}\n    s_add_u32 s26, s26, {SLOT}")
    A(text(finalize(xdma(o, "s26", "s22"))))
    wloads(50, 81)
    A(f"""    s_mov_b32 s21, 0
    s_mov_b32 s25, 0
    s_mul_i32 s26, s20, 9216
    s_waitcnt vmcnt(0)
    s_barrier""")
    pre = bread(0) + bread(1) + [bias_init(0, t) for t in range(9)]
    A(text(finalize(pre)))
    A("    s_waitcnt lgkmcnt(0)\n    s_branch M_mid")

    seq = []
    seq.append(I("M_top:", "label"))
    seq.append(salu("s_cmp_eq_u32 s21, 7"))
    seq.append(I("s_cbranch_scc1 M_w7", "other"))
    seq.append(I("s_waitcnt vmcnt(29) lgkmcnt(0)", "lgkm0"))
    seq.append(I("M_w7r:", "label"))
    seq.append(I("s_barrier", "other"))
    seq.append(salu(f"s_add_u32 s28, s25, s26"))
    seq.append(salu(f"s_add_u32 s30, s25, {SLOT}"))
    seq.append(salu(f"s_cmp_eq_u32 s30, {NSLOT*SLOT}"))
    seq.append(salu(f"s_cselect_b32 s30, 0, s30"))
    seq.append(salu(f"s_sub_u32 s31, s30, s25"))
    seq.append(salu(f"s_mov_b32 s25, s30"))
    for r in (vB0, vB1, vRow):
        seq.append(valu(f"v_add_u32 v{r}, s31, v{r}", [vr(r)], [vr(r)]))
    seq += bread(0)
    seq.append(salu(f"s_add_u32 s22, s22, {bstride}"))
    seq.append(salu(f"s_add_u32 s23, s24, 18432"))
    seq.append(salu(f"s_add_u32 s24, s24, {bstride}"))
    seq.append(salu("s_cmp_gt_u32 s21, 5"))
    seq.append(I("s_cbranch_scc1 M_nodma", "other"))
    seq += xdma(o, "s28", "s22")
    seq.append(I("M_nodma:", "label"))
    for t in range(9):
        seq.append(main_smf(16, t))
    seq += bread(1)
    for t in range(9):
        seq.append(main_smf(17, t))
    seq.append(I("M_mid:", "label"))
    fill = {k: [] for k in range(-1, 144)}
    for sig in range(16):
        fill[sig * 9 - 1] += bread(sig + 2)
    ep = epilogue(1, "s23", o)
    k = 0
    for j, ins in enumerate(ep):
        fill[k].append(ins)
        if j % 3 != 2:
            k += 1
    fill[k].append(salu(f"s_mov_b32 s14, {XB}"))
    for t in range(9):
        T, Aa, G = vT[t & 1], vA[t & 1], vG[t & 1]
        b = 8 * t
        fill[b].append(ds_read("ds_read_b128", vr(T, 4), vr(vTQ), f"offset:{9216 + t*64}"))
        for j in range(4):
            fill[b + 4 + j].append(valu(f"v_xad_u32 v{T+j}, v{T+j}, v{vXor}, v{vRow}", [vr(T + j), vr(vXor), vr(vRow)], [vr(T + j)]))
            fill[b + 5 + j].append(ds_read("ds_read2st64_b32", vr(G + 2 * j, 2), vr(T + j), "offset0:0 offset1:72"))
        fill[b + 9].append(ds_read("ds_read_b128", vr(Aa, 4), vr(vTA), f"offset:{t*1024}"))
        fill[b + 15].append(smfmac(vr(vACC[0] + 4 * t, 4), vr(Aa, 4), vr(G, 8), vr(vCI), 0))
        fill[b + 16].append(smfmac(vr(vACC[1] + 4 * t, 4), vr(Aa, 4), vr(G, 8), vr(vCI), 1))
    fill[80].append(salu("s_cmp_lg_u32 s27, 0"))
    fill[80].append(I("s_cbranch_scc1 M_slow", "other"))
    fill[80].append(I("M_slowr:", "label"))
    ep = epilogue(0, "s24", o)
    for j, ins in enumerate(ep):
        fill[85 + j].append(ins)
    seq += fill[-1]
    for k in range(144):
        seq.append(main_smf(k // 9, k % 9))
        seq += fill[k]
    seq.append(salu("s_add_u32 s21, s21, 1"))
    seq.append(salu("s_cmp_lt_u32 s21, 8"))
    seq.append(I("s_cbranch_scc1 M_top", "other"))
    seq.append(salu(f"s_add_u32 s23, s24, 18432"))
    for sig in (16, 17):
        for t in range(9):
            seq.append(main_smf(sig, t))
    seq += epilogue(1, "s23", o, init=False)
    A(text(finalize(seq)))
    A("""M_end:
    s_endpgm
M_w7:
    s_waitcnt vmcnt(20) lgkmcnt(0)
    s_branch M_w7r""")
    A("M_slow:")
    T, Aa, G = vT[0], vA[0], vG[0]
    for t in range(9):
        A(f"""    s_mov_b32 s56, 0
M_sl{t}:
    s_cmp_lt_u32 s56, s{32+t}
    s_cbranch_scc0 M_sle{t}
    s_add_u32 s57, s{44+t}, s56
    s_cmp_lt_u32 s57, {NPOOL}
    s_cbranch_scc0 M_slg{t}
    s_mul_i32 s57, s57, 544
    s_add_u32 s57, s57, s54
    v_add_u32 v{vTMP}, s57, v{vQ8}
    v_add_u32 v{vTMP+1}, s57, v{vL8}
    ds_read_b64 {vr(T,2)}, v{vTMP}
    ds_read_b64 {vr(Aa,2)}, v{vTMP+1}
    s_waitcnt lgkmcnt(0)
    s_branch M_slc{t}
M_slg{t}:
    s_add_u32 s57, s56, {t*16}
    s_mul_i32 s57, s57, 544
    s_add_u32 s57, s57, s55
    buffer_load_dwordx2 {vr(T,2)}, v{vQ8}, s[16:19], s57 offen
    buffer_load_dwordx2 {vr(Aa,2)}, v{vL8}, s[16:19], s57 offen
    s_waitcnt vmcnt(0)
M_slc{t}:
    v_xad_u32 v{T}, v{T}, v{vXor}, v{vRow}
    v_xad_u32 v{T+1}, v{T+1}, v{vXor}, v{vRow}
    ds_read2st64_b32 {vr(G,2)}, v{T} offset0:0 offset1:72
    ds_read2st64_b32 {vr(G+2,2)}, v{T+1} offset0:0 offset1:72
    s_add_u32 s56, s56, 1
    s_nop 7
    s_waitcnt lgkmcnt(0)
    v_smfmac_f32_16x16x32_bf16 {vr(vACC[0]+4*t,4)}, {vr(Aa,2)}, {vr(G,4)}, v{vCI}
    v_smfmac_f32_16x16x32_bf16 {vr(vACC[1]+4*t,4)}, {vr(Aa,2)}, {vr(G,4)}, v{vCI} abid:2
    s_branch M_sl{t}
M_sle{t}:""")
    A("    s_nop 7\n    s_branch M_slowr")
    return "\n".join(L)

def kd(name, nv, ns, acc):
    return f""".p2align 6
.amdhsa_kernel {name}
  .amdhsa_next_free_vgpr {nv}
  .amdhsa_next_free_sgpr {ns}
  .amdhsa_accum_offset {acc}
  .amdhsa_group_segment_fixed_size 0
  .amdhsa_kernarg_size 48
  .amdhsa_user_sgpr_count 2
  .amdhsa_user_sgpr_kernarg_segment_ptr 1
  .amdhsa_system_sgpr_workgroup_id_x 1
  .amdhsa_float_denorm_mode_32 3
.end_amdhsa_kernel"""

def gen(**kw):
    o = dict(DEF)
    o.update(kw)
    hdr = f"""; out = x @ prune_2of4(w) + b   (bf16, M=65536 K=576 N=576); generated by dev/gen.py
; @launch kernel=prep_kernel grid=(36,1,1) block=(576,1,1) lds=64
; @launch kernel=main_kernel grid=(256,1,1) block=(256,1,1) lds={LDS_BYTES}
.amdgcn_target "amdgcn-amd-amdhsa--gfx950"
.text
.globl prep_kernel
.globl main_kernel
"""
    return (hdr + gen_prep(o) + "\n" + gen_main(o) + '\n.section .rodata,"a"\n' + kd("prep_kernel", 64, 64, 64) + "\n" + kd("main_kernel", 512, 64, 256) + "\n")

if __name__ == "__main__":
    kw = {}
    out = f"/code/{NAME}.s"
    for a in sys.argv[1:]:
        if "=" in a:
            k, v = a.split("=", 1)
            kw[k] = int(v) if v.lstrip("-").isdigit() else v
        else:
            out = a
    open(out, "w").write(gen(**kw))
    print("wrote", out)
```

```python
import sys
from asmlib import *

NAME = "standalone__structured_sparse_n_m__ragged"
XB = 16 * 4096 * 576 * 2
WSB = 301989888
WF = 0
IDX = 331776
TAB = IDX + 45056
OV = TAB + 4 * 10368
CNT = OV + 36 * 16 * 544
WS_USED = CNT + 256
SLOT = 36864
NSLOT = 3
LTAB = NSLOT * SLOT
LTABW = 13088
NPOOL = 5
LDS_BYTES = LTAB + 4 * LTABW

DEF = dict(xnt="nt", stf="", inter=1, wflag="", diag=0)
DIAG = 1 << 20
def stamp(o, vreg, first=False):
    if not o["diag"]:
        return ""
    L = []
    if first:
        L += ["    s_mov_b32 s62, 0", f"    v_mov_b32 v{vreg}, 0"]
    L += ["    s_memrealtime s[60:61]", "    s_waitcnt lgkmcnt(0)", "    s_mov_b32 m0, s62", f"    v_writelane_b32 v{vreg}, s60, m0", "    s_add_u32 s62, s62, 1"]
    return "\n".join(L)
def stamp_out(o, vreg, nwaves, base):
    if not o["diag"]:
        return ""
    L = ["    s_mov_b64 exec, -1", "    s_waitcnt vmcnt(0)", stamp(o, vreg), f"    s_mov_b32 s18, {WSB}",
         f"    s_mul_i32 s60, s2, {nwaves}", "    s_add_u32 s60, s60, s20", "    s_lshl_b32 s60, s60, 8", f"    s_add_u32 s60, s60, {base}",
         "    v_mbcnt_lo_u32_b32 v0, -1, 0", "    v_mbcnt_hi_u32_b32 v0, -1, v0", "    v_lshlrev_b32 v0, 2, v0",
         f"    buffer_store_dword v{vreg}, v0, s[16:19], s60 offen"]
    return "\n".join(L)

def lut_tables():
    l64 = 0
    l32 = 0
    for nk in range(16):
        keep = [j for j in range(4) if not (nk >> j) & 1]
        e = 0
        if len(keep) >= 2:
            ia, ib = keep[-2], keep[-1]
            for j in keep[:-2]:
                assert j < 2
                e |= 1 << j
        elif len(keep) == 1:
            ib = keep[0]
            ia = (ib + 1) % 4
            if ia > ib:
                ia, ib = ib, ia
        else:
            ia, ib = 0, 1
        l64 |= (ia | ib << 2) << (4 * nk)
        l32 |= e << (2 * nk)
    return l64, l32

def gen_prep(o):
    L = []
    A = L.append
    l64, l32 = lut_tables()
    A(f""".p2align 8
.type prep_kernel,@function
prep_kernel:
    s_cmp_ge_u32 s2, 36
    s_cbranch_scc1 P_end
{stamp(o, 63, True)}
    s_load_dwordx4 s[4:7], s[0:1], 8          ; w, b
    s_load_dwordx2 s[16:17], s[0:1], 40       ; ws
    v_lshrrev_b32 v1, 6, v0
    v_and_b32 v2, 63, v0                      ; lane
    v_readfirstlane_b32 s20, v1               ; s = kstep
    v_lshrrev_b32 v3, 4, v2                   ; qa
    v_and_b32 v4, 15, v2                      ; i
    s_mul_i32 s21, s2, 57                     ; w = tau/9
    s_lshr_b32 s21, s21, 9
    s_mul_i32 s22, s21, 9
    s_sub_u32 s22, s2, s22                    ; t
    s_lshr_b32 s23, s22, 1
    s_lshl_b32 s23, s23, 5
    s_and_b32 s24, s22, 1
    s_lshl_b32 s24, s24, 2
    s_add_u32 s23, s23, s24
    s_lshl_b32 s24, s21, 7
    s_add_u32 s23, s23, s24                   ; 128w + 32u + 4hf
    s_lshl_b32 s24, s21, 4
    s_add_u32 s24, s24, 512
    s_cmp_lt_u32 s22, 8
    s_cselect_b32 s23, s23, s24
    s_cselect_b32 s24, 8, 4
    v_lshrrev_b32 v5, 2, v4
    v_mul_lo_u32 v5, v5, s24
    v_and_b32 v6, 3, v4
    v_add3_u32 v5, v5, v6, s23                ; col
    v_lshlrev_b32 v5, 1, v5                   ; col*2
    v_lshrrev_b32 v6, 4, v0                   ; s*4+qa
    v_mul_u32_u24 v6, {16*1152}, v6
    v_add_u32 v6, v6, v5
    s_mov_b32 s25, 4608
    s_mov_b32 s26, 9216
    s_mov_b32 s27, 13824
    s_mov_b32 s18, {WS_USED}
    s_mov_b32 s19, 0x20000
    s_waitcnt lgkmcnt(0)
    s_mov_b32 s8, s4
    s_mov_b32 s9, s5
    s_mov_b32 s10, {576*576*2}
    s_mov_b32 s11, 0x20000
    s_mov_b32 s12, s6
    s_mov_b32 s13, s7
    s_mov_b32 s14, 1152
    s_mov_b32 s15, 0x20000""")
    so = ["0", "s25", "s26", "s27"]
    for j in range(16):
        A(f"    buffer_load_ushort v{16+j}, v6, s[8:11], {so[j//4]} offen offset:{(j%4)*1152}")
    A("    buffer_load_ushort v15, v5, s[12:15], 0 offen")
    A(f"""    s_mov_b32 s28, {l64 & 0xffffffff}
    s_mov_b32 s29, {l64 >> 32}
    s_mov_b32 s30, {l32}
    s_mov_b32 s31, 0x0202
    s_mov_b32 s33, 0xffff
    v_mov_b32 v14, 0x01000100
    v_mov_b32 v40, 0                          ; idx16
    v_mov_b32 v41, 0
    v_and_b32 v13, 48, v2""")
    for g in range(4):
        a = 16 + 4 * g
        A(f"    s_waitcnt vmcnt({13 - 4*g})")
        A(f"""    v_and_b32 v44, 0x7fff, v{a}
    v_and_b32 v45, 0x7fff, v{a+1}
    v_and_b32 v46, 0x7fff, v{a+2}
    v_and_b32 v47, 0x7fff, v{a+3}
    v_max_u32 v48, v44, v45
    v_min_u32 v49, v44, v45
    v_max_u32 v50, v46, v47
    v_min_u32 v51, v46, v47
    v_min_u32 v48, v48, v50
    v_max3_u32 v48, v48, v49, v51
    v_max_u32 v48, 1, v48
    v_sub_u32 v47, v47, v48
    v_sub_u32 v46, v46, v48
    v_sub_u32 v45, v45, v48
    v_sub_u32 v44, v44, v48
    v_lshrrev_b32 v49, 31, v47
    v_alignbit_b32 v49, v49, v46, 31
    v_alignbit_b32 v49, v49, v45, 31
    v_alignbit_b32 v49, v49, v44, 31
    v_lshlrev_b32 v50, 2, v49
    v_lshrrev_b64 v[52:53], v50, s[28:29]
    v_and_b32 v52, 15, v52
    v_lshl_or_b32 v40, v52, {4*g}, v40
    v_lshl_or_b32 v44, v{a+1}, 16, v{a}       ; P01
    v_lshl_or_b32 v45, v{a+3}, 16, v{a+2}     ; P23
    v_and_b32 v46, 3, v52
    v_lshrrev_b32 v47, 2, v52
    v_lshl_or_b32 v46, v47, 16, v46
    v_mad_u32_u24 v46, v46, s31, v14
    v_perm_b32 v{32+g}, v45, v44, v46
    v_lshlrev_b32 v50, 1, v49
    v_lshrrev_b32 v50, v50, s30
    v_and_b32 v46, 1, v50
    v_bfe_u32 v47, v50, 1, 1
    v_lshl_or_b32 v46, v47, 16, v46
    v_mul_u32_u24 v46, s33, v46
    v_and_b32 v{36+g}, v44, v46
    v_cmp_ne_u32 s[34:35], 0, v{36+g}
    s_nop 1
    v_lshrrev_b64 v[52:53], v13, s[34:35]
    v_and_b32 v52, 0xffff, v52
    v_min_u32 v52, 1, v52
    v_lshl_or_b32 v41, v52, {g}, v41""")
    A(stamp(o, 63))
    A(f"""    ; store fragment + index
    s_mul_i32 s36, s20, 9
    s_add_u32 s36, s36, s22                   ; p
    s_mul_i32 s37, s21, 81
    s_add_u32 s37, s37, s36
    s_lshl_b32 s37, s37, 10
    v_lshlrev_b32 v7, 4, v2                   ; lane*16
    buffer_store_dwordx4 v[32:35], v7, s[16:19], s37 offen
    s_lshr_b32 s37, s36, 3                    ; r4
    s_mul_i32 s38, s21, 11
    s_add_u32 s37, s37, s38
    s_lshl_b32 s37, s37, 10
    s_and_b32 s38, s36, 7
    s_lshl_b32 s38, s38, 1
    s_add_u32 s37, s37, s38
    s_add_u32 s37, s37, {IDX}
    buffer_store_short v40, v7, s[16:19], s37 offen
    v_readlane_b32 s36, v41, 0
    v_readlane_b32 s37, v41, 16
    v_readlane_b32 s38, v41, 32
    v_readlane_b32 s39, v41, 48
    s_nop 3
    s_lshl_b32 s37, s37, 4
    s_lshl_b32 s38, s38, 8
    s_lshl_b32 s39, s39, 12
    s_or_b32 s36, s36, s37
    s_or_b32 s38, s38, s39
    s_or_b32 s36, s36, s38                    ; M_s
    s_lshl_b32 s37, s20, 2
    v_mov_b32 v8, s36
    v_mov_b32 v9, s37
    ds_write_b32 v9, v8
    v_mov_b32 v9, 0
    s_waitcnt lgkmcnt(0)
    s_barrier
    ds_read_b128 v[44:47], v9
    ds_read_b128 v[48:51], v9 offset:16
    ds_read_b32 v52, v9 offset:32
    s_mov_b32 s40, 0                          ; prefix
    s_mov_b32 s41, 0                          ; total
    s_waitcnt lgkmcnt(0)""")
    for j in range(9):
        A(f"""    v_readfirstlane_b32 s37, v{44+j}
    s_nop 3
    s_bcnt1_i32_b32 s37, s37
    s_add_u32 s41, s41, s37
    s_cmp_gt_u32 s20, {j}
    s_cselect_b32 s37, s37, 0
    s_add_u32 s40, s40, s37""")
    A(f"""    ; table bases
    s_mul_i32 s42, s21, 10368
    s_add_u32 s42, s42, {TAB}
    s_lshl_b32 s37, s22, 6
    s_add_u32 s43, s42, s37
    s_add_u32 s43, s43, 9216                  ; T0 base
    s_add_u32 s46, s43, 576
    s_lshl_b32 s37, s22, 10
    s_add_u32 s42, s42, s37                   ; A0 base
    s_mul_i32 s44, s2, {16*544}
    s_add_u32 s44, s44, {OV}
    s_mov_b32 s47, 544
    s_add_u32 s45, s41, 7
    s_and_b32 s45, s45, -8
    s_max_u32 s45, s45, 16""")
    def scatter(tag):
        A(f"""    v_lshrrev_b32 v57, 2, v54                 ; qa'
    v_and_b32 v58, 3, v54                     ; g'
    v_lshl_add_u32 v59, v57, 4, v4
    v_lshlrev_b32 v59, 4, v59
    v_lshl_add_u32 v59, v58, 2, v59
    v_add_u32 v59, s42, v59
    v_and_b32 v60, 1, v57
    v_lshlrev_b32 v60, 1, v60
    v_lshrrev_b32 v61, 1, v58
    v_add_u32 v60, v60, v61                   ; qb
    v_lshrrev_b32 v61, 1, v57
    v_lshlrev_b32 v61, 1, v61
    v_and_b32 v62, 1, v58
    v_add_u32 v61, v61, v62                   ; jj
    v_lshl_add_u32 v60, v60, 2, v61
    v_lshl_add_u32 v60, v60, 2, s43
    v_subrev_u32 v61, 16, v54                 ; o
    v_lshrrev_b32 v62, 3, v61
    v_and_b32 v62, 15, v62
    v_mul_lo_u32 v62, v62, s47
    v_add_u32 v62, s44, v62
    v_and_b32 v61, 7, v61                     ; sl
    v_lshrrev_b32 v57, 1, v61
    v_lshl_add_u32 v57, v57, 4, v4
    v_lshlrev_b32 v57, 3, v57
    v_and_b32 v58, 1, v61
    v_lshl_add_u32 v57, v58, 2, v57
    v_add_u32 v57, v57, v62
    v_lshl_add_u32 v58, v61, 2, v62
    v_add_u32 v58, 512, v58
    v_cmp_gt_u32 vcc, 16, v54
    s_nop 1
    v_cndmask_b32 v59, v57, v59, vcc
    v_cndmask_b32 v60, v58, v60, vcc
    buffer_store_dword v55, v59, s[16:19], 0 offen
    buffer_store_dword v56, v60, s[16:19], 0 offen""")
    for g in range(4):
        A(f"""    v_lshl_add_u32 v57, v3, 2, {g}
    v_bfm_b32 v57, v57, 0
    v_and_b32 v57, s36, v57
    v_bcnt_u32_b32 v54, v57, s40              ; slot
    v_mov_b32 v55, v{36+g}
    s_lshl_b32 s37, s20, 10
    v_lshl_add_u32 v56, v3, 5, s37
    v_add_u32 v56, {(g//2)*16 + (g%2)*8}, v56
    v_and_b32 v57, {1<<g}, v41
    v_cmp_ne_u32 vcc, 0, v57
    s_and_saveexec_b64 s[48:49], vcc
    s_cbranch_execz P_skip{g}""")
        scatter(g)
        A(f"""P_skip{g}:
    s_mov_b64 exec, s[48:49]""")
    A(f"""    ; zero-fill unused slots
    v_lshrrev_b32 v54, 4, v0
    v_add_u32 v54, s41, v54
    v_mov_b32 v55, 0
    v_mov_b32 v56, 0
    v_cmp_gt_u32 vcc, s45, v54
    s_and_saveexec_b64 s[48:49], vcc
    s_cbranch_execz P_skip4""")
    scatter(4)
    A(f"""P_skip4:
    s_mov_b64 exec, s[48:49]
    v_cmp_gt_u32 vcc, 16, v0
    s_and_saveexec_b64 s[48:49], vcc
    s_cbranch_execz P_fin
    s_waitcnt vmcnt(0)
    v_lshlrev_b32 v15, 16, v15
    v_lshlrev_b32 v8, 2, v4
    buffer_store_dword v15, v8, s[16:19], s46 offen
    s_sub_u32 s45, s45, 16
    s_lshr_b32 s45, s45, 3
    s_lshl_b32 s37, s2, 2
    s_add_u32 s37, s37, {CNT}
    v_mov_b32 v8, 0
    v_mov_b32 v9, s45
    buffer_store_dword v9, v8, s[16:19], s37 offen
P_fin:
{stamp_out(o, 63, 9, DIAG + (1 << 19))}
P_end:
    s_endpgm""")
    return "\n".join(L)

vB0, vB1, vXor, vRow, vDma, vS4, vS2, vTA, vTQ, vCI, vL16 = range(1, 12)
vIDX = 12
vL8, vQ8 = 53, 54
vWF = 56
vACC = (124, 160)
vBB = 196
vT = (220, 224)
vA = (228, 232)
vG = (236, 244)
vTMP = 252

def wfrag(p):
    return vr(4 * p, 4, "a") if p < 64 else vr(vWF + 4 * (p - 64), 4)

def main_smf(sig, t):
    rb, s = divmod(sig, 9)
    p = s * 9 + t
    return smfmac(vr(vACC[rb] + 4 * t, 4), wfrag(p), vr(vBB + 8 * (sig % 3), 8), vr(vIDX + p // 2), p & 1)

def bread(sig):
    rb, s = divmod(sig, 9)
    b = vBB + 8 * (sig % 3)
    off = rb * 18432 + s * 1024
    return [ds_read("ds_read_b128", vr(b, 4), vr(vB0), f"offset:{off}"),
            ds_read("ds_read_b128", vr(b + 4, 4), vr(vB1), f"offset:{off}")]

def bias_init(rb, t):
    return ds_read("ds_read_b128", vr(vACC[rb] + 4 * t, 4), vr(vTQ), f"offset:{9792 + t*64}")

def epilogue(rb, soff, o, init=True):
    g = []
    for u in range(4):
        a = vACC[rb] + 8 * u
        for j in range(4):
            g.append(valu(f"v_cvt_pk_bf16_f32 v{a+j}, v{a+2*j}, v{a+2*j+1}", [vr(a + 2 * j, 2)], [vr(a + j)]))
        g.append(I(f"buffer_store_dwordx4 {vr(a,4)}, v{vS4}, s[12:15], {soff} offen offset:{u*64} {o['stf']}".rstrip(), "store", rd=[vr(a, 4), vr(vS4)]))
        if init:
            g.append(bias_init(rb, 2 * u + 1))
            g.append(bias_init(rb, 2 * u))
    a = vACC[rb] + 32
    for j in range(2):
        g.append(valu(f"v_cvt_pk_bf16_f32 v{a+j}, v{a+2*j}, v{a+2*j+1}", [vr(a + 2 * j, 2)], [vr(a + j)]))
    g.append(I(f"buffer_store_dwordx2 {vr(a,2)}, v{vS2}, s[12:15], {soff} offen {o['stf']}".rstrip(), "store", rd=[vr(a, 2), vr(vS2)]))
    if init:
        g.append(bias_init(rb, 8))
    return g

def xdma(o, m0base, soff):
    g = []
    for s in range(9):
        if s == 0:
            g.append(salu(f"s_mov_b32 m0, {m0base}"))
        else:
            g.append(salu("s_add_u32 m0, m0, 896"))
        g.append(I(f"buffer_load_dwordx4 v{vDma}, s[8:11], {soff} offen offset:{s*128} {o['xnt']} lds", "dma", rd=[vr(vDma)]))
    return g

def gen_main(o):
    L = []
    A = L.append
    bstride = 256 * SLOT if o["inter"] else SLOT
    wgmul = SLOT if o["inter"] else 8 * SLOT
    A(f""".p2align 8
.type main_kernel,@function
main_kernel:
    s_cmp_ge_u32 s2, 256
    s_cbranch_scc1 M_end
{stamp(o, 255, True)}
    s_load_dwordx2 s[8:9], s[0:1], 0          ; x
    s_load_dwordx2 s[12:13], s[0:1], 24       ; out
    s_load_dwordx2 s[16:17], s[0:1], 40       ; ws
    v_lshrrev_b32 v20, 6, v0
    v_and_b32 v21, 63, v0                     ; lane
    v_readfirstlane_b32 s20, v20              ; wave
    s_mov_b32 s10, {XB}
    s_mov_b32 s11, 0x20000
    s_mov_b32 s14, 0
    s_mov_b32 s15, 0x20000
    s_mov_b32 s18, {WS_USED}
    s_mov_b32 s19, 0x20000
    s_mul_i32 s22, s2, {wgmul}
    ; x DMA lane offset: (tid/8)*1152 + ((tid%8) ^ ((tid/16)%8))*16
    v_lshrrev_b32 v22, 3, v0
    v_mul_u32_u24 v22, 1152, v22
    v_lshrrev_b32 v23, 4, v0
    v_xor_b32 v23, v23, v0
    v_and_b32 v23, 7, v23
    v_lshl_add_u32 v{vDma}, v23, 4, v22
    v_lshlrev_b32 v{vL16}, 4, v21
    s_mul_i32 s26, s20, 9216
    s_mul_i32 s28, s20, 36
    s_add_u32 s28, s28, {CNT}
    s_waitcnt lgkmcnt(0)""")
    A(text(finalize(xdma(o, "s26", "s22"))))
    A(f"""    s_add_u32 s30, s16, s28
    s_addc_u32 s31, s17, 0
    s_load_dwordx8 s[32:39], s[30:31], 0
    s_load_dword s40, s[30:31], 32
    s_mul_i32 s29, s20, {LTABW}
    s_add_u32 s29, s29, {LTAB}
    s_mul_i32 s28, s20, 10368
    s_add_u32 s28, s28, {TAB}
    s_mov_b32 m0, s29""")
    for j in range(11):
        if j % 4 == 0 and j:
            A("    s_add_u32 s28, s28, 4096\n    s_add_u32 m0, m0, 4096")
        if j == 10:
            A("    s_mov_b64 exec, 0xff")
        A("    s_nop 0")
        A(f"    buffer_load_dwordx4 v{vL16}, s[16:19], s28 offen offset:{(j%4)*1024} lds")
    A("    s_mov_b64 exec, -1")
    A(f"""    v_lshrrev_b32 v22, 4, v21                 ; q
    v_and_b32 v23, 15, v21                    ; m
    v_lshrrev_b32 v24, 1, v23                 ; f(m)
    v_and_b32 v25, 7, v23
    v_lshlrev_b32 v25, 7, v25
    v_lshl_or_b32 v{vXor}, v24, 4, v25        ; (f<<4) | (m%8)<<7
    v_lshrrev_b32 v25, 3, v23
    v_mul_u32_u24 v{vRow}, 9216, v25
    v_lshlrev_b32 v25, 4, v22
    v_xad_u32 v{vB0}, v25, v{vXor}, v{vRow}
    v_xor_b32 v{vB1}, 64, v{vB0}
    v_add_u32 v{vTQ}, s29, v25
    v_add_u32 v{vTA}, s29, v{vL16}
    v_mul_u32_u24 v24, 1152, v23
    s_lshl_b32 s28, s20, 8
    v_add3_u32 v{vS4}, v24, v25, s28
    s_lshl_b32 s28, s20, 5
    s_add_u32 s28, s28, 1024
    v_lshlrev_b32 v25, 3, v22
    v_add3_u32 v{vS2}, v24, v25, s28
    v_add_u32 v{vQ8}, 512, v25
    v_lshlrev_b32 v{vL8}, 3, v21
    v_mov_b32 v{vCI}, 0xeeee4444
    s_mov_b32 s24, s22
    s_mov_b32 s23, s22
    s_mul_i32 s28, s20, {81*1024}
    s_mul_i32 s30, s20, {11*1024}
    s_add_u32 s30, s30, {IDX}""")
    wl = []
    for r in range(11):
        if r % 4 == 0 and r:
            wl.append("    s_add_u32 s30, s30, 4096")
        if r < 10:
            wl.append(f"    buffer_load_dwordx4 {vr(vIDX+4*r,4)}, v{vL16}, s[16:19], s30 offen offset:{(r%4)*1024} {o['wflag']}")
        else:
            wl.append(f"    buffer_load_dword v{vIDX+40}, v{vL16}, s[16:19], s30 offen offset:{(r%4)*1024} {o['wflag']}")
    A("\n".join(wl))
    def wloads(p0, p1):
        for p in range(p0, p1):
            if p % 4 == 0 and p:
                A("    s_add_u32 s28, s28, 4096")
            A(f"    buffer_load_dwordx4 {wfrag(p)}, v{vL16}, s[16:19], s28 offen offset:{(p%4)*1024} {o['wflag']}")
    wloads(0, 20)
    A(f"    s_add_u32 s22, s22, {bstride}\n    s_add_u32 s26, s26, {SLOT}")
    A(text(finalize(xdma(o, "s26", "s22"))))
    wloads(20, 50)
    A(f"""    s_waitcnt lgkmcnt(0)
    s_mov_b32 s27, 0
    s_add_u32 s54, s29, 10368
    s_mul_i32 s55, s20, {9*16*544}
    s_add_u32 s55, s55, {OV}
    s_mov_b32 exec_lo, -1
    s_mov_b32 exec_hi, 3""")
    for t in range(9):
        A(f"""    s_min_u32 s{32+t}, s{32+t}, 16
    s_mov_b32 s{44+t}, s27
    s_mov_b32 s56, 0
M_pool{t}:
    s_cmp_lt_u32 s56, s{32+t}
    s_cbranch_scc0 M_poole{t}
    s_add_u32 s57, s27, s56
    s_cmp_lt_u32 s57, {NPOOL}
    s_cbranch_scc0 M_poole{t}
    s_mul_i32 s57, s57, 544
    s_add_u32 m0, s57, s54
    s_add_u32 s57, s56, {t*16}
    s_mul_i32 s57, s57, 544
    s_add_u32 s57, s57, s55
    buffer_load_dwordx4 v{vL16}, s[16:19], s57 offen lds
    s_add_u32 s56, s56, 1
    s_branch M_pool{t}
M_poole{t}:
    s_add_u32 s27, s27, s{32+t}""")
    A("    s_mov_b64 exec, -1")
    A(f"    s_add_u32 s22, s22, {bstride}\n    s_add_u32 s26, s26, {SLOT}")
    A(text(finalize(xdma(o, "s26", "s22"))))
    wloads(50, 81)
    A(f"""    s_mov_b32 s21, 0
    s_mov_b32 s25, 0
    s_mul_i32 s26, s20, 9216
{stamp(o, 255)}
    s_waitcnt vmcnt(0)
{stamp(o, 255)}
    s_barrier""")
    pre = bread(0) + bread(1) + [bias_init(0, t) for t in range(9)]
    A(text(finalize(pre)))
    A("    s_waitcnt lgkmcnt(0)\n    s_branch M_mid")

    seq = []
    seq.append(I("M_top:", "label"))
    if o["diag"]:
        seq.append(I(stamp(o, 255), "other"))
    seq.append(salu("s_cmp_eq_u32 s21, 7"))
    seq.append(I("s_cbranch_scc1 M_w7", "other"))
    seq.append(I("s_waitcnt vmcnt(29) lgkmcnt(0)", "lgkm0"))
    seq.append(I("M_w7r:", "label"))
    if o["diag"]:
        seq.append(I(stamp(o, 255), "other"))
    seq.append(I("s_barrier", "other"))
    if o["diag"]:
        seq.append(I(stamp(o, 255), "other"))
    seq.append(salu(f"s_add_u32 s28, s25, s26"))
    seq.append(salu(f"s_add_u32 s30, s25, {SLOT}"))
    seq.append(salu(f"s_cmp_eq_u32 s30, {NSLOT*SLOT}"))
    seq.append(salu(f"s_cselect_b32 s30, 0, s30"))
    seq.append(salu(f"s_sub_u32 s31, s30, s25"))
    seq.append(salu(f"s_mov_b32 s25, s30"))
    for r in (vB0, vB1, vRow):
        seq.append(valu(f"v_add_u32 v{r}, s31, v{r}", [vr(r)], [vr(r)]))
    seq += bread(0)
    seq.append(salu(f"s_add_u32 s22, s22, {bstride}"))
    seq.append(salu(f"s_add_u32 s23, s24, 18432"))
    seq.append(salu(f"s_add_u32 s24, s24, {bstride}"))
    seq.append(salu("s_cmp_gt_u32 s21, 5"))
    seq.append(I("s_cbranch_scc1 M_nodma", "other"))
    seq += xdma(o, "s28", "s22")
    seq.append(I("M_nodma:", "label"))
    for t in range(9):
        seq.append(main_smf(16, t))
    seq += bread(1)
    for t in range(9):
        seq.append(main_smf(17, t))
    seq.append(I("M_mid:", "label"))
    fill = {k: [] for k in range(-1, 144)}
    for sig in range(16):
        fill[sig * 9 - 1] += bread(sig + 2)
    ep = epilogue(1, "s23", o)
    k = 0
    for j, ins in enumerate(ep):
        fill[k].append(ins)
        if j % 3 != 2:
            k += 1
    fill[k].append(salu(f"s_mov_b32 s14, {XB}"))
    for t in range(9):
        T, Aa, G = vT[t & 1], vA[t & 1], vG[t & 1]
        b = 8 * t
        fill[b].append(ds_read("ds_read_b128", vr(T, 4), vr(vTQ), f"offset:{9216 + t*64}"))
        for j in range(4):
            fill[b + 4 + j].append(valu(f"v_xad_u32 v{T+j}, v{T+j}, v{vXor}, v{vRow}", [vr(T + j), vr(vXor), vr(vRow)], [vr(T + j)]))
            fill[b + 5 + j].append(ds_read("ds_read2st64_b32", vr(G + 2 * j, 2), vr(T + j), "offset0:0 offset1:72"))
        fill[b + 9].append(ds_read("ds_read_b128", vr(Aa, 4), vr(vTA), f"offset:{t*1024}"))
        fill[b + 15].append(smfmac(vr(vACC[0] + 4 * t, 4), vr(Aa, 4), vr(G, 8), vr(vCI), 0))
        fill[b + 16].append(smfmac(vr(vACC[1] + 4 * t, 4), vr(Aa, 4), vr(G, 8), vr(vCI), 1))
    fill[80].append(salu("s_cmp_lg_u32 s27, 0"))
    fill[80].append(I("s_cbranch_scc1 M_slow", "other"))
    fill[80].append(I("M_slowr:", "label"))
    ep = epilogue(0, "s24", o)
    for j, ins in enumerate(ep):
        fill[85 + j].append(ins)
    seq += fill[-1]
    for k in range(144):
        seq.append(main_smf(k // 9, k % 9))
        seq += fill[k]
    seq.append(salu("s_add_u32 s21, s21, 1"))
    seq.append(salu("s_cmp_lt_u32 s21, 8"))
    seq.append(I("s_cbranch_scc1 M_top", "other"))
    seq.append(salu(f"s_add_u32 s23, s24, 18432"))
    for sig in (16, 17):
        for t in range(9):
            seq.append(main_smf(sig, t))
    seq += epilogue(1, "s23", o, init=False)
    A(text(finalize(seq)))
    A(stamp(o, 255))
    A(stamp_out(o, 255, 4, DIAG))
    A("""M_end:
    s_endpgm
M_w7:
    s_waitcnt vmcnt(20) lgkmcnt(0)
    s_branch M_w7r""")
    A("M_slow:")
    T, Aa, G = vT[0], vA[0], vG[0]
    for t in range(9):
        A(f"""    s_mov_b32 s56, 0
M_sl{t}:
    s_cmp_lt_u32 s56, s{32+t}
    s_cbranch_scc0 M_sle{t}
    s_add_u32 s57, s{44+t}, s56
    s_cmp_lt_u32 s57, {NPOOL}
    s_cbranch_scc0 M_slg{t}
    s_mul_i32 s57, s57, 544
    s_add_u32 s57, s57, s54
    v_add_u32 v{vTMP}, s57, v{vQ8}
    v_add_u32 v{vTMP+1}, s57, v{vL8}
    ds_read_b64 {vr(T,2)}, v{vTMP}
    ds_read_b64 {vr(Aa,2)}, v{vTMP+1}
    s_waitcnt lgkmcnt(0)
    s_branch M_slc{t}
M_slg{t}:
    s_add_u32 s57, s56, {t*16}
    s_mul_i32 s57, s57, 544
    s_add_u32 s57, s57, s55
    buffer_load_dwordx2 {vr(T,2)}, v{vQ8}, s[16:19], s57 offen
    buffer_load_dwordx2 {vr(Aa,2)}, v{vL8}, s[16:19], s57 offen
    s_waitcnt vmcnt(0)
M_slc{t}:
    v_xad_u32 v{T}, v{T}, v{vXor}, v{vRow}
    v_xad_u32 v{T+1}, v{T+1}, v{vXor}, v{vRow}
    ds_read2st64_b32 {vr(G,2)}, v{T} offset0:0 offset1:72
    ds_read2st64_b32 {vr(G+2,2)}, v{T+1} offset0:0 offset1:72
    s_add_u32 s56, s56, 1
    s_nop 7
    s_waitcnt lgkmcnt(0)
    v_smfmac_f32_16x16x32_bf16 {vr(vACC[0]+4*t,4)}, {vr(Aa,2)}, {vr(G,4)}, v{vCI}
    v_smfmac_f32_16x16x32_bf16 {vr(vACC[1]+4*t,4)}, {vr(Aa,2)}, {vr(G,4)}, v{vCI} abid:2
    s_branch M_sl{t}
M_sle{t}:""")
    A("    s_nop 7\n    s_branch M_slowr")
    return "\n".join(L)

def kd(name, nv, ns, acc):
    return f""".p2align 6
.amdhsa_kernel {name}
  .amdhsa_next_free_vgpr {nv}
  .amdhsa_next_free_sgpr {ns}
  .amdhsa_accum_offset {acc}
  .amdhsa_group_segment_fixed_size 0
  .amdhsa_kernarg_size 48
  .amdhsa_user_sgpr_count 2
  .amdhsa_user_sgpr_kernarg_segment_ptr 1
  .amdhsa_system_sgpr_workgroup_id_x 1
  .amdhsa_float_denorm_mode_32 3
.end_amdhsa_kernel"""

def gen(**kw):
    o = dict(DEF)
    o.update(kw)
    hdr = f"""; out = x @ prune_2of4(w) + b   (bf16, M=65536 K=576 N=576); generated by dev/gen.py
; @launch kernel=prep_kernel grid=(36,1,1) block=(576,1,1) lds=64
; @launch kernel=main_kernel grid=(256,1,1) block=(256,1,1) lds={LDS_BYTES}
.amdgcn_target "amdgcn-amd-amdhsa--gfx950"
.text
.globl prep_kernel
.globl main_kernel
"""
    return (hdr + gen_prep(o) + "\n" + gen_main(o) + '\n.section .rodata,"a"\n' + kd("prep_kernel", 64, 64, 64) + "\n" + kd("main_kernel", 512, 64, 256) + "\n")

if __name__ == "__main__":
    kw = {}
    out = f"/code/{NAME}.s"
    for a in sys.argv[1:]:
        if "=" in a:
            k, v = a.split("=", 1)
            kw[k] = int(v) if v.lstrip("-").isdigit() else v
        else:
            out = a
    open(out, "w").write(gen(**kw))
    print("wrote", out)
```

```python
import re

def regs(spec):
    m = re.fullmatch(r"([vas])\[(\d+):(\d+)\]", spec)
    if m:
        return {(m.group(1), i) for i in range(int(m.group(2)), int(m.group(3)) + 1)}
    m = re.fullmatch(r"([vas])(\d+)", spec)
    if m:
        return {(m.group(1), int(m.group(2)))}
    return set()

def vr(base, n=1, f="v"):
    return f"{f}{base}" if n == 1 else f"{f}[{base}:{base+n-1}]"

class I:
    def __init__(self, text, kind, rd=(), wr=()):
        self.text = text
        self.kind = kind
        self.rd = set().union(*[regs(r) for r in rd]) if rd else set()
        self.wr = set().union(*[regs(r) for r in wr]) if wr else set()

def smfmac(d, a, b, idx, abid, shape="16x16x64"):
    t = f"v_smfmac_f32_{shape}_bf16 {d}, {a}, {b}, {idx}" + (f" abid:{abid}" if abid else "")
    return I(t, "mfma", rd=[d, a, b, idx], wr=[d])

def valu(text, rd, wr):
    return I(text, "valu", rd=rd, wr=wr)

def ds_read(op, d, addr, suffix=""):
    return I(f"{op} {d}, {addr} {suffix}".rstrip(), "ds", rd=[addr], wr=[d])

def salu(text):
    return I(text, "salu")

def nslots(ins):
    m = re.fullmatch(r"s_nop (\d+)", ins.text)
    if m:
        return int(m.group(1)) + 1
    if ins.kind == "label":
        return 0
    return 1

def finalize(seq, mfma_wait=8):
    out = []
    pend = []
    for ins in seq:
        if ins.kind == "lgkm0":
            pend = []
            out.append(ins)
            continue
        touch = ins.rd | ins.wr
        need = -1
        for j, d in enumerate(pend):
            if d & touch:
                need = j
        if need >= 0:
            n = len(pend) - 1 - need
            n = min(n, 15)
            w = I(f"s_waitcnt lgkmcnt({n})", "wait")
            if ins.kind == "mfma" and out and out[-1].kind == "valu":
                out.insert(len(out) - 1, w)
            else:
                out.append(w)
            pend = pend[len(pend) - n:] if n else []
        req = 0
        dist = 0
        for prev in reversed(out):
            if dist >= 24:
                break
            r = 0
            if prev.kind == "mfma":
                if ins.kind == "mfma":
                    if prev.wr & (ins.rd - ins.wr):
                        r = mfma_wait
                    elif (prev.wr & ins.wr) and prev.wr != ins.wr:
                        r = mfma_wait
                    elif (prev.wr & ins.wr) and prev.text.split()[0] != ins.text.split()[0]:
                        r = mfma_wait
                elif ins.kind in ("valu", "ds", "store", "load", "dma"):
                    if prev.wr & touch:
                        r = mfma_wait
            if prev.kind == "valu" and ins.kind == "mfma" and (prev.wr & ins.rd):
                r = max(r, 2)
            if prev.kind == "store" and ins.kind in ("valu", "ds", "load", "mfma") and (prev.rd & ins.wr):
                r = max(r, 2)
            if prev.kind == "salu" and prev.text.split()[1].startswith("m0") and ins.kind == "dma":
                r = max(r, 1)
            req = max(req, r - dist)
            dist += nslots(prev)
        while req > 0:
            k = min(req, 16)
            out.append(I(f"s_nop {k-1}", "nop"))
            req -= k
        out.append(ins)
        if ins.kind == "ds":
            pend.append(ins.wr)
            assert len(pend) <= 15 or True
    return out

def text(seq):
    return "\n".join(("" if i.kind == "label" else "    ") + i.text for i in seq)


class Gaps:
    def __init__(self, n, cap=3):
        self.nv = [[] for _ in range(n)]
        self.v = [None] * n
        self.res = [0] * n
        self.cap = cap
    def load(self, k):
        return len([i for i in self.nv[k] if i.kind != "label"]) + (self.v[k] is not None) + self.res[k]
    def reserve(self, k):
        self.res[k] += 1
    def put(self, ins, k, cap=None):
        cap = cap or self.cap
        while self.load(k) >= cap or (ins.kind == "valu" and self.v[k] is not None):
            k += 1
        if ins.kind == "valu":
            self.v[k] = ins
        else:
            self.nv[k].append(ins)
        return k
    def chain(self, lst, k, cap=None, step=0):
        prev = None
        for ins in lst:
            if prev is not None:
                k += max(step, 1 if prev.kind == "valu" else 0)
            k = self.put(ins, k, cap)
            prev = ins
        return k
    def gap(self, k):
        return self.nv[k] + ([self.v[k]] if self.v[k] is not None else [])
```

```python
import sys
from asmlib import *

NAME = "standalone__structured_sparse_n_m__ragged"
XB = 16 * 4096 * 576 * 2
WSB = 301989888
WF = 0
IDX = 331776
TAB = IDX + 45056
OV = TAB + 4 * 10368
CNT = OV + 36 * 16 * 544
WS_USED = CNT + 256
SLOT = 36864
NSLOT = 3
LTAB = NSLOT * SLOT
LTABW = 13088
NPOOL = 5
LDS_BYTES = LTAB + 4 * LTABW

DEF = dict(xnt="nt", stf="", inter=1, wflag="", diag=0, nocorr=0, nostore=0, noslow=0, nobias=0, nogather=0, order="c", touch=0,
           gstep=1, book=140, per=14, e1=[18, 36, 52, 68, 82], e0=[102, 112, 122, 136, 150], dma=[1, 11, 28, 46, 62, 78, 92, 108, 128])
DIAG = 1 << 20
def stamp(o, vreg, first=False):
    if not o["diag"]:
        return ""
    L = []
    if first:
        L += ["    s_mov_b32 s62, 0", f"    v_mov_b32 v{vreg}, 0"]
    L += ["    s_memrealtime s[60:61]" if o["diag"] == 1 else "    s_memtime s[60:61]", "    s_waitcnt lgkmcnt(0)", "    s_mov_b32 m0, s62", f"    v_writelane_b32 v{vreg}, s60, m0", "    s_add_u32 s62, s62, 1"]
    return "\n".join(L)
def stamp_out(o, vreg, nwaves, base):
    if not o["diag"]:
        return ""
    L = ["    s_mov_b64 exec, -1", "    s_waitcnt vmcnt(0)", stamp(o, vreg), f"    s_mov_b32 s18, {WSB}",
         f"    s_mul_i32 s60, s2, {nwaves}", "    s_add_u32 s60, s60, s20", "    s_lshl_b32 s60, s60, 8", f"    s_add_u32 s60, s60, {base}",
         "    v_mbcnt_lo_u32_b32 v0, -1, 0", "    v_mbcnt_hi_u32_b32 v0, -1, v0", "    v_lshlrev_b32 v0, 2, v0",
         f"    buffer_store_dword v{vreg}, v0, s[16:19], s60 offen"]
    return "\n".join(L)

def lut_tables():
    l64 = 0
    l32 = 0
    for nk in range(16):
        keep = [j for j in range(4) if not (nk >> j) & 1]
        e = 0
        if len(keep) >= 2:
            ia, ib = keep[-2], keep[-1]
            for j in keep[:-2]:
                assert j < 2
                e |= 1 << j
        elif len(keep) == 1:
            ib = keep[0]
            ia = (ib + 1) % 4
            if ia > ib:
                ia, ib = ib, ia
        else:
            ia, ib = 0, 1
        l64 |= (ia | ib << 2) << (4 * nk)
        l32 |= e << (2 * nk)
    return l64, l32

def gen_prep(o):
    L = []
    A = L.append
    l64, l32 = lut_tables()
    A(f""".p2align 8
.type prep_kernel,@function
prep_kernel:
    s_cmp_ge_u32 s2, 36
    s_cbranch_scc1 P_end
{stamp(o, 63, True)}
    s_load_dwordx4 s[4:7], s[0:1], 8          ; w, b
    s_load_dwordx2 s[16:17], s[0:1], 40       ; ws
    v_lshrrev_b32 v1, 6, v0
    v_and_b32 v2, 63, v0                      ; lane
    v_readfirstlane_b32 s20, v1               ; s = kstep
    v_lshrrev_b32 v3, 4, v2                   ; qa
    v_and_b32 v4, 15, v2                      ; i
    s_mul_i32 s21, s2, 57                     ; w = tau/9
    s_lshr_b32 s21, s21, 9
    s_mul_i32 s22, s21, 9
    s_sub_u32 s22, s2, s22                    ; t
    s_lshr_b32 s23, s22, 1
    s_lshl_b32 s23, s23, 5
    s_and_b32 s24, s22, 1
    s_lshl_b32 s24, s24, 2
    s_add_u32 s23, s23, s24
    s_lshl_b32 s24, s21, 7
    s_add_u32 s23, s23, s24                   ; 128w + 32u + 4hf
    s_lshl_b32 s24, s21, 4
    s_add_u32 s24, s24, 512
    s_cmp_lt_u32 s22, 8
    s_cselect_b32 s23, s23, s24
    s_cselect_b32 s24, 8, 4
    v_lshrrev_b32 v5, 2, v4
    v_mul_lo_u32 v5, v5, s24
    v_and_b32 v6, 3, v4
    v_add3_u32 v5, v5, v6, s23                ; col
    v_lshlrev_b32 v5, 1, v5                   ; col*2
    v_lshrrev_b32 v6, 4, v0                   ; s*4+qa
    v_mul_u32_u24 v6, {16*1152}, v6
    v_add_u32 v6, v6, v5
    s_mov_b32 s25, 4608
    s_mov_b32 s26, 9216
    s_mov_b32 s27, 13824
    s_mov_b32 s18, {WS_USED}
    s_mov_b32 s19, 0x20000
    s_waitcnt lgkmcnt(0)
    s_mov_b32 s8, s4
    s_mov_b32 s9, s5
    s_mov_b32 s10, {576*576*2}
    s_mov_b32 s11, 0x20000
    s_mov_b32 s12, s6
    s_mov_b32 s13, s7
    s_mov_b32 s14, 1152
    s_mov_b32 s15, 0x20000""")
    so = ["0", "s25", "s26", "s27"]
    for j in range(16):
        A(f"    buffer_load_ushort v{16+j}, v6, s[8:11], {so[j//4]} offen offset:{(j%4)*1152}")
    A("    buffer_load_ushort v15, v5, s[12:15], 0 offen")
    A(f"""    s_mov_b32 s28, {l64 & 0xffffffff}
    s_mov_b32 s29, {l64 >> 32}
    s_mov_b32 s30, {l32}
    s_mov_b32 s31, 0x0202
    s_mov_b32 s33, 0xffff
    v_mov_b32 v14, 0x01000100
    v_mov_b32 v40, 0                          ; idx16
    v_mov_b32 v41, 0
    v_and_b32 v13, 48, v2""")
    for g in range(4):
        a = 16 + 4 * g
        A(f"    s_waitcnt vmcnt({13 - 4*g})")
        A(f"""    v_and_b32 v44, 0x7fff, v{a}
    v_and_b32 v45, 0x7fff, v{a+1}
    v_and_b32 v46, 0x7fff, v{a+2}
    v_and_b32 v47, 0x7fff, v{a+3}
    v_max_u32 v48, v44, v45
    v_min_u32 v49, v44, v45
    v_max_u32 v50, v46, v47
    v_min_u32 v51, v46, v47
    v_min_u32 v48, v48, v50
    v_max3_u32 v48, v48, v49, v51
    v_max_u32 v48, 1, v48
    v_sub_u32 v47, v47, v48
    v_sub_u32 v46, v46, v48
    v_sub_u32 v45, v45, v48
    v_sub_u32 v44, v44, v48
    v_lshrrev_b32 v49, 31, v47
    v_alignbit_b32 v49, v49, v46, 31
    v_alignbit_b32 v49, v49, v45, 31
    v_alignbit_b32 v49, v49, v44, 31
    v_lshlrev_b32 v50, 2, v49
    v_lshrrev_b64 v[52:53], v50, s[28:29]
    v_and_b32 v52, 15, v52
    v_lshl_or_b32 v40, v52, {4*g}, v40
    v_lshl_or_b32 v44, v{a+1}, 16, v{a}       ; P01
    v_lshl_or_b32 v45, v{a+3}, 16, v{a+2}     ; P23
    v_and_b32 v46, 3, v52
    v_lshrrev_b32 v47, 2, v52
    v_lshl_or_b32 v46, v47, 16, v46
    v_mad_u32_u24 v46, v46, s31, v14
    v_perm_b32 v{32+g}, v45, v44, v46
    v_lshlrev_b32 v50, 1, v49
    v_lshrrev_b32 v50, v50, s30
    v_and_b32 v46, 1, v50
    v_bfe_u32 v47, v50, 1, 1
    v_lshl_or_b32 v46, v47, 16, v46
    v_mul_u32_u24 v46, s33, v46
    v_and_b32 v{36+g}, v44, v46
    v_cmp_ne_u32 s[34:35], 0, v{36+g}
    s_nop 1
    v_lshrrev_b64 v[52:53], v13, s[34:35]
    v_and_b32 v52, 0xffff, v52
    v_min_u32 v52, 1, v52
    v_lshl_or_b32 v41, v52, {g}, v41""")
    A(stamp(o, 63))
    A(f"""    ; store fragment + index
    s_mul_i32 s36, s20, 9
    s_add_u32 s36, s36, s22                   ; p
    s_mul_i32 s37, s21, 81
    s_add_u32 s37, s37, s36
    s_lshl_b32 s37, s37, 10
    v_lshlrev_b32 v7, 4, v2                   ; lane*16
    buffer_store_dwordx4 v[32:35], v7, s[16:19], s37 offen
    s_lshr_b32 s37, s36, 3                    ; r4
    s_mul_i32 s38, s21, 11
    s_add_u32 s37, s37, s38
    s_lshl_b32 s37, s37, 10
    s_and_b32 s38, s36, 7
    s_lshl_b32 s38, s38, 1
    s_add_u32 s37, s37, s38
    s_add_u32 s37, s37, {IDX}
    buffer_store_short v40, v7, s[16:19], s37 offen
    v_readlane_b32 s36, v41, 0
    v_readlane_b32 s37, v41, 16
    v_readlane_b32 s38, v41, 32
    v_readlane_b32 s39, v41, 48
    s_nop 3
    s_lshl_b32 s37, s37, 4
    s_lshl_b32 s38, s38, 8
    s_lshl_b32 s39, s39, 12
    s_or_b32 s36, s36, s37
    s_or_b32 s38, s38, s39
    s_or_b32 s36, s36, s38                    ; M_s
    s_lshl_b32 s37, s20, 2
    v_mov_b32 v8, s36
    v_mov_b32 v9, s37
    ds_write_b32 v9, v8
    v_mov_b32 v9, 0
    s_waitcnt lgkmcnt(0)
    s_barrier
    ds_read_b128 v[44:47], v9
    ds_read_b128 v[48:51], v9 offset:16
    ds_read_b32 v52, v9 offset:32
    s_mov_b32 s40, 0                          ; prefix
    s_mov_b32 s41, 0                          ; total
    s_waitcnt lgkmcnt(0)""")
    for j in range(9):
        A(f"""    v_readfirstlane_b32 s37, v{44+j}
    s_nop 3
    s_bcnt1_i32_b32 s37, s37
    s_add_u32 s41, s41, s37
    s_cmp_gt_u32 s20, {j}
    s_cselect_b32 s37, s37, 0
    s_add_u32 s40, s40, s37""")
    A(f"""    ; table bases
    s_mul_i32 s42, s21, 10368
    s_add_u32 s42, s42, {TAB}
    s_lshl_b32 s37, s22, 6
    s_add_u32 s43, s42, s37
    s_add_u32 s43, s43, 9216                  ; T0 base
    s_add_u32 s46, s43, 576
    s_lshl_b32 s37, s22, 10
    s_add_u32 s42, s42, s37                   ; A0 base
    s_mul_i32 s44, s2, {16*544}
    s_add_u32 s44, s44, {OV}
    s_mov_b32 s47, 544
    s_add_u32 s45, s41, 7
    s_and_b32 s45, s45, -8
    s_max_u32 s45, s45, 16""")
    def scatter(tag):
        A(f"""    v_lshrrev_b32 v57, 2, v54                 ; qa'
    v_and_b32 v58, 3, v54                     ; g'
    v_lshl_add_u32 v59, v57, 4, v4
    v_lshlrev_b32 v59, 4, v59
    v_lshl_add_u32 v59, v58, 2, v59
    v_add_u32 v59, s42, v59
    v_and_b32 v60, 1, v57
    v_lshlrev_b32 v60, 1, v60
    v_lshrrev_b32 v61, 1, v58
    v_add_u32 v60, v60, v61                   ; qb
    v_lshrrev_b32 v61, 1, v57
    v_lshlrev_b32 v61, 1, v61
    v_and_b32 v62, 1, v58
    v_add_u32 v61, v61, v62                   ; jj
    v_lshl_add_u32 v60, v60, 2, v61
    v_lshl_add_u32 v60, v60, 2, s43
    v_subrev_u32 v61, 16, v54                 ; o
    v_lshrrev_b32 v62, 3, v61
    v_and_b32 v62, 15, v62
    v_mul_lo_u32 v62, v62, s47
    v_add_u32 v62, s44, v62
    v_and_b32 v61, 7, v61                     ; sl
    v_lshrrev_b32 v57, 1, v61
    v_lshl_add_u32 v57, v57, 4, v4
    v_lshlrev_b32 v57, 3, v57
    v_and_b32 v58, 1, v61
    v_lshl_add_u32 v57, v58, 2, v57
    v_add_u32 v57, v57, v62
    v_lshl_add_u32 v58, v61, 2, v62
    v_add_u32 v58, 512, v58
    v_cmp_gt_u32 vcc, 16, v54
    s_nop 1
    v_cndmask_b32 v59, v57, v59, vcc
    v_cndmask_b32 v60, v58, v60, vcc
    buffer_store_dword v55, v59, s[16:19], 0 offen
    buffer_store_dword v56, v60, s[16:19], 0 offen""")
    for g in range(4):
        A(f"""    v_lshl_add_u32 v57, v3, 2, {g}
    v_bfm_b32 v57, v57, 0
    v_and_b32 v57, s36, v57
    v_bcnt_u32_b32 v54, v57, s40              ; slot
    v_mov_b32 v55, v{36+g}
    s_lshl_b32 s37, s20, 10
    v_lshl_add_u32 v56, v3, 5, s37
    v_add_u32 v56, {(g//2)*16 + (g%2)*8}, v56
    v_and_b32 v57, {1<<g}, v41
    v_cmp_ne_u32 vcc, 0, v57
    s_and_saveexec_b64 s[48:49], vcc
    s_cbranch_execz P_skip{g}""")
        scatter(g)
        A(f"""P_skip{g}:
    s_mov_b64 exec, s[48:49]""")
    A(f"""    ; zero-fill unused slots
    v_lshrrev_b32 v54, 4, v0
    v_add_u32 v54, s41, v54
    v_mov_b32 v55, 0
    v_mov_b32 v56, 0
    v_cmp_gt_u32 vcc, s45, v54
    s_and_saveexec_b64 s[48:49], vcc
    s_cbranch_execz P_skip4""")
    scatter(4)
    A(f"""P_skip4:
    s_mov_b64 exec, s[48:49]
    ; bias (f32, tile order) and overflow count
    v_cmp_gt_u32 vcc, 16, v0
    s_and_saveexec_b64 s[48:49], vcc
    s_cbranch_execz P_fin
    s_waitcnt vmcnt(0)
    v_lshlrev_b32 v15, 16, v15
    v_lshlrev_b32 v8, 2, v4
    buffer_store_dword v15, v8, s[16:19], s46 offen
    s_sub_u32 s45, s45, 16
    s_lshr_b32 s45, s45, 3
    s_lshl_b32 s37, s2, 2
    s_add_u32 s37, s37, {CNT}
    v_mov_b32 v8, 0
    v_mov_b32 v9, s45
    buffer_store_dword v9, v8, s[16:19], s37 offen
P_fin:
{stamp_out(o, 63, 9, DIAG + (1 << 19))}
P_end:
    s_endpgm""")
    return "\n".join(L)

vB0, vB1, vXor, vRow, vDma, vS4, vS2, vTA, vTQ, vCI, vL16 = range(1, 12)
vIDX = 12
vL8, vQ8 = 53, 54
vWF = 56
vACC = (124, 160)
vBB = 196
vT = (220, 224)
vA = (228, 232)
vG = (236, 244)
vTMP = 252

def wfrag(p):
    return vr(4 * p, 4, "a") if p < 64 else vr(vWF + 4 * (p - 64), 4)

def main_smf(sig, t):
    rb, s = divmod(sig, 9)
    p = s * 9 + t
    return smfmac(vr(vACC[rb] + 4 * t, 4), wfrag(p), vr(vBB + 8 * (sig % 3), 8), vr(vIDX + p // 2), p & 1)

def bread(sig):
    rb, s = divmod(sig, 9)
    b = vBB + 8 * (sig % 3)
    off = rb * 18432 + s * 1024
    return [ds_read("ds_read_b128", vr(b, 4), vr(vB0), f"offset:{off}"),
            ds_read("ds_read_b128", vr(b + 4, 4), vr(vB1), f"offset:{off}")]

def bias_init(rb, t):
    return ds_read("ds_read_b128", vr(vACC[rb] + 4 * t, 4), vr(vTQ), f"offset:{9792 + t*64}")

def epilogue(rb, soff, o, init=True):
    g = []
    for u in range(4):
        a = vACC[rb] + 8 * u
        for j in range(4):
            g.append(valu(f"v_cvt_pk_bf16_f32 v{a+j}, v{a+2*j}, v{a+2*j+1}", [vr(a + 2 * j, 2)], [vr(a + j)]))
        g.append(I(f"buffer_store_dwordx4 {vr(a,4)}, v{vS4}, s[12:15], {soff} offen offset:{u*64} {o['stf']}".rstrip(), "store", rd=[vr(a, 4), vr(vS4)]))
        if init:
            g.append(bias_init(rb, 2 * u + 1))
            g.append(bias_init(rb, 2 * u))
    a = vACC[rb] + 32
    for j in range(2):
        g.append(valu(f"v_cvt_pk_bf16_f32 v{a+j}, v{a+2*j}, v{a+2*j+1}", [vr(a + 2 * j, 2)], [vr(a + j)]))
    g.append(I(f"buffer_store_dwordx2 {vr(a,2)}, v{vS2}, s[12:15], {soff} offen {o['stf']}".rstrip(), "store", rd=[vr(a, 2), vr(vS2)]))
    if init:
        g.append(bias_init(rb, 8))
    return g

def xdma(o, m0base, soff):
    g = []
    for s in range(9):
        if s == 0:
            g.append(salu(f"s_mov_b32 m0, {m0base}"))
        else:
            g.append(salu("s_add_u32 m0, m0, 896"))
        g.append(I(f"buffer_load_dwordx4 v{vDma}, s[8:11], {soff} offen offset:{s*128} {o['xnt']} lds", "dma", rd=[vr(vDma)]))
    return g

def gen_main(o):
    L = []
    A = L.append
    bstride = 256 * SLOT if o["inter"] else SLOT
    wgmul = SLOT if o["inter"] else 8 * SLOT
    A(f""".p2align 8
.type main_kernel,@function
main_kernel:
    s_cmp_ge_u32 s2, 256
    s_cbranch_scc1 M_end
{stamp(o, 255, True)}
    s_load_dwordx2 s[8:9], s[0:1], 0          ; x
    s_load_dwordx2 s[12:13], s[0:1], 24       ; out
    s_load_dwordx2 s[16:17], s[0:1], 40       ; ws
    v_lshrrev_b32 v20, 6, v0
    v_and_b32 v21, 63, v0                     ; lane
    v_readfirstlane_b32 s20, v20              ; wave
    s_mov_b32 s10, {XB}
    s_mov_b32 s11, 0x20000
    s_mov_b32 s14, 0                          ; no stores until the first real epilogue
    s_mov_b32 s15, 0x20000
    s_mov_b32 s18, {WS_USED}
    s_mov_b32 s19, 0x20000
    s_mul_i32 s22, s2, {wgmul}
    ; x DMA lane offset: (tid/8)*1152 + ((tid%8) ^ ((tid/16)%8))*16
    v_lshrrev_b32 v22, 3, v0
    v_mul_u32_u24 v22, 1152, v22
    v_lshrrev_b32 v23, 4, v0
    v_xor_b32 v23, v23, v0
    v_and_b32 v23, 7, v23
    v_lshl_add_u32 v{vDma}, v23, 4, v22
    v_lshlrev_b32 v{vL16}, 4, v21
    s_mul_i32 s26, s20, 9216
    s_mul_i32 s28, s20, 36
    s_add_u32 s28, s28, {CNT}
    s_waitcnt lgkmcnt(0)""")
    def xblk(first=False):
        if not first:
            A(f"    s_add_u32 s22, s22, {bstride}\n    s_add_u32 s26, s26, {SLOT}")
        A(text(finalize(xdma(o, "s26", "s22"))))
    A("    s_mov_b32 s24, s22\n    s_mov_b32 s23, s22")
    if o["touch"]:
        A(f"""    s_lshr_b32 s30, s2, 3
    s_and_b32 s30, s30, 15
    s_lshl_b32 s30, s30, 2
    s_add_u32 s30, s30, s20
    s_lshl_b32 s30, s30, 13
    v_lshlrev_b32 v30, 7, v21
    s_mov_b32 s18, {OV}
    buffer_load_dword v30, v30, s[16:19], s30 offen
    s_mov_b32 s18, {WS_USED}""")
    if o["order"] in "ac":
        xblk(True)
    if o["order"] == "c":
        xblk(); xblk()
        if o["diag"]:
            A("    s_waitcnt vmcnt(0)\n" + stamp(o, 255))
    A(f"""    s_add_u32 s30, s16, s28
    s_addc_u32 s31, s17, 0
    s_load_dwordx8 s[32:39], s[30:31], 0
    s_load_dword s40, s[30:31], 32
    s_mul_i32 s29, s20, {LTABW}
    s_add_u32 s29, s29, {LTAB}
    s_mul_i32 s28, s20, 10368
    s_add_u32 s28, s28, {TAB}
    s_mov_b32 m0, s29""")
    for j in range(11):
        if j % 4 == 0 and j:
            A("    s_add_u32 s28, s28, 4096\n    s_add_u32 m0, m0, 4096")
        if j == 10:
            A("    s_mov_b64 exec, 0xff")
        A("    s_nop 0")
        A(f"    buffer_load_dwordx4 v{vL16}, s[16:19], s28 offen offset:{(j%4)*1024} lds")
    A("    s_mov_b64 exec, -1")
    A(f"""    v_lshrrev_b32 v22, 4, v21                 ; q
    v_and_b32 v23, 15, v21                    ; m
    v_lshrrev_b32 v24, 1, v23                 ; f(m)
    v_and_b32 v25, 7, v23
    v_lshlrev_b32 v25, 7, v25
    v_lshl_or_b32 v{vXor}, v24, 4, v25        ; (f<<4) | (m%8)<<7
    v_lshrrev_b32 v25, 3, v23
    v_mul_u32_u24 v{vRow}, 9216, v25
    v_lshlrev_b32 v25, 4, v22
    v_xad_u32 v{vB0}, v25, v{vXor}, v{vRow}
    v_xor_b32 v{vB1}, 64, v{vB0}
    v_add_u32 v{vTQ}, s29, v25
    v_add_u32 v{vTA}, s29, v{vL16}
    v_mul_u32_u24 v24, 1152, v23
    s_lshl_b32 s28, s20, 8
    v_add3_u32 v{vS4}, v24, v25, s28
    s_lshl_b32 s28, s20, 5
    s_add_u32 s28, s28, 1024
    v_lshlrev_b32 v25, 3, v22
    v_add3_u32 v{vS2}, v24, v25, s28
    v_add_u32 v{vQ8}, 512, v25
    v_lshlrev_b32 v{vL8}, 3, v21
    v_mov_b32 v{vCI}, 0xeeee4444
    s_mul_i32 s28, s20, {81*1024}
    s_mul_i32 s30, s20, {11*1024}
    s_add_u32 s30, s30, {IDX}""")
    wl = []
    for r in range(11):
        if r % 4 == 0 and r:
            wl.append("    s_add_u32 s30, s30, 4096")
        if r < 10:
            wl.append(f"    buffer_load_dwordx4 {vr(vIDX+4*r,4)}, v{vL16}, s[16:19], s30 offen offset:{(r%4)*1024} {o['wflag']}")
        else:
            wl.append(f"    buffer_load_dword v{vIDX+40}, v{vL16}, s[16:19], s30 offen offset:{(r%4)*1024} {o['wflag']}")
    A("\n".join(wl))
    def wloads(p0, p1):
        for p in range(p0, p1):
            if p % 4 == 0 and p:
                A("    s_add_u32 s28, s28, 4096")
            A(f"    buffer_load_dwordx4 {wfrag(p)}, v{vL16}, s[16:19], s28 offen offset:{(p%4)*1024} {o['wflag']}")
    wloads(0, 20)
    if o["order"] == "a":
        xblk()
    wloads(20, 50)
    A(f"""    s_waitcnt lgkmcnt(0)
    s_mov_b32 s27, 0
    s_add_u32 s54, s29, 10368
    s_mul_i32 s55, s20, {9*16*544}
    s_add_u32 s55, s55, {OV}
    s_mov_b32 exec_lo, -1
    s_mov_b32 exec_hi, 3""")
    for t in range(9):
        A(f"""    s_min_u32 s{32+t}, s{32+t}, 16
    s_mov_b32 s{44+t}, s27
    s_mov_b32 s56, 0
M_pool{t}:
    s_cmp_lt_u32 s56, s{32+t}
    s_cbranch_scc0 M_poole{t}
    s_add_u32 s57, s27, s56
    s_cmp_lt_u32 s57, {NPOOL}
    s_cbranch_scc0 M_poole{t}
    s_mul_i32 s57, s57, 544
    s_add_u32 m0, s57, s54
    s_add_u32 s57, s56, {t*16}
    s_mul_i32 s57, s57, 544
    s_add_u32 s57, s57, s55
    buffer_load_dwordx4 v{vL16}, s[16:19], s57 offen lds
    s_add_u32 s56, s56, 1
    s_branch M_pool{t}
M_poole{t}:
    s_add_u32 s27, s27, s{32+t}""")
    A("    s_mov_b64 exec, -1")
    if o["order"] == "a":
        xblk()
    wloads(50, 81)
    if o["order"] == "b":
        if o["diag"]:
            A("    s_waitcnt vmcnt(0)\n" + stamp(o, 255))
        xblk(True); xblk(); xblk()
    A(f"""    s_mov_b32 s21, 0
    s_mov_b32 s25, 0
    s_mul_i32 s26, s20, 9216
{stamp(o, 255)}
    s_waitcnt vmcnt(0)
{stamp(o, 255)}
    s_barrier""")
    T, Aa, G = vT[0], vA[0], vG[0]
    def tread(t):
        return ds_read("ds_read_b128", vr(T, 4), vr(vTQ), f"offset:{9216 + t*64}")
    pre = bread(0) + bread(1) + [tread(0)] + [bias_init(0, t) for t in range(9)]
    A(text(finalize(pre)))
    A("    s_mov_b32 s10, 0\n    s_mov_b32 m0, 0x30000")
    A("    s_waitcnt lgkmcnt(0)\n    s_branch M_mid")

    order = [16, 17] + list(range(16))
    b0, per = 18, o["per"]
    stream = []
    pos = {}
    cpos = {}
    for k in range(162):
        t, r = divmod(k - b0, per)
        pos[k] = len(stream)
        stream.append(main_smf(order[k // 9], k % 9))
        if not o["nocorr"] and k >= b0:
            if r == per - 2 and t < 9:
                stream.append(smfmac(vr(vACC[0] + 4 * t, 4), vr(Aa, 4), vr(G, 8), vr(vCI), 0))
            if r == per - 1 and t < 9:
                cpos[t] = len(stream)
                stream.append(smfmac(vr(vACC[1] + 4 * t, 4), vr(Aa, 4), vr(G, 8), vr(vCI), 1))
    gp = Gaps(len(stream) + 1)
    gp.put(I("M_mid:", "label"), pos[17])
    for j, sig in enumerate(order):
        if j:
            gp.chain(bread((sig + 2) % 18), pos[9 * j - 1], step=1)
    k = pos[99] - 1
    if not o["noslow"]:
        gp.nv[k] += [salu("s_cmp_lg_u32 s27, 0"), I("s_cbranch_scc1 M_slow", "other")]
    gp.nv[k] += [I("M_slowr:", "label")]
    if not o["nocorr"]:
        gp.put(tread(0), 4)
        for t in range(9):
            gp.reserve(cpos[t] - 3)
            k = pos[17] if t == 0 else cpos[t - 1] - 2
            kg = pos[18] if t == 0 else cpos[t - 1]
            for j in range(4):
                k = gp.put(valu(f"v_xad_u32 v{T+j}, v{T+j}, v{vXor}, v{vRow}", [vr(T + j), vr(vXor), vr(vRow)], [vr(T + j)]), k) + 1
                if not o["nogather"]:
                    kg = gp.put(ds_read("ds_read2st64_b32", vr(G + 2 * j, 2), vr(T + j), "offset0:0 offset1:72"), max(kg, k), 2) + o["gstep"]
            if t < 8:
                kg = gp.put(tread(t + 1), max(kg, k), 2)
            gp.put(ds_read("ds_read_b128", vr(Aa, 4), vr(vTA), f"offset:{t*1024}"), kg, 2)
    def ep_groups(rb, soff):
        e = epilogue(rb, soff, o)
        g = [e[0:7], e[7:14], e[14:21], e[21:28], e[28:]]
        return [[i for i in x if not (o["nostore"] and i.kind == "store") and not (o["nobias"] and i.kind == "ds")] for x in g]
    for u, g in enumerate(ep_groups(1, "s23")):
        k = gp.chain(g, pos[o["e1"][u]], 2, step=1)
    gp.put(salu(f"s_mov_b32 s14, {XB}"), k + 1)
    for u, g in enumerate(ep_groups(0, "s24")):
        gp.chain(g, pos[o["e0"][u]], 2, step=1)
    d = xdma(o, "s28", "s22")
    for j in range(9):
        gp.chain(d[2 * j:2 * j + 2], pos[o["dma"][j]], 2, step=1)
    kb = pos[o["book"]]
    book = [salu("s_add_u32 s21, s21, 1"),
            salu(f"s_add_u32 s28, s25, s26"),
            salu(f"s_add_u32 s30, s25, {SLOT}"),
            salu(f"s_cmp_eq_u32 s30, {NSLOT*SLOT}"),
            salu(f"s_cselect_b32 s30, 0, s30"),
            salu(f"s_sub_u32 s31, s30, s25"),
            salu(f"s_mov_b32 s25, s30"),
            salu(f"s_add_u32 s22, s22, {bstride}"),
            salu("s_cmp_gt_u32 s21, 5"),
            salu(f"s_cselect_b32 s10, 0, {XB}")]
    kb = gp.chain(book, kb, 3)
    k = gp.chain([valu(f"v_add_u32 v{r}, s31, v{r}", [vr(r)], [vr(r)]) for r in (vRow, vB0, vB1)], max(kb + 1, pos[155]))
    assert k < len(stream)
    body = []
    for k, m in enumerate(stream):
        body.append(m)
        body += gp.gap(k)
    assert not gp.gap(len(stream))
    for r in (vRow, vB0, vB1):
        w = [j for j, i in enumerate(body) if ("v", r) in i.wr]
        u = [j for j, i in enumerate(body) if ("v", r) in i.rd]
        assert len(w) == 1 and max(u) == w[0], r
    lastdma = max(j for j, i in enumerate(body) if i.kind == "dma")
    assert lastdma < body.index(book[1])
    vm = [i.kind for i in body if i.kind in ("dma", "store")]
    last = max(j for j, kd_ in enumerate(vm) if kd_ == "dma")
    nwait = len(vm) - 1 - last + len(vm)
    seq = []
    seq.append(I("M_top:", "label"))
    if o["diag"]:
        seq.append(I(stamp(o, 255), "other"))
    seq.append(salu(f"s_add_u32 s23, s24, 18432"))
    seq.append(salu(f"s_add_u32 s24, s24, {bstride}"))
    seq.append(I(f"s_waitcnt vmcnt({nwait}) lgkmcnt(0)", "lgkm0"))
    if o["diag"]:
        seq.append(I(stamp(o, 255), "other"))
    seq.append(I("s_barrier", "other"))
    if o["diag"]:
        seq.append(I(stamp(o, 255), "other"))
    seq += bread(0)
    seq += body
    seq.append(salu("s_cmp_lt_u32 s21, 8"))
    seq.append(I("s_cbranch_scc1 M_top", "other"))
    seq.append(salu(f"s_add_u32 s23, s24, 18432"))
    for sig in (16, 17):
        for t in range(9):
            seq.append(main_smf(sig, t))
    seq += epilogue(1, "s23", o, init=False)
    A(text(finalize(seq)))
    A(stamp(o, 255))
    A(stamp_out(o, 255, 4, DIAG))
    A("""M_end:
    s_endpgm""")
    A("M_slow:")
    T, Aa, G = vT[1], vA[1], vG[1]
    for t in range(9):
        A(f"""    s_mov_b32 s56, 0
M_sl{t}:
    s_cmp_lt_u32 s56, s{32+t}
    s_cbranch_scc0 M_sle{t}
    s_add_u32 s57, s{44+t}, s56
    s_cmp_lt_u32 s57, {NPOOL}
    s_cbranch_scc0 M_slg{t}
    s_mul_i32 s57, s57, 544
    s_add_u32 s57, s57, s54
    v_add_u32 v{vTMP}, s57, v{vQ8}
    v_add_u32 v{vTMP+1}, s57, v{vL8}
    ds_read_b64 {vr(T,2)}, v{vTMP}
    ds_read_b64 {vr(Aa,2)}, v{vTMP+1}
    s_waitcnt lgkmcnt(0)
    s_branch M_slc{t}
M_slg{t}:
    s_add_u32 s57, s56, {t*16}
    s_mul_i32 s57, s57, 544
    s_add_u32 s57, s57, s55
    buffer_load_dwordx2 {vr(T,2)}, v{vQ8}, s[16:19], s57 offen
    buffer_load_dwordx2 {vr(Aa,2)}, v{vL8}, s[16:19], s57 offen
    s_waitcnt vmcnt(0)
M_slc{t}:
    v_xad_u32 v{T}, v{T}, v{vXor}, v{vRow}
    v_xad_u32 v{T+1}, v{T+1}, v{vXor}, v{vRow}
    ds_read2st64_b32 {vr(G,2)}, v{T} offset0:0 offset1:72
    ds_read2st64_b32 {vr(G+2,2)}, v{T+1} offset0:0 offset1:72
    s_add_u32 s56, s56, 1
    s_nop 7
    s_waitcnt lgkmcnt(0)
    v_smfmac_f32_16x16x32_bf16 {vr(vACC[0]+4*t,4)}, {vr(Aa,2)}, {vr(G,4)}, v{vCI}
    v_smfmac_f32_16x16x32_bf16 {vr(vACC[1]+4*t,4)}, {vr(Aa,2)}, {vr(G,4)}, v{vCI} abid:2
    s_branch M_sl{t}
M_sle{t}:""")
    A("    s_nop 7\n    s_branch M_slowr")
    return "\n".join(L)

def kd(name, nv, ns, acc):
    return f""".p2align 6
.amdhsa_kernel {name}
  .amdhsa_next_free_vgpr {nv}
  .amdhsa_next_free_sgpr {ns}
  .amdhsa_accum_offset {acc}
  .amdhsa_group_segment_fixed_size 0
  .amdhsa_kernarg_size 48
  .amdhsa_user_sgpr_count 2
  .amdhsa_user_sgpr_kernarg_segment_ptr 1
  .amdhsa_system_sgpr_workgroup_id_x 1
  .amdhsa_float_denorm_mode_32 3
.end_amdhsa_kernel"""

def gen(**kw):
    o = dict(DEF)
    o.update(kw)
    hdr = f"""; out = x @ prune_2of4(w) + b   (bf16, M=65536 K=576 N=576); generated by dev/gen.py
; @launch kernel=prep_kernel grid=(36,1,1) block=(576,1,1) lds=64
; @launch kernel=main_kernel grid=(256,1,1) block=(256,1,1) lds={LDS_BYTES}
.amdgcn_target "amdgcn-amd-amdhsa--gfx950"
.text
.globl prep_kernel
.globl main_kernel
"""
    return (hdr + gen_prep(o) + "\n" + gen_main(o) + '\n.section .rodata,"a"\n' + kd("prep_kernel", 64, 64, 64) + "\n" + kd("main_kernel", 512, 64, 256) + "\n")

if __name__ == "__main__":
    kw = {}
    out = f"/code/{NAME}.s"
    for a in sys.argv[1:]:
        if "=" in a:
            k, v = a.split("=", 1)
            kw[k] = int(v) if v.lstrip("-").isdigit() else (eval(v) if v.startswith("[") else v)
        else:
            out = a
    open(out, "w").write(gen(**kw))
    print("wrote", out)
```

```python
import re

def regs(spec):
    m = re.fullmatch(r"([vas])\[(\d+):(\d+)\]", spec)
    if m:
        return {(m.group(1), i) for i in range(int(m.group(2)), int(m.group(3)) + 1)}
    m = re.fullmatch(r"([vas])(\d+)", spec)
    if m:
        return {(m.group(1), int(m.group(2)))}
    if spec.startswith("@"):
        return {("@", spec)}
    return set()

def vr(base, n=1, f="v"):
    return f"{f}{base}" if n == 1 else f"{f}[{base}:{base+n-1}]"

class I:
    def __init__(self, text, kind, rd=(), wr=()):
        self.text = text
        self.kind = kind
        self.rd = set().union(*[regs(r) for r in rd]) if rd else set()
        self.wr = set().union(*[regs(r) for r in wr]) if wr else set()

def smfmac(d, a, b, idx, abid, shape="16x16x64"):
    t = f"v_smfmac_f32_{shape}_bf16 {d}, {a}, {b}, {idx}" + (f" abid:{abid}" if abid else "")
    return I(t, "mfma", rd=[d, a, b, idx], wr=[d])

def valu(text, rd, wr):
    return I(text, "valu", rd=rd, wr=wr)

def ds_read(op, d, addr, suffix=""):
    return I(f"{op} {d}, {addr} {suffix}".rstrip(), "ds", rd=[addr], wr=[d])

def salu(text):
    return I(text, "salu")

def nslots(ins):
    m = re.fullmatch(r"s_nop (\d+)", ins.text)
    if m:
        return int(m.group(1)) + 1
    if ins.kind == "label":
        return 0
    return 1

def finalize(seq, mfma_wait=8, vm=False):
    out = []
    pend = []
    vpend = []
    for ins in seq:
        if ins.kind == "lgkm0":
            pend = []
            out.append(ins)
            continue
        touch = ins.rd | ins.wr
        if vm:
            need = -1
            for j, d in enumerate(vpend):
                if d & touch:
                    need = j
            if need >= 0:
                n = min(len(vpend) - 1 - need, 63)
                w = I(f"s_waitcnt vmcnt({n})", "wait")
                if ins.kind == "mfma" and out and out[-1].kind == "valu":
                    out.insert(len(out) - 1, w)
                else:
                    out.append(w)
                vpend = vpend[len(vpend) - n:] if n else []
            if ins.kind in ("load", "dma", "store"):
                vpend.append(ins.wr)
        need = -1
        for j, d in enumerate(pend):
            if d & touch:
                need = j
        if need >= 0:
            n = len(pend) - 1 - need
            n = min(n, 15)
            w = I(f"s_waitcnt lgkmcnt({n})", "wait")
            if ins.kind == "mfma" and out and out[-1].kind == "valu":
                out.insert(len(out) - 1, w)
            else:
                out.append(w)
            pend = pend[len(pend) - n:] if n else []
        req = 0
        dist = 0
        for prev in reversed(out):
            if dist >= 24:
                break
            r = 0
            if prev.kind == "mfma":
                if ins.kind == "mfma":
                    if prev.wr & (ins.rd - ins.wr):
                        r = mfma_wait
                    elif (prev.wr & ins.wr) and prev.wr != ins.wr:
                        r = mfma_wait
                    elif (prev.wr & ins.wr) and prev.text.split()[0] != ins.text.split()[0]:
                        r = mfma_wait
                elif ins.kind in ("valu", "ds", "store", "load", "dma"):
                    if prev.wr & touch:
                        r = mfma_wait
            if prev.kind == "valu" and ins.kind == "mfma" and (prev.wr & ins.rd):
                r = max(r, 2)
            if prev.kind == "valu" and "_dpp" in ins.text and (prev.wr & ins.rd):
                r = max(r, 2)
            if prev.kind == "store" and ins.kind in ("valu", "ds", "load", "mfma") and (prev.rd & ins.wr):
                r = max(r, 2)
            if prev.kind == "salu" and prev.text.split()[1].startswith("m0") and ins.kind == "dma":
                r = max(r, 1)
            req = max(req, r - dist)
            dist += nslots(prev)
        while req > 0:
            k = min(req, 16)
            out.append(I(f"s_nop {k-1}", "nop"))
            req -= k
        out.append(ins)
        if ins.kind == "ds":
            pend.append(ins.wr)
            assert len(pend) <= 15 or True
    return out

def text(seq):
    return "\n".join(("" if i.kind == "label" else "    ") + i.text for i in seq)


class Gaps:
    def __init__(self, n, cap=3):
        self.nv = [[] for _ in range(n)]
        self.v = [None] * n
        self.res = [0] * n
        self.cap = cap
    def load(self, k):
        return len([i for i in self.nv[k] if i.kind != "label"]) + (self.v[k] is not None) + self.res[k]
    def reserve(self, k):
        self.res[k] += 1
    def put(self, ins, k, cap=None):
        cap = cap or self.cap
        while self.load(k) >= cap or (ins.kind == "valu" and self.v[k] is not None):
            k += 1
        if ins.kind == "valu":
            self.v[k] = ins
        else:
            self.nv[k].append(ins)
        return k
    def chain(self, lst, k, cap=None, step=0):
        prev = None
        for ins in lst:
            if prev is not None:
                k += max(step, 1 if prev.kind == "valu" else 0)
            k = self.put(ins, k, cap)
            prev = ins
        return k
    def gap(self, k):
        return self.nv[k] + ([self.v[k]] if self.v[k] is not None else [])
```

```python
import sys
from asmlib import *

NAME = "standalone__structured_sparse_n_m__ragged"
XB = 16 * 4096 * 576 * 2
WSB = 301989888
WF = 0
IDX = 331776
TABW = 9856
TAB = IDX + 84 * 512
OV = TAB + 4 * TABW
WS_USED = OV + 36 * 16 * 544
NF, NC = 84, 36
CNT_F, CNT_C = 0, 64
FLAG_F, FLAG_C = 128, 192
SLOT = 36864
NSLOT = 3
LTAB = NSLOT * SLOT
L_T0, L_CNT, L_BIAS, L_POOL = 9216, 9792, 9840, 10416
NPOOL = 5
LTABW = L_POOL + NPOOL * 544
LDS_BYTES = LTAB + 4 * LTABW
SPIN = 1 << 17

DEF = dict(xnt="nt", stf="sc1", stf2="", inter=1, diag=0, nA=3, nF=1, nC=1, lag=8, eC=14, cper=5,
           gstep=1, book=140, b0=24, per=12, tord=[8, 0, 1, 2, 3, 4, 5, 6, 7], e1=[21, 50, 18], e0=[106, 137, 102],
           dma=[1, 11, 28, 46, 62, 78, 92, 108, 128], nostore=0, hold=1, wsc="sc1")

DIAG = 1 << 20
def stamp(o, first=False):
    if not o["diag"]:
        return ""
    L = []
    if first:
        L += ["    s_mov_b32 s62, 0", "    v_mov_b32 v255, 0"]
    L += ["    s_mov_b32 s63, m0", "    s_memrealtime s[60:61]", "    s_memtime s[64:65]", "    s_waitcnt lgkmcnt(0)", "    s_mov_b32 m0, s62", "    v_writelane_b32 v255, s60, m0",
          "    s_add_u32 m0, s62, 32", "    v_writelane_b32 v255, s64, m0", "    s_add_u32 s62, s62, 1", "    s_mov_b32 m0, s63"]
    return "\n".join(L)
def stamp_out(o):
    if not o["diag"]:
        return ""
    L = ["    s_mov_b64 exec, -1", "    s_waitcnt vmcnt(0)", stamp(o), f"    s_mov_b32 s18, {WSB}",
         "    s_lshl_b32 s60, s2, 2", "    s_add_u32 s60, s60, s20", "    s_lshl_b32 s60, s60, 8", f"    s_add_u32 s60, s60, {DIAG}",
         "    v_mbcnt_lo_u32_b32 v0, -1, 0", "    v_mbcnt_hi_u32_b32 v0, -1, v0", "    v_lshlrev_b32 v0, 2, v0",
         "    buffer_store_dword v255, v0, s[16:19], s60 offen"]
    return "\n".join(L)

def lut_tables():
    l64 = 0
    l32 = 0
    for nk in range(16):
        keep = [j for j in range(4) if not (nk >> j) & 1]
        e = 0
        if len(keep) >= 2:
            ia, ib = keep[-2], keep[-1]
            for j in keep[:-2]:
                assert j < 2
                e |= 1 << j
        elif len(keep) == 1:
            ib = keep[0]
            ia = (ib + 1) % 4
            if ia > ib:
                ia, ib = ib, ia
        else:
            ia, ib = 0, 1
        l64 |= (ia | ib << 2) << (4 * nk)
        l32 |= e << (2 * nk)
    return l64, l32

vB0, vB1, vXor, vRow, vDma, vS4, vS2, vTA, vTQ, vCI, vL16 = range(1, 12)
vIDX = 12
vL8, vQ8 = 54, 55
vWF = 56
vACC = (124, 160)
vBB = 196
vT, vA, vG = 220, 228, 236
vTs, vAs, vGs = 224, 226, 232
vB4 = 244
vTMP = 252

def notkept(a):
    return f"""    v_and_b32 v44, 0x7fff, v{a}
    v_and_b32 v45, 0x7fff, v{a+1}
    v_and_b32 v46, 0x7fff, v{a+2}
    v_and_b32 v47, 0x7fff, v{a+3}
    v_max_u32 v48, v44, v45
    v_min_u32 v49, v44, v45
    v_max_u32 v50, v46, v47
    v_min_u32 v51, v46, v47
    v_min_u32 v48, v48, v50
    v_max3_u32 v48, v48, v49, v51
    v_max_u32 v48, 1, v48
    v_sub_u32 v47, v47, v48
    v_sub_u32 v46, v46, v48
    v_sub_u32 v45, v45, v48
    v_sub_u32 v44, v44, v48
    v_lshrrev_b32 v49, 31, v47
    v_alignbit_b32 v49, v49, v46, 31
    v_alignbit_b32 v49, v49, v45, 31
    v_alignbit_b32 v49, v49, v44, 31"""

def colcalc():
    return """    s_lshr_b32 s33, s31, 1
    s_lshl_b32 s33, s33, 5
    s_and_b32 s34, s31, 1
    s_lshl_b32 s34, s34, 2
    s_add_u32 s33, s33, s34
    s_lshl_b32 s34, s30, 7
    s_add_u32 s33, s33, s34                   ; 128w + 32u + 4hf
    s_lshl_b32 s34, s30, 4
    s_add_u32 s34, s34, 512
    s_cmp_lt_u32 s31, 8
    s_cselect_b32 s33, s33, s34
    s_cselect_b32 s34, 3, 2
    v_lshrrev_b32 v15, 2, v14
    v_lshlrev_b32 v15, s34, v15
    v_and_b32 v16, 3, v14
    v_add3_u32 v15, v15, v16, s33
    v_lshlrev_b32 v15, 1, v15"""

def signal(o, tag, ctr, flag, n):
    return f"""    s_waitcnt vmcnt(0)
{stamp(o)}
    s_barrier
    s_cmp_lg_u32 s20, 0
    s_cbranch_scc1 {tag}_done
    v_mov_b32 v16, 1
    v_mov_b32 v17, 1
    s_mov_b64 exec, 1
    buffer_atomic_add v16, off, s[68:71], 0 offset:{ctr} sc0 sc1
    s_waitcnt vmcnt(0)
    v_cmp_eq_u32 vcc, {n-1}, v16
    s_and_b64 exec, exec, vcc
    s_cbranch_execz {tag}_nf
    buffer_store_dword v17, off, s[68:71], 0 offset:{flag} sc1
{tag}_nf:
    s_mov_b64 exec, -1
{tag}_done:
{"    s_barrier" if o["hold"] else ""}
    s_branch M_x"""

def gen_ftask(o):
    L = []
    A = L.append
    l64, l32 = lut_tables()
    A(f"""F_task:
    s_mul_i32 s30, s2, 49
    s_lshr_b32 s30, s30, 10                   ; w = wg/21
    s_mul_i32 s31, s30, 21
    s_sub_u32 s35, s2, s31
    s_lshl_b32 s35, s35, 2
    s_add_u32 s35, s35, s20                   ; p
    s_min_u32 s35, s35, 80
    s_mul_i32 s32, s35, 57
    s_lshr_b32 s32, s32, 9                    ; s
    s_mul_i32 s31, s32, 9
    s_sub_u32 s31, s35, s31                   ; t
{colcalc()}
    v_mul_u32_u24 v16, {16*1152}, v13
    v_add_u32 v15, v15, v16
    s_mul_i32 s36, s32, {64*1152}
    s_add_u32 s37, s36, 4608
    s_add_u32 s38, s36, 9216
    s_add_u32 s39, s36, 13824
    s_waitcnt lgkmcnt(0)
    s_mov_b32 s4, s74
    s_mov_b32 s5, s75""")
    for j in range(16):
        A(f"    buffer_load_ushort v{16+j}, v15, s[4:7], s{36+j//4} offen offset:{(j%4)*1152}")
    A(f"""    s_mov_b32 s16, s82
    s_mov_b32 s17, s83
    s_mov_b32 s68, s80
    s_mov_b32 s69, s81
    s_mov_b32 s36, {l64 & 0xffffffff}
    s_mov_b32 s37, {l64 >> 32}
    s_mov_b32 s38, 0x0202
    v_mov_b32 v41, 0x01000100
    v_mov_b32 v40, 0
    s_mul_i32 s39, s30, 81
    s_add_u32 s39, s39, s35
    s_lshl_b32 s39, s39, 10
    s_lshl_b32 s40, s2, 9
    s_add_u32 s40, s40, {IDX}
    s_lshl_b32 s33, s20, 1
    v_add_u32 v42, s33, v{vL8}
    s_mov_b32 s41, {o['nF']}""")
    for g in range(4):
        a = 16 + 4 * g
        A(f"    s_waitcnt vmcnt({12 - 4*g})")
        A(notkept(a))
        A(f"""    v_lshlrev_b32 v50, 2, v49
    v_lshrrev_b64 v[52:53], v50, s[36:37]
    v_lshl_or_b32 v44, v{a+1}, 16, v{a}
    v_lshl_or_b32 v45, v{a+3}, 16, v{a+2}
    v_and_b32 v46, 3, v52
    v_bfe_u32 v47, v52, 2, 2
    v_and_b32 v52, 15, v52
    v_lshl_or_b32 v46, v47, 16, v46
    v_lshl_or_b32 v40, v52, {4*g}, v40
    v_mad_u32_u24 v46, v46, s38, v41
    v_perm_b32 v{32+g}, v45, v44, v46""")
    A(f"""    ds_write_b16 v42, v40
    buffer_store_dwordx4 v[32:35], v{vL16}, s[16:19], s39 offen sc1
    s_waitcnt lgkmcnt(0)
    s_barrier
    s_cmp_lg_u32 s20, 0
    s_cbranch_scc1 F_sig
    s_mov_b32 exec_hi, 0
    ds_read_b128 v[36:39], v{vL16}
    s_waitcnt lgkmcnt(0)
    buffer_store_dwordx4 v[36:39], v{vL16}, s[16:19], s40 offen sc1
    s_mov_b64 exec, -1
F_sig:
{stamp(o)}
{signal(o, 'F', CNT_F, FLAG_F, NF)}""")
    return "\n".join(L)

def gen_ctask(o):
    FL, LI, TT = 9728, 10752, 11520
    L = []
    A = L.append
    l64, l32 = lut_tables()
    A(f"""C_task:
    s_sub_u32 s35, s2, {NF}                   ; tau
    s_mul_i32 s30, s35, 57
    s_lshr_b32 s30, s30, 9                    ; w
    s_mul_i32 s31, s30, 9
    s_sub_u32 s31, s35, s31                   ; t
{colcalc()}
    v_lshrrev_b32 v17, 4, v0                  ; 4*qa+g
    v_mul_u32_u24 v16, {4*1152}, v17
    v_add_u32 v15, v15, v16
    s_mov_b32 s36, 0
    s_waitcnt lgkmcnt(0)
    s_mov_b32 s4, s74
    s_mov_b32 s5, s75""")
    for r in range(9):
        for j in range(4):
            A(f"    buffer_load_ushort v{60+4*r+j}, v15, s[4:7], s36 offen offset:{j*1152}")
        if r < 8:
            A(f"    s_add_u32 s36, s36, {64*1152}")
    A(f"""    s_mov_b32 s16, s82
    s_mov_b32 s17, s83
    s_mov_b32 s68, s80
    s_mov_b32 s69, s81
    s_mov_b32 s41, {o['nC']}
    v_lshlrev_b32 v18, 2, v0                  ; tid*4
    v_mov_b32 v19, 0
    ds_write_b32 v18, v19 offset:9216
    ds_write_b32 v18, v19 offset:{FL}
    v_mov_b32 v19, 144
    v_lshlrev_b32 v20, 1, v0
    v_and_b32 v20, 8, v20
    s_cmp_eq_u32 s20, 3
    s_cbranch_scc1 C_a
    ds_write_b32 v18, v19 offset:{LI}
    ds_write_b32 v18, v20 offset:{TT}
C_a:
    s_mov_b32 s37, {l32}
    s_mov_b32 s38, 0xffff
    v_lshlrev_b32 v17, 2, v17
    s_waitcnt lgkmcnt(0)
    s_barrier""")
    for r in range(9):
        a = 60 + 4 * r
        A(f"    s_waitcnt vmcnt({32 - 4*r})")
        A(notkept(a))
        A(f"""    v_lshlrev_b32 v50, 1, v49
    v_lshrrev_b32 v50, v50, s37
    v_lshl_or_b32 v44, v{a+1}, 16, v{a}
    v_and_b32 v46, 1, v50
    v_bfe_u32 v47, v50, 1, 1
    v_lshl_or_b32 v46, v47, 16, v46
    v_mul_u32_u24 v46, s38, v46
    v_and_b32 v44, v44, v46
    ds_write_b32 v18, v44 offset:{r*1024}
    ds_or_b32 v17, v44 offset:{FL + r*64}""")
    A(f"""    v_lshlrev_b32 v19, 2, v12                 ; lane*4
    s_waitcnt lgkmcnt(0)
    s_barrier
    ds_read_b32 v20, v19 offset:{FL}
    ds_read_b32 v21, v19 offset:{FL+256}
    ds_read_b32 v22, v19 offset:{FL+512}
    s_mov_b32 s56, 0x55555555
    s_mov_b32 s57, 0x55555555
    s_waitcnt lgkmcnt(0)
    v_cmp_ne_u32 s[44:45], 0, v20
    v_cmp_ne_u32 s[46:47], 0, v21
    v_cmp_ne_u32 s[48:49], 0, v22
    s_nop 3
    s_bcnt1_i32_b64 s36, s[44:45]
    s_bcnt1_i32_b64 s37, s[46:47]
    s_bcnt1_i32_b64 s38, s[48:49]
    s_add_u32 s37, s37, s36
    s_add_u32 s38, s38, s37                   ; total
    s_and_b64 s[50:51], s[44:45], s[56:57]
    s_bcnt1_i32_b64 s39, s[50:51]
    s_and_b64 s[50:51], s[46:47], s[56:57]
    s_bcnt1_i32_b64 s40, s[50:51]
    s_add_u32 s40, s40, s39
    s_cmp_eq_u32 s20, 0
    s_cselect_b32 s36, 0, s36
    s_cselect_b32 s39, 0, s39
    s_cselect_b64 s[44:45], s[44:45], s[46:47]
    s_cmp_ge_u32 s20, 2
    s_cselect_b32 s36, s37, s36
    s_cselect_b32 s39, s40, s39
    s_cselect_b64 s[44:45], s[48:49], s[44:45]
    s_cmp_eq_u32 s20, 3
    s_cselect_b64 s[44:45], 0, s[44:45]
    s_and_b64 s[50:51], s[44:45], s[56:57]
    v_mov_b32 v20, s36
    v_mbcnt_lo_u32_b32 v20, s44, v20
    v_mbcnt_hi_u32_b32 v20, s45, v20          ; rank
    v_mov_b32 v21, s39
    v_mbcnt_lo_u32_b32 v21, s50, v21
    v_mbcnt_hi_u32_b32 v21, s51, v21
    v_sub_u32 v22, v20, v21
    v_sub_u32 v22, 15, v22
    v_cndmask_b32 v21, v22, v21, s[56:57]
    v_sub_u32 v22, 15, v21
    v_lshrrev_b32 v23, 3, v21
    v_min_u32 v21, v21, v22                   ; p' (0..7)
    v_and_b32 v22, 1, v21
    v_lshl_or_b32 v24, v22, 1, v23            ; qb
    v_lshrrev_b32 v21, 1, v21                 ; jj
    v_lshl_or_b32 v25, v24, 2, v21            ; T index
    v_and_b32 v26, 2, v21
    v_or_b32 v26, v26, v22                    ; qa'
    v_and_b32 v21, 1, v21
    v_lshl_or_b32 v21, v23, 1, v21            ; g'
    v_lshl_or_b32 v26, v26, 2, v21
    v_cmp_gt_u32 vcc, 16, v20
    v_lshrrev_b32 v27, 4, v0
    v_and_b32 v28, 15, v0
    v_cndmask_b32 v25, v20, v25, vcc
    v_cndmask_b32 v26, v20, v26, vcc
    v_lshlrev_b32 v25, 2, v25
    v_lshlrev_b32 v26, 2, v26
    v_lshlrev_b32 v27, 10, v27
    v_lshl_or_b32 v27, v28, 3, v27
    s_mov_b64 exec, s[44:45]
    ds_write_b32 v26, v0 offset:{LI}
    ds_write_b32 v25, v27 offset:{TT}
    s_mov_b64 exec, -1
    s_add_u32 s38, s38, 7
    s_lshr_b32 s38, s38, 3
    s_max_u32 s38, s38, 2
    s_sub_u32 s38, s38, 2
    s_mul_i32 s36, s30, {TABW}
    s_add_u32 s36, s36, {TAB}
    v_lshlrev_b32 v20, 4, v13
    v_lshlrev_b32 v21, 2, v14
    s_waitcnt lgkmcnt(0)
    s_barrier
    s_cmp_eq_u32 s20, 0
    s_cbranch_scc0 C_ov
    ds_read_b128 v[24:27], v20 offset:{LI}
    ds_read_b128 v[32:35], v{vL16} offset:{TT}
    s_lshl_b32 s37, s31, 10
    s_add_u32 s37, s37, s36
    s_lshl_b32 s39, s31, 6
    s_add_u32 s39, s39, s36
    s_add_u32 s39, s39, {L_T0}
    s_lshl_b32 s40, s31, 2
    s_add_u32 s40, s40, s36
    s_add_u32 s40, s40, {L_CNT}
    s_waitcnt lgkmcnt(1)
    v_lshl_add_u32 v24, v24, 6, v21
    v_lshl_add_u32 v25, v25, 6, v21
    v_lshl_add_u32 v26, v26, 6, v21
    v_lshl_add_u32 v27, v27, 6, v21
    ds_read_b32 v28, v24
    ds_read_b32 v29, v25
    ds_read_b32 v30, v26
    ds_read_b32 v31, v27
    v_mov_b32 v22, s38
    s_waitcnt lgkmcnt(0)
    buffer_store_dwordx4 v[28:31], v{vL16}, s[16:19], s37 offen sc1
    s_mov_b64 exec, 15
    buffer_store_dwordx4 v[32:35], v{vL16}, s[16:19], s39 offen sc1
    s_mov_b64 exec, 1
    buffer_store_dword v22, off, s[16:19], s40 sc1
    s_mov_b64 exec, -1
    s_branch C_sig
C_ov:                                         ; waves 1..3: overflow half chunks c = wave-1, +3, ...
    s_sub_u32 s39, s20, 1
    v_lshlrev_b32 v20, 3, v13
C_ovl:
    s_cmp_lt_u32 s39, s38
    s_cbranch_scc0 C_sig
    s_lshl_b32 s40, s39, 5
    v_add_u32 v22, s40, v20
    v_add_u32 v23, s40, v{vL16}
    ds_read_b64 v[24:25], v22 offset:{LI+64}
    ds_read_b128 v[32:35], v23 offset:{TT+64}
    s_lshl_b32 s37, s35, 4
    s_add_u32 s37, s37, s39
    s_mul_i32 s37, s37, 544
    s_add_u32 s37, s37, {OV}
    s_waitcnt lgkmcnt(1)
    v_lshl_add_u32 v24, v24, 6, v21
    v_lshl_add_u32 v25, v25, 6, v21
    ds_read_b32 v28, v24
    ds_read_b32 v29, v25
    s_waitcnt lgkmcnt(0)
    buffer_store_dwordx2 v[28:29], v{vL8}, s[16:19], s37 offen sc1
    s_mov_b64 exec, 3
    buffer_store_dwordx4 v[32:35], v{vL16}, s[16:19], s37 offen offset:512 sc1
    s_mov_b64 exec, -1
    s_add_u32 s39, s39, 3
    s_branch C_ovl
C_sig:
{stamp(o)}
{signal(o, 'C', CNT_C, FLAG_C, NC)}""")
    return "\n".join(L)

def wfrag(p):
    return vr(4 * p, 4, "a") if p < 64 else vr(vWF + 4 * (p - 64), 4)

def smf(rb, s, t, buf):
    p = s * 9 + t
    return smfmac(vr(vACC[rb] + 4 * t, 4), wfrag(p), vr(buf, 8), vr(vIDX + p // 2), p & 1)

def main_smf(sig, t):
    rb, s = divmod(sig, 9)
    return smf(rb, s, t, vBB + 8 * (sig % 3))

def bread_to(rb, s, b):
    off = rb * 18432 + s * 1024
    return [ds_read("ds_read_b128", vr(b, 4), vr(vB0), f"offset:{off}"),
            ds_read("ds_read_b128", vr(b + 4, 4), vr(vB1), f"offset:{off}")]

def bread(sig):
    rb, s = divmod(sig, 9)
    return bread_to(rb, s, vBB + 8 * (sig % 3))

def bias_init(rb, t):
    return ds_read("ds_read_b128", vr(vACC[rb] + 4 * t, 4), vr(vTQ), f"offset:{L_BIAS + t*64}")

def tread(t, tok=None):
    i = ds_read("ds_read_b128", vr(vT, 4), vr(vTQ), f"offset:{L_T0 + t*64}")
    if tok:
        i.rd |= regs(tok)
    return i

def aread(t):
    return ds_read("ds_read_b128", vr(vA, 4), vr(vTA), f"offset:{t*1024}")

def xad(j):
    return valu(f"v_xad_u32 v{vT+j}, v{vT+j}, v{vXor}, v{vRow}", [vr(vT + j), vr(vXor), vr(vRow)], [vr(vT + j)])

def gather(j):
    return ds_read("ds_read2st64_b32", vr(vG + 2 * j, 2), vr(vT + j), "offset0:0 offset1:72")

def csmf(rb, t):
    return smfmac(vr(vACC[rb] + 4 * t, 4), vr(vA, 4), vr(vG, 8), vr(vCI), rb)

def epilogue(rb, soff, o, init=True):
    gs = []
    for ln in range(2):
        g = []
        a = vACC[rb] + 16 * ln
        X, Y, Z = a, a + 8, a + 4
        for j in range(4):
            g.append(valu(f"v_cvt_pk_bf16_f32 v{X+j}, v{a+2*j}, v{a+2*j+1}", [vr(a + 2 * j, 2)], [vr(X + j)]))
        for j in range(4):
            g.append(valu(f"v_cvt_pk_bf16_f32 v{Y+j}, v{a+8+2*j}, v{a+8+2*j+1}", [vr(a + 8 + 2 * j, 2)], [vr(Y + j)]))
        if init:
            g.append(bias_init(rb, 4 * ln + 3))
        for j in range(4):
            g.append(valu(f"v_cndmask_b32_dpp v{Z+j}, v{X+j}, v{Y+j}, vcc row_ror:8 row_mask:0xf bank_mask:0xf", [vr(X + j), vr(Y + j)], [vr(Z + j)]))
        g.append(I(f"buffer_store_dwordx4 {vr(Z,4)}, v{vS4}, s[12:15], {soff[1]} offen offset:{ln*128} {o['stf']}".rstrip(), "store", rd=[vr(Z, 4), vr(vS4)]))
        for j in range(4):
            g.append(valu(f"v_mov_b32_dpp v{X+j}, v{Y+j} row_ror:8 row_mask:0xf bank_mask:0xc", [vr(X + j), vr(Y + j)], [vr(X + j)]))
        g.append(I(f"buffer_store_dwordx4 {vr(X,4)}, v{vS4}, s[12:15], {soff[0]} offen offset:{ln*128} {o['stf']}".rstrip(), "store", rd=[vr(X, 4), vr(vS4)]))
        if init:
            g += [bias_init(rb, 4 * ln + 1), bias_init(rb, 4 * ln + 2), bias_init(rb, 4 * ln)]
        gs.append(g)
    g = []
    a = vACC[rb] + 32
    for j in range(2):
        g.append(valu(f"v_cvt_pk_bf16_f32 v{a+j}, v{a+2*j}, v{a+2*j+1}", [vr(a + 2 * j, 2)], [vr(a + j)]))
    g.append(I(f"buffer_store_dwordx2 {vr(a,2)}, v{vS2}, s[12:15], {soff[0]} offen {o['stf2']}".rstrip(), "store", rd=[vr(a, 2), vr(vS2)]))
    if init:
        g.append(bias_init(rb, 8))
    gs.append(g)
    if o["nostore"]:
        gs = [[i for i in g if i.kind != "store"] for g in gs]
    return gs

def xdma(o, m0base, soff):
    g = []
    for s in range(9):
        if s == 0:
            g.append(salu(f"s_mov_b32 m0, {m0base}"))
        else:
            g.append(salu("s_add_u32 m0, m0, 896"))
        g.append(I(f"buffer_load_dwordx4 v{vDma}, s[8:11], {soff} offen offset:{s*128} {o['xnt']} lds", "dma", rd=[vr(vDma)]))
    return g

def spin(tag, ctr, target):
    return f"""    v_readfirstlane_b32 s30, v0
    s_mov_b32 s31, {SPIN}
    s_cmp_ge_u32 s30, {target}
    s_cbranch_scc0 {tag}_spin
{tag}_ok:"""

def spin_out(tag, ctr, target):
    return f"""{tag}_spin:
    s_sleep 2
    buffer_load_dword v0, off, s[68:71], 0 offset:{ctr} sc1
    s_sub_u32 s31, s31, 1
    s_cbranch_scc1 M_end
    s_waitcnt vmcnt(0)
    v_readfirstlane_b32 s30, v0
    s_nop 0
    s_cmp_ge_u32 s30, {target}
    s_cbranch_scc0 {tag}_spin
    s_branch {tag}_ok"""

def gen_main(o):
    L = []
    A = L.append
    bstride = 256 * SLOT if o["inter"] else SLOT
    wgmul = SLOT if o["inter"] else 8 * SLOT
    tord = o["tord"]
    A(f""".p2align 8
.type {NAME}_kernel,@function
{NAME}_kernel:
    s_cmp_ge_u32 s2, 256
    s_cbranch_scc1 M_end
{stamp(o, True)}
    s_load_dwordx8 s[72:79], s[0:1], 0        ; x w b out
    s_load_dwordx4 s[80:83], s[0:1], 32
    v_lshrrev_b32 v20, 6, v0
    v_and_b32 v12, 63, v0                     ; lane
    v_readfirstlane_b32 s20, v20              ; wave
    v_lshrrev_b32 v13, 4, v12                 ; q
    v_and_b32 v14, 15, v12                    ; m
    v_lshlrev_b32 v{vL16}, 4, v12
    v_lshlrev_b32 v{vL8}, 3, v12
    s_mov_b32 s6, {576*576*2}
    s_mov_b32 s7, 0x20000
    s_mov_b32 s18, {WS_USED}
    s_mov_b32 s19, 0x20000
    s_mov_b32 s70, 256
    s_mov_b32 s71, 0x20000
    s_cmp_lt_u32 s2, {NF}
    s_cbranch_scc1 F_task
    s_cmp_lt_u32 s2, {NF+NC}
    s_cbranch_scc1 C_task
    s_mov_b32 s41, {o['nA']}
{stamp(o)}
{stamp(o)}
M_x:
    ; x DMA lane offset: (tid/8)*1152 + ((tid%8) ^ ((tid/16)%8))*16
    v_lshrrev_b32 v22, 3, v0
    v_mul_u32_u24 v22, 1152, v22
    v_lshrrev_b32 v23, 4, v0
    v_xor_b32 v23, v23, v0
    v_and_b32 v23, 7, v23
    v_lshl_add_u32 v{vDma}, v23, 4, v22
    s_mov_b32 s10, {XB}
    s_mov_b32 s11, 0x20000
    s_mov_b32 s86, 1152
    s_mov_b32 s87, 0x20000
    s_mul_i32 s22, s2, {wgmul}
    s_mul_i32 s26, s20, 9216
    s_mov_b32 s24, s22
    s_mov_b32 s42, s26
    s_lshl_b32 s28, s20, 8
    s_lshl_b32 s30, s20, 5
    v_lshlrev_b32 v25, 4, v13
    v_lshlrev_b32 v26, 3, v13
    s_mov_b32 s21, 0
    s_waitcnt lgkmcnt(0)
    s_mov_b32 s8, s72
    s_mov_b32 s9, s73
    s_mov_b32 s84, s76
    s_mov_b32 s85, s77
    s_mov_b32 s68, s80
    s_mov_b32 s69, s81""")
    for u in range(4):
        A(f"    buffer_load_dwordx4 {vr(vBB+4*u,4)}, v25, s[84:87], s28 offen offset:{u*64}")
    A(f"    buffer_load_dwordx2 {vr(vBB+16,2)}, v26, s[84:87], s30 offen offset:1024")
    A(f"""M_xl:
    s_add_u32 s21, s21, 1
    s_cmp_lt_u32 s21, s41
    s_cbranch_scc1 M_xn
    buffer_load_dword v0, off, s[68:71], 0 offset:{FLAG_F} sc1
M_xn:""")
    A(text(finalize(xdma(o, "s42", "s22"))))
    A(f"""    s_add_u32 s22, s22, {bstride}
    s_add_u32 s42, s42, {SLOT}
    s_cmp_lt_u32 s21, s41
    s_cbranch_scc1 M_xl
    s_mov_b32 s12, s78
    s_mov_b32 s13, s79
    s_mov_b32 s14, {XB}
    s_mov_b32 s15, 0x20000
    s_mov_b32 s16, s82
    s_mov_b32 s17, s83
    s_mul_i32 s29, s20, {LTABW}
    s_add_u32 s29, s29, {LTAB}
    v_lshrrev_b32 v24, 1, v14                 ; f(m)
    v_and_b32 v27, 7, v14
    v_lshlrev_b32 v22, 7, v27
    v_lshl_or_b32 v{vXor}, v24, 4, v22        ; (f<<4) | (m%8)<<7
    v_lshrrev_b32 v23, 3, v14
    v_mul_u32_u24 v{vRow}, 9216, v23
    v_xad_u32 v{vB0}, v25, v{vXor}, v{vRow}
    v_xor_b32 v{vB1}, 64, v{vB0}
    v_add_u32 v{vTQ}, s29, v25
    v_add_u32 v{vTA}, s29, v{vL16}
    v_mul_u32_u24 v24, 1152, v27
    v_lshl_add_u32 v24, v23, 6, v24
    v_add3_u32 v{vS4}, v24, v25, s28          ; (m%8)*1152 + (m/8)*64 + q*16 + w*256
    v_mul_u32_u24 v24, 1152, v14
    s_add_u32 s30, s30, 1024
    v_add3_u32 v{vS2}, v24, v26, s30
    v_add_u32 v{vQ8}, 512, v26
    v_mov_b32 v{vCI}, 0xeeee4444
    s_mov_b32 vcc_lo, 0xff00ff00
    s_mov_b32 vcc_hi, 0xff00ff00
    s_add_u32 s59, s24, 9216
    s_mul_i32 s43, s20, {81*1024}
    s_mul_i32 s53, s20, {21*512}
    s_add_u32 s53, s53, {IDX}
    s_mul_i32 s67, s20, {TABW}
    s_add_u32 s67, s67, {TAB}
{stamp(o)}
{"    s_waitcnt vmcnt(10)" if o["diag"] else ""}
{stamp(o)}
    s_waitcnt vmcnt(9)""")
    for j in range(18):
        A(f"    v_lshlrev_b32 v{vACC[0]+2*j}, 16, v{vBB+j}\n    v_and_b32 v{vACC[0]+2*j+1}, 0xffff0000, v{vBB+j}")
    A("    s_mov_b32 exec_lo, 0x00010001\n    s_mov_b32 exec_hi, 0x00010001")
    for t in range(9):
        A(f"    ds_write_b128 v{vTQ}, {vr(vACC[0]+4*t,4)} offset:{L_BIAS+t*64}")
    A("    s_mov_b64 exec, -1")
    A(stamp(o))
    A(spin("M_pf", FLAG_F, 1))
    A(stamp(o))

    lag, eC, cper = o["lag"], o["eC"], o["cper"]
    def wload(p):
        g = []
        if p % 4 == 0:
            r = p // 4
            if r and r % 8 == 0:
                g.append(salu("s_add_u32 s53, s53, 4096"))
            g.append(I(f"buffer_load_dwordx2 {vr(vIDX+2*r,2)}, v{vL8}, s[16:19], s53 offen offset:{(r%8)*512} {o['wsc']}", "load", rd=[vr(vL8)], wr=[vr(vIDX + 2 * r, 2)]))
            if p:
                g.append(salu("s_add_u32 s43, s43, 4096"))
        g.append(I(f"buffer_load_dwordx4 {wfrag(p)}, v{vL16}, s[16:19], s43 offen offset:{(p%4)*1024} {o['wsc']}", "load", rd=[vr(vL16)], wr=[wfrag(p)]))
        return g
    def pbuf(rb, s):
        return (vBB, vB4)[s & 1] if rb == 0 else (vBB + 16, vBB + 8)[s & 1]
    seq = []
    for p in range(lag):
        seq += wload(p)
    seq += [bias_init(1, t) for t in range(9)]
    bar = I("s_barrier", "other", rd=[wfrag(0)])
    seq.append(bar)
    seq += bread_to(0, 0, pbuf(0, 0)) + bread_to(1, 0, pbuf(1, 0))
    e_tab = eC + lag + 1
    e_cnt = e_tab + lag + 1
    e_cor = e_cnt + 2
    assert e_cor + 9 * cper <= 81, e_cor
    extra = {e: [] for e in range(82)}
    extra[eC].append(I(f"buffer_load_dword v0, off, s[68:71], 0 offset:{FLAG_C} sc1", "load", wr=["v0"]))
    g = [I(spin("M_pc", FLAG_C, 1).strip(), "other", rd=["v0"]), salu("s_mov_b32 m0, s29")]
    for j in range(10):
        if j % 4 == 0 and j:
            g += [salu("s_add_u32 s67, s67, 4096"), salu("s_add_u32 m0, m0, 4096")]
        if j == 9:
            g.append(salu("s_mov_b32 exec_hi, 0x7f"))
        g.append(I(f"buffer_load_dwordx4 v{vL16}, s[16:19], s67 offen offset:{(j%4)*1024} sc1 lds", "dma", rd=[vr(vL16)], wr=[f"@tab{j}"]))
    g.append(salu("s_mov_b32 exec_hi, -1"))
    extra[e_tab] += g
    c0 = I(f"v_mov_b32 v0, s29", "valu", wr=["v0"])
    c1 = ds_read("ds_read_b128", vr(vG, 4), "v0", f"offset:{L_CNT}"); c1.rd |= regs("@tab9")
    extra[e_cnt] += [c0, c1, ds_read("ds_read_b128", vr(vG + 4, 4), "v0", f"offset:{L_CNT+16}"), ds_read("ds_read_b32", vr(vA), "v0", f"offset:{L_CNT+32}"), tread(tord[0])]
    extra[e_cnt + 1] += [valu(f"v_or3_b32 v0, v{vG}, v{vG+1}, v{vG+2}", [vr(vG, 3)], ["v0"]),
                         valu(f"v_or3_b32 v0, v0, v{vG+3}, v{vG+4}", [vr(vG + 3, 2)], ["v0"]),
                         valu(f"v_or3_b32 v0, v0, v{vG+5}, v{vG+6}", [vr(vG + 5, 2)], ["v0"]),
                         valu(f"v_or3_b32 v0, v0, v{vG+7}, v{vA}", [vr(vG + 7), vr(vA)], ["v0"]),
                         I("s_nop 0\n    v_readfirstlane_b32 s27, v0\n    s_nop 0\n    s_cmp_lg_u32 s27, 0\n    s_cbranch_scc1 M_pool\nM_poolr:", "other")]
    for k in range(9):
        e = e_cor + k * cper
        extra[e] += [xad(0), xad(1), gather(0), gather(1), aread(tord[k])]
        extra[e + 1] += [xad(2), xad(3), gather(2), gather(3)] + ([tread(tord[k + 1])] if k < 8 else [])
        extra[e + cper - 1] += [csmf(0, tord[k]), csmf(1, tord[k])]
    for e in range(81):
        s, t = divmod(e, 9)
        if e + lag < 81:
            seq += wload(e + lag)
        if t == 1 and s < 8:
            seq += bread_to(0, s + 1, pbuf(0, s + 1))
        if t == 2 and s < 8:
            seq += bread_to(1, s + 1, pbuf(1, s + 1))
        seq.append(smf(0, s, t, pbuf(0, s)))
        if s < 7:
            seq.append(smf(1, s, t, pbuf(1, s)))
        seq += extra[e]
    if o["diag"]:
        seq.append(I(stamp(o).strip(), "lgkm0"))
    seq.append(I(f"""s_cmp_lt_u32 s21, 3
    s_cbranch_scc1 M_xlate
M_xlater:
    s_mov_b32 s21, 0
    s_cmp_lg_u32 s27, 0
    s_cbranch_scc1 M_slow
M_slowr0:""", "other"))
    seq += sum(epilogue(0, ("s24", "s59"), o), [])
    seq += [salu("s_mov_b32 s21, 1"), salu("s_mov_b32 s28, s26"), salu(f"s_mov_b32 s25, {SLOT}")]
    seq += [valu(f"v_add_u32 v{r}, {SLOT}, v{r}", [vr(r)], [vr(r)]) for r in (vRow, vB0, vB1)]
    seq.append(I("s_waitcnt vmcnt(14)", "wait"))
    A(text(finalize(seq, vm=True)))

    order = [16, 17] + list(range(16))
    b0, per = o["b0"], o["per"]
    stream = []
    pos = {}
    cpos = {}
    for k in range(162):
        t, r = divmod(k - b0, per)
        pos[k] = len(stream)
        stream.append(main_smf(order[k // 9], k % 9))
        if k >= b0:
            if r == per - 2 and t < 9:
                stream.append(csmf(0, tord[t]))
            if r == per - 1 and t < 9:
                cpos[t] = len(stream)
                stream.append(csmf(1, tord[t]))
    gp = Gaps(len(stream) + 1)
    for j, sig in enumerate(order):
        if j:
            gp.chain(bread((sig + 2) % 18), pos[9 * j - 1], step=1)
    k = pos[99] - 1
    gp.nv[k] += [salu("s_cmp_lg_u32 s27, 0"), I("s_cbranch_scc1 M_slow", "other"), I("M_slowr:", "label")]
    gp.put(tread(tord[0]), 4)
    for t in range(9):
        gp.reserve(cpos[t] - 3)
        k = pos[b0 - 1] if t == 0 else cpos[t - 1] - 2
        kg = pos[b0] if t == 0 else cpos[t - 1]
        for j in range(4):
            k = gp.put(xad(j), k) + 1
            kg = gp.put(gather(j), max(kg, k), 2) + o["gstep"]
        if t < 8:
            kg = gp.put(tread(tord[t + 1]), max(kg, k), 2)
        gp.put(aread(tord[t]), kg, 2)
    for u, g in enumerate(epilogue(1, ("s23", "s58"), o)):
        gp.chain(g, pos[o["e1"][u]], 3)
    for u, g in enumerate(epilogue(0, ("s24", "s59"), o)):
        gp.chain(g, pos[o["e0"][u]], 3)
    d = xdma(o, "s28", "s22")
    for j in range(9):
        gp.chain(d[2 * j:2 * j + 2], pos[o["dma"][j]], 2, step=1)
    book = [salu("s_add_u32 s21, s21, 1"),
            salu(f"s_add_u32 s28, s25, s26"),
            salu(f"s_add_u32 s30, s25, {SLOT}"),
            salu(f"s_cmp_eq_u32 s30, {NSLOT*SLOT}"),
            salu(f"s_cselect_b32 s30, 0, s30"),
            salu(f"s_sub_u32 s31, s30, s25"),
            salu(f"s_mov_b32 s25, s30"),
            salu(f"s_add_u32 s22, s22, {bstride}"),
            salu("s_cmp_gt_u32 s21, 5"),
            salu(f"s_cselect_b32 s10, 0, {XB}")]
    kb = gp.chain(book, pos[o["book"]], 3)
    k = gp.chain([valu(f"v_add_u32 v{r}, s31, v{r}", [vr(r)], [vr(r)]) for r in (vRow, vB0, vB1)], max(kb + 1, pos[155]))
    assert k < len(stream)
    body = []
    for k, m in enumerate(stream):
        body.append(m)
        body += gp.gap(k)
    assert not gp.gap(len(stream))
    for r in (vRow, vB0, vB1):
        w = [j for j, i in enumerate(body) if ("v", r) in i.wr]
        u = [j for j, i in enumerate(body) if ("v", r) in i.rd]
        assert len(w) == 1 and max(u) == w[0], r
    for rb in range(2):
        for t in range(9):
            R = regs(vr(vACC[rb] + 4 * t, 4))
            ev = "".join("I" if i.kind == "ds" else "M" if i.kind == "mfma" else "E" for i in body if (i.rd | i.wr) & R)
            ev = ev[ev.index("I"):] + ev[:ev.index("I")]
            assert re.fullmatch("IM{10}E+", ev), (rb, t, ev)
    sl = [j for j, i in enumerate(body) if "M_slowr" in i.text][0]
    assert all(j < sl for j, i in enumerate(body) if i.kind == "ds" and i.wr & regs(vr(vACC[1], 36)))
    assert all(j > sl for j, i in enumerate(body) if i.kind == "valu" and i.rd & regs(vr(vACC[0], 36)))
    lastdma = max(j for j, i in enumerate(body) if i.kind == "dma")
    assert lastdma < body.index(book[0]) and sl < body.index(book[0])
    vm = [i.kind for i in body if i.kind in ("dma", "store")]
    last = max(j for j, kd_ in enumerate(vm) if kd_ == "dma")
    nwait = len(vm) - 1 - last + len(vm)
    assert len(vm) - 1 - last <= 5
    seq = []
    seq.append(I("M_top:", "label"))
    if o["diag"]:
        seq.append(I(stamp(o).strip(), "other"))
    seq.append(salu(f"s_add_u32 s23, s24, 18432"))
    seq.append(salu(f"s_add_u32 s58, s24, 27648"))
    seq.append(salu(f"s_add_u32 s24, s24, {bstride}"))
    seq.append(salu(f"s_add_u32 s59, s24, 9216"))
    seq.append(I(f"s_waitcnt vmcnt({nwait}) lgkmcnt(0)", "lgkm0"))
    seq.append(I("s_barrier", "other"))
    seq += bread(0)
    seq += body
    seq.append(salu("s_cmp_lt_u32 s21, 8"))
    seq.append(I("s_cbranch_scc1 M_top", "other"))
    seq.append(salu(f"s_add_u32 s23, s24, 18432"))
    seq.append(salu(f"s_add_u32 s58, s24, 27648"))
    for sig in (16, 17):
        for t in range(9):
            seq.append(main_smf(sig, t))
    seq += sum(epilogue(1, ("s23", "s58"), o, init=False), [])
    A(text(finalize(seq)))
    A(stamp(o))
    A(stamp_out(o))
    A("M_end:\n    s_endpgm")
    A(spin_out("M_pf", FLAG_F, 1))
    A(spin_out("M_pc", FLAG_C, 1))
    A("M_xlate:")
    A(text(finalize(xdma(o, "s42", "s22"))))
    A(f"""    s_add_u32 s22, s22, {bstride}
    s_add_u32 s42, s42, {SLOT}
    s_add_u32 s21, s21, 1
    s_cmp_lt_u32 s21, 3
    s_cbranch_scc1 M_xlate
    s_branch M_xlater""")
    A("M_pool:")
    for t in range(9):
        A(f"    v_readfirstlane_b32 s{32+t}, v{vG+t if t < 8 else vA}")
    A(f"""    s_mov_b32 s27, 0
    s_add_u32 s54, s29, {L_POOL}
    s_mul_i32 s55, s20, {9*16*544}
    s_add_u32 s55, s55, {OV}
    s_mov_b32 exec_hi, 3""")
    for t in range(9):
        A(f"""    s_min_u32 s{32+t}, s{32+t}, 16
    s_mov_b32 s{44+t}, s27
    s_mov_b32 s56, 0
M_pool{t}:
    s_cmp_lt_u32 s56, s{32+t}
    s_cbranch_scc0 M_poole{t}
    s_add_u32 s57, s27, s56
    s_cmp_lt_u32 s57, {NPOOL}
    s_cbranch_scc0 M_poole{t}
    s_mul_i32 s57, s57, 544
    s_add_u32 m0, s57, s54
    s_add_u32 s57, s56, {t*16}
    s_mul_i32 s57, s57, 544
    s_add_u32 s57, s57, s55
    buffer_load_dwordx4 v{vL16}, s[16:19], s57 offen sc1 lds
    s_add_u32 s56, s56, 1
    s_branch M_pool{t}
M_poole{t}:
    s_add_u32 s27, s27, s{32+t}""")
    A("    s_mov_b32 exec_hi, -1\n    s_branch M_poolr")
    A("M_slow:")
    T, Aa, G = vTs, vAs, vGs
    for t in range(9):
        A(f"""    s_mov_b32 s56, 0
M_sl{t}:
    s_cmp_lt_u32 s56, s{32+t}
    s_cbranch_scc0 M_sle{t}
    s_add_u32 s57, s{44+t}, s56
    s_cmp_lt_u32 s57, {NPOOL}
    s_cbranch_scc0 M_slg{t}
    s_mul_i32 s57, s57, 544
    s_add_u32 s57, s57, s54
    v_add_u32 v{vTMP}, s57, v{vQ8}
    v_add_u32 v{vTMP+1}, s57, v{vL8}
    ds_read_b64 {vr(T,2)}, v{vTMP}
    ds_read_b64 {vr(Aa,2)}, v{vTMP+1}
    s_waitcnt lgkmcnt(0)
    s_branch M_slc{t}
M_slg{t}:
    s_add_u32 s57, s56, {t*16}
    s_mul_i32 s57, s57, 544
    s_add_u32 s57, s57, s55
    buffer_load_dwordx2 {vr(T,2)}, v{vQ8}, s[16:19], s57 offen sc1
    buffer_load_dwordx2 {vr(Aa,2)}, v{vL8}, s[16:19], s57 offen sc1
    s_waitcnt vmcnt(0)
M_slc{t}:
    v_xad_u32 v{T}, v{T}, v{vXor}, v{vRow}
    v_xad_u32 v{T+1}, v{T+1}, v{vXor}, v{vRow}
    ds_read2st64_b32 {vr(G,2)}, v{T} offset0:0 offset1:72
    ds_read2st64_b32 {vr(G+2,2)}, v{T+1} offset0:0 offset1:72
    s_add_u32 s56, s56, 1
    s_nop 7
    s_waitcnt lgkmcnt(0)
    v_smfmac_f32_16x16x32_bf16 {vr(vACC[0]+4*t,4)}, {vr(Aa,2)}, {vr(G,4)}, v{vCI}
    v_smfmac_f32_16x16x32_bf16 {vr(vACC[1]+4*t,4)}, {vr(Aa,2)}, {vr(G,4)}, v{vCI} abid:2
    s_branch M_sl{t}
M_sle{t}:""")
    A("    s_nop 7\n    s_cmp_eq_u32 s21, 0\n    s_cbranch_scc1 M_slowr0\n    s_branch M_slowr")
    A(gen_ftask(o))
    A(gen_ctask(o))
    return "\n".join(L)

def gen(**kw):
    o = dict(DEF)
    o.update(kw)
    hdr = f"""; out = x @ prune_2of4(w) + b   (bf16, M=65536 K=576 N=576); generated by dev/gen2.py
; @launch grid=(256,1,1) block=(256,1,1) lds={LDS_BYTES}
.amdgcn_target "amdgcn-amd-amdhsa--gfx950"
.text
.globl {NAME}_kernel
"""
    kd = f"""
.section .rodata,"a"
.p2align 6
.amdhsa_kernel {NAME}_kernel
  .amdhsa_next_free_vgpr 512
  .amdhsa_next_free_sgpr 96
  .amdhsa_accum_offset 256
  .amdhsa_group_segment_fixed_size 0
  .amdhsa_kernarg_size 48
  .amdhsa_user_sgpr_count 2
  .amdhsa_user_sgpr_kernarg_segment_ptr 1
  .amdhsa_system_sgpr_workgroup_id_x 1
  .amdhsa_float_denorm_mode_32 3
.end_amdhsa_kernel
"""
    src = hdr + gen_main(o) + kd
    return "\n".join(l for l in src.split("\n") if l.strip()) + "\n"

if __name__ == "__main__":
    kw = {}
    out = f"/code/{NAME}.s"
    for a in sys.argv[1:]:
        if "=" in a:
            k, v = a.split("=", 1)
            assert k in DEF, k
            kw[k] = int(v) if v.lstrip("-").isdigit() else (eval(v) if v.startswith("[") else v)
        else:
            out = a
    open(out, "w").write(gen(**kw))
    print("wrote", out)
```

```python
import re

def regs(spec):
    m = re.fullmatch(r"([vas])\[(\d+):(\d+)\]", spec)
    if m:
        return {(m.group(1), i) for i in range(int(m.group(2)), int(m.group(3)) + 1)}
    m = re.fullmatch(r"([vas])(\d+)", spec)
    if m:
        return {(m.group(1), int(m.group(2)))}
    if spec.startswith("@"):
        return {("@", spec)}
    return set()

def vr(base, n=1, f="v"):
    return f"{f}{base}" if n == 1 else f"{f}[{base}:{base+n-1}]"

class I:
    def __init__(self, text, kind, rd=(), wr=()):
        self.text = text
        self.kind = kind
        self.rd = set().union(*[regs(r) for r in rd]) if rd else set()
        self.wr = set().union(*[regs(r) for r in wr]) if wr else set()

def smfmac(d, a, b, idx, abid, shape="16x16x64"):
    t = f"v_smfmac_f32_{shape}_bf16 {d}, {a}, {b}, {idx}" + (f" abid:{abid}" if abid else "")
    return I(t, "mfma", rd=[d, a, b, idx], wr=[d])

def valu(text, rd, wr):
    return I(text, "valu", rd=rd, wr=wr)

def ds_read(op, d, addr, suffix=""):
    return I(f"{op} {d}, {addr} {suffix}".rstrip(), "ds", rd=[addr], wr=[d])

def salu(text):
    return I(text, "salu")

def nslots(ins):
    m = re.fullmatch(r"s_nop (\d+)", ins.text)
    if m:
        return int(m.group(1)) + 1
    if ins.kind == "label":
        return 0
    return 1

def finalize(seq, mfma_wait=8, vm=False):
    out = []
    pend = []
    vpend = []
    for ins in seq:
        if ins.kind == "lgkm0":
            pend = []
            out.append(ins)
            continue
        touch = ins.rd | ins.wr
        if vm:
            need = -1
            for j, d in enumerate(vpend):
                if d & touch:
                    need = j
            if need >= 0:
                n = min(len(vpend) - 1 - need, 63)
                w = I(f"s_waitcnt vmcnt({n})", "wait")
                if ins.kind == "mfma" and out and out[-1].kind == "valu":
                    out.insert(len(out) - 1, w)
                else:
                    out.append(w)
                vpend = vpend[len(vpend) - n:] if n else []
            if ins.kind in ("load", "dma", "store"):
                vpend.append(ins.wr)
        need = -1
        for j, d in enumerate(pend):
            if d & touch:
                need = j
        if need >= 0:
            n = len(pend) - 1 - need
            n = min(n, 15)
            w = I(f"s_waitcnt lgkmcnt({n})", "wait")
            if ins.kind == "mfma" and len(out) > 1 and out[-1].kind == "valu" and out[-2].text.startswith("s_waitcnt lgkmcnt"):
                out[-2] = w
            elif ins.kind == "mfma" and out and out[-1].kind == "valu":
                out.insert(len(out) - 1, w)
            else:
                out.append(w)
            pend = pend[len(pend) - n:] if n else []
        req = 0
        dist = 0
        for prev in reversed(out):
            if dist >= 24:
                break
            r = 0
            if prev.kind == "mfma":
                if ins.kind == "mfma":
                    if prev.wr & (ins.rd - ins.wr):
                        r = mfma_wait
                    elif (prev.wr & ins.wr) and prev.wr != ins.wr:
                        r = mfma_wait
                    elif (prev.wr & ins.wr) and prev.text.split()[0] != ins.text.split()[0]:
                        r = mfma_wait
                elif ins.kind in ("valu", "ds", "dsw", "store", "load", "dma"):
                    if prev.wr & touch:
                        r = mfma_wait
            if prev.kind == "valu" and ins.kind == "mfma" and (prev.wr & ins.rd):
                r = max(r, 2)
            if prev.kind == "valu" and ins.kind in ("dma", "store", "load") and any(x[0] == "s" for x in prev.wr & ins.rd):
                r = max(r, 5)
            if prev.kind == "valu" and "readfirstlane" in ins.text and (prev.wr & ins.rd):
                r = max(r, 1)
            if prev.kind == "valu" and "_dpp" in ins.text and (prev.wr & ins.rd):
                r = max(r, 2)
            if prev.kind == "store" and ins.kind in ("valu", "ds", "load", "mfma") and (prev.rd & ins.wr):
                r = max(r, 2)
            if prev.kind == "salu" and prev.text.split()[1].startswith("m0") and ins.kind == "dma":
                r = max(r, 1)
            req = max(req, r - dist)
            dist += nslots(prev)
        while req > 0:
            k = min(req, 16)
            out.append(I(f"s_nop {k-1}", "nop"))
            req -= k
        out.append(ins)
        if ins.kind in ("ds", "dsw"):
            pend.append(ins.wr)
            assert len(pend) <= 15 or True
    return out

def text(seq):
    return "\n".join(("" if i.kind == "label" else "    ") + i.text for i in seq)


class Gaps:
    def __init__(self, n, cap=3):
        self.nv = [[] for _ in range(n)]
        self.v = [None] * n
        self.res = [0] * n
        self.cap = cap
    def load(self, k):
        return len([i for i in self.nv[k] if i.kind != "label"]) + (self.v[k] is not None) + self.res[k]
    def reserve(self, k):
        self.res[k] += 1
    def put(self, ins, k, cap=None):
        cap = cap or self.cap
        while self.load(k) >= cap or (ins.kind == "valu" and self.v[k] is not None):
            k += 1
        if ins.kind == "valu":
            self.v[k] = ins
        else:
            self.nv[k].append(ins)
        return k
    def chain(self, lst, k, cap=None, step=0):
        prev = None
        for ins in lst:
            if prev is not None:
                k += max(step, 1 if prev.kind == "valu" else 0)
            k = self.put(ins, k, cap)
            prev = ins
        return k
    def gap(self, k):
        return self.nv[k] + ([self.v[k]] if self.v[k] is not None else [])
```

```python
import sys
from asmlib import *

NAME = "standalone__structured_sparse_n_m__ragged"
XB = 16 * 4096 * 576 * 2
WSB = 301989888
WF = 0
IDX = 331776
TABW = 9856
TAB = IDX + 84 * 512
OV = TAB + 4 * TABW
CTR = (OV + 36 * 16 * 544 + 1023) // 1024 * 1024
WS_USED = CTR + 1024
NF, NC = 84, 36
CNT_F, CNT_C = 0, 64
FLAG_F, FLAG_C = 128, 192
SLOT = 36864
NSLOT = 3
LTAB = NSLOT * SLOT
L_T0, L_CNT, L_BIAS, L_POOL = 9216, 9792, 9840, 10416
NPOOL = 3
L_X = L_POOL + NPOOL * 544
LTABW = L_X + 1024
L_MB = LTAB + 4 * LTABW
LDS_BYTES = L_MB + 16
SPIN = 1 << 17

DEF = dict(xnt="nt", stf="sc1", stf2="", inter=1, diag=0, nA=3, nF=2, nC=2, lag=8, eC=14, cper=5,
           gstep=1, book=140, b0=24, per=12, tord=[8, 0, 1, 2, 3, 4, 5, 6, 7], e1=[10, 44, 24], e0=[106, 137, 102],
           dma=[10, 18, 38, 46, 68, 76, 84, 98, 108], nostore=0, hold=1, wsc="sc1", chain=1, win=7, wins=0, rstep=1, slowat=5, bar2=16, claim=[90, 150])

DIAG = 1 << 20
def stamp(o, first=False):
    if not o["diag"]:
        return ""
    L = []
    if first:
        L += ["    s_mov_b32 s62, 0", "    v_mov_b32 v255, 0"]
    L += ["    s_mov_b32 s63, m0", "    s_memrealtime s[60:61]", "    s_memtime s[64:65]", "    s_waitcnt lgkmcnt(0)", "    s_mov_b32 m0, s62", "    v_writelane_b32 v255, s60, m0",
          "    s_add_u32 m0, s62, 32", "    v_writelane_b32 v255, s64, m0", "    s_add_u32 s62, s62, 1", "    s_mov_b32 m0, s63"]
    return "\n".join(L)
def stamp_out(o):
    if not o["diag"]:
        return ""
    L = ["    s_mov_b64 exec, -1", "    s_waitcnt vmcnt(0)", stamp(o), f"    s_mov_b32 s18, {WSB}",
         "    s_lshl_b32 s60, s2, 2", "    s_add_u32 s60, s60, s20", "    s_lshl_b32 s60, s60, 8", f"    s_add_u32 s60, s60, {DIAG}",
         "    v_mbcnt_lo_u32_b32 v0, -1, 0", "    v_mbcnt_hi_u32_b32 v0, -1, v0", "    v_lshlrev_b32 v0, 2, v0",
         "    buffer_store_dword v255, v0, s[16:19], s60 offen"]
    return "\n".join(L)

def lut_tables():
    l64 = 0
    l32 = 0
    for nk in range(16):
        keep = [j for j in range(4) if not (nk >> j) & 1]
        e = 0
        if len(keep) >= 2:
            ia, ib = keep[-2], keep[-1]
            for j in keep[:-2]:
                assert j < 2
                e |= 1 << j
        elif len(keep) == 1:
            ib = keep[0]
            ia = (ib + 1) % 4
            if ia > ib:
                ia, ib = ib, ia
        else:
            ia, ib = 0, 1
        l64 |= (ia | ib << 2) << (4 * nk)
        l32 |= e << (2 * nk)
    return l64, l32

vB0, vB1, vXor, vRow, vDma, vS4, vS2, vTA, vTQ, vCI, vL16 = range(1, 12)
vIDX = 12
vL8, vQ8 = 54, 55
vWF = 56
vACC = (124, 160)
vBB = 196
vT, vA, vG = 236, 240, 244
vTs, vAs, vGs = vA, vA + 2, vG
vTMP = vG + 4
vXw, vAt = 252, 253
GROUPS = [(0, (0, 1, 2)), (0, (3, 4)), (0, (5, 6)), (0, (7, 8)), (1, (0, 1, 2)), (1, (3, 4)), (1, (5, 6)), (1, (7, 8))]
GBUF = {0: 0, 1: 1, 2: 2, 3: 3, 4: 4, 5: 0, 6: 1, 7: 3, 8: 4}

def notkept(a):
    return f"""    v_and_b32 v44, 0x7fff, v{a}
    v_and_b32 v45, 0x7fff, v{a+1}
    v_and_b32 v46, 0x7fff, v{a+2}
    v_and_b32 v47, 0x7fff, v{a+3}
    v_max_u32 v48, v44, v45
    v_min_u32 v49, v44, v45
    v_max_u32 v50, v46, v47
    v_min_u32 v51, v46, v47
    v_min_u32 v48, v48, v50
    v_max3_u32 v48, v48, v49, v51
    v_max_u32 v48, 1, v48
    v_sub_u32 v47, v47, v48
    v_sub_u32 v46, v46, v48
    v_sub_u32 v45, v45, v48
    v_sub_u32 v44, v44, v48
    v_lshrrev_b32 v49, 31, v47
    v_alignbit_b32 v49, v49, v46, 31
    v_alignbit_b32 v49, v49, v45, 31
    v_alignbit_b32 v49, v49, v44, 31"""

def colcalc():
    return """    s_lshr_b32 s33, s31, 1
    s_lshl_b32 s33, s33, 5
    s_and_b32 s34, s31, 1
    s_lshl_b32 s34, s34, 2
    s_add_u32 s33, s33, s34
    s_lshl_b32 s34, s30, 7
    s_add_u32 s33, s33, s34                   ; 128w + 32u + 4hf
    s_lshl_b32 s34, s30, 4
    s_add_u32 s34, s34, 512
    s_cmp_lt_u32 s31, 8
    s_cselect_b32 s33, s33, s34
    s_cselect_b32 s34, 3, 2
    v_lshrrev_b32 v15, 2, v14
    v_lshlrev_b32 v15, s34, v15
    v_and_b32 v16, 3, v14
    v_add3_u32 v15, v15, v16, s33
    v_lshlrev_b32 v15, 1, v15"""

def signal(o, tag, ctr, flag, n):
    return f"""    s_waitcnt vmcnt(0)
{stamp(o)}
    s_barrier
    s_cmp_lg_u32 s20, 0
    s_cbranch_scc1 {tag}_done
    v_mov_b32 v16, 1
    v_mov_b32 v17, 1
    s_mov_b64 exec, 1
    buffer_atomic_add v16, off, s[68:71], 0 offset:{ctr} sc0 sc1
    s_waitcnt vmcnt(0)
    v_cmp_eq_u32 vcc, {n-1}, v16
    s_and_b64 exec, exec, vcc
    s_cbranch_execz {tag}_nf
    buffer_store_dword v17, off, s[68:71], 0 offset:{flag} sc1
{tag}_nf:
    s_mov_b64 exec, -1
{tag}_done:
{"    s_barrier" if o["hold"] else ""}
    s_branch M_x"""

def role_sub(o, r):
    n = [o["nF"], o["nC"], o["nA"]]
    cnt = [NF, NC, 256 - NF - NC]
    return SLOT * sum(cnt[j] for j in range(r) if n[j] < 3) if n[r] == 3 else 0

def n_static(o):
    n = [o["nF"], o["nC"], o["nA"]]
    cnt = [NF, NC, 256 - NF - NC]
    return 768 + sum(c for c, k in zip(cnt, n) if k == 3)

def gen_ftask(o):
    L = []
    A = L.append
    l64, l32 = lut_tables()
    A(f"""F_task:
    s_mul_i32 s30, s2, 49
    s_lshr_b32 s30, s30, 10                   ; w = wg/21
    s_mul_i32 s31, s30, 21
    s_sub_u32 s35, s2, s31
    s_lshl_b32 s35, s35, 2
    s_add_u32 s35, s35, s20                   ; p
    s_min_u32 s35, s35, 80
    s_mul_i32 s32, s35, 57
    s_lshr_b32 s32, s32, 9                    ; s
    s_mul_i32 s31, s32, 9
    s_sub_u32 s31, s35, s31                   ; t
{colcalc()}
    v_mul_u32_u24 v16, {16*1152}, v13
    v_add_u32 v15, v15, v16
    s_mul_i32 s36, s32, {64*1152}
    s_add_u32 s37, s36, 4608
    s_add_u32 s38, s36, 9216
    s_add_u32 s39, s36, 13824
    s_waitcnt lgkmcnt(0)
    s_mov_b32 s4, s74
    s_mov_b32 s5, s75""")
    for j in range(16):
        A(f"    buffer_load_ushort v{16+j}, v15, s[4:7], s{36+j//4} offen offset:{(j%4)*1152}")
    A(f"""    s_mov_b32 s16, s82
    s_mov_b32 s17, s83
    s_mov_b32 s68, s80
    s_mov_b32 s69, s81
    s_mov_b32 s36, {l64 & 0xffffffff}
    s_mov_b32 s37, {l64 >> 32}
    s_mov_b32 s38, 0x0202
    v_mov_b32 v41, 0x01000100
    v_mov_b32 v40, 0
    s_mul_i32 s39, s30, 81
    s_add_u32 s39, s39, s35
    s_lshl_b32 s39, s39, 10
    s_lshl_b32 s40, s2, 9
    s_add_u32 s40, s40, {IDX}
    s_lshl_b32 s33, s20, 1
    v_add_u32 v42, s33, v{vL8}
    s_mov_b32 s41, {o['nF']}
    s_mov_b32 s91, {role_sub(o, 0)}""")
    for g in range(4):
        a = 16 + 4 * g
        A(f"    s_waitcnt vmcnt({12 - 4*g})")
        A(notkept(a))
        A(f"""    v_lshlrev_b32 v50, 2, v49
    v_lshrrev_b64 v[52:53], v50, s[36:37]
    v_lshl_or_b32 v44, v{a+1}, 16, v{a}
    v_lshl_or_b32 v45, v{a+3}, 16, v{a+2}
    v_and_b32 v46, 3, v52
    v_bfe_u32 v47, v52, 2, 2
    v_and_b32 v52, 15, v52
    v_lshl_or_b32 v46, v47, 16, v46
    v_lshl_or_b32 v40, v52, {4*g}, v40
    v_mad_u32_u24 v46, v46, s38, v41
    v_perm_b32 v{32+g}, v45, v44, v46""")
    A(f"""    ds_write_b16 v42, v40
    buffer_store_dwordx4 v[32:35], v{vL16}, s[16:19], s39 offen sc1
    s_waitcnt lgkmcnt(0)
    s_barrier
    s_cmp_lg_u32 s20, 0
    s_cbranch_scc1 F_sig
    s_mov_b32 exec_hi, 0
    ds_read_b128 v[36:39], v{vL16}
    s_waitcnt lgkmcnt(0)
    buffer_store_dwordx4 v[36:39], v{vL16}, s[16:19], s40 offen sc1
    s_mov_b64 exec, -1
    s_cmp_lg_u32 s2, 0
    s_cbranch_scc1 F_sig
    v_mov_b32 v44, 0
    v_mov_b32 v45, 0
    v_mov_b32 v46, 0
    v_mov_b32 v47, 0
    s_mov_b32 s40, {CTR}
    buffer_store_dwordx4 v[44:47], v{vL16}, s[16:19], s40 offen sc1
F_sig:
{stamp(o)}
{signal(o, 'F', CNT_F, FLAG_F, NF)}""")
    return "\n".join(L)

def gen_ctask(o):
    FL, LI, TT = 9728, 10752, 11520
    L = []
    A = L.append
    l64, l32 = lut_tables()
    A(f"""C_task:
    s_sub_u32 s35, s2, {NF}                   ; tau
    s_mul_i32 s30, s35, 57
    s_lshr_b32 s30, s30, 9                    ; w
    s_mul_i32 s31, s30, 9
    s_sub_u32 s31, s35, s31                   ; t
{colcalc()}
    v_lshrrev_b32 v17, 4, v0                  ; 4*qa+g
    v_mul_u32_u24 v16, {4*1152}, v17
    v_add_u32 v15, v15, v16
    s_mov_b32 s36, 0
    s_waitcnt lgkmcnt(0)
    s_mov_b32 s4, s74
    s_mov_b32 s5, s75""")
    for r in range(9):
        for j in range(4):
            A(f"    buffer_load_ushort v{60+4*r+j}, v15, s[4:7], s36 offen offset:{j*1152}")
        if r < 8:
            A(f"    s_add_u32 s36, s36, {64*1152}")
    A(f"""    s_mov_b32 s16, s82
    s_mov_b32 s17, s83
    s_mov_b32 s68, s80
    s_mov_b32 s69, s81
    s_mov_b32 s41, {o['nC']}
    s_mov_b32 s91, {role_sub(o, 1)}
    v_lshlrev_b32 v18, 2, v0                  ; tid*4
    v_mov_b32 v19, 0
    ds_write_b32 v18, v19 offset:9216
    ds_write_b32 v18, v19 offset:{FL}
    v_mov_b32 v19, 144
    v_lshlrev_b32 v20, 1, v0
    v_and_b32 v20, 8, v20
    s_cmp_eq_u32 s20, 3
    s_cbranch_scc1 C_a
    ds_write_b32 v18, v19 offset:{LI}
    ds_write_b32 v18, v20 offset:{TT}
C_a:
    s_mov_b32 s37, {l32}
    s_mov_b32 s38, 0xffff
    v_lshlrev_b32 v17, 2, v17
    s_waitcnt lgkmcnt(0)
    s_barrier""")
    for r in range(9):
        a = 60 + 4 * r
        A(f"    s_waitcnt vmcnt({32 - 4*r})")
        A(notkept(a))
        A(f"""    v_lshlrev_b32 v50, 1, v49
    v_lshrrev_b32 v50, v50, s37
    v_lshl_or_b32 v44, v{a+1}, 16, v{a}
    v_and_b32 v46, 1, v50
    v_bfe_u32 v47, v50, 1, 1
    v_lshl_or_b32 v46, v47, 16, v46
    v_mul_u32_u24 v46, s38, v46
    v_and_b32 v44, v44, v46
    ds_write_b32 v18, v44 offset:{r*1024}
    ds_or_b32 v17, v44 offset:{FL + r*64}""")
    A(f"""    v_lshlrev_b32 v19, 2, v12                 ; lane*4
    s_waitcnt lgkmcnt(0)
    s_barrier
    ds_read_b32 v20, v19 offset:{FL}
    ds_read_b32 v21, v19 offset:{FL+256}
    ds_read_b32 v22, v19 offset:{FL+512}
    s_mov_b32 s56, 0x55555555
    s_mov_b32 s57, 0x55555555
    s_waitcnt lgkmcnt(0)
    v_cmp_ne_u32 s[44:45], 0, v20
    v_cmp_ne_u32 s[46:47], 0, v21
    v_cmp_ne_u32 s[48:49], 0, v22
    s_nop 3
    s_bcnt1_i32_b64 s36, s[44:45]
    s_bcnt1_i32_b64 s37, s[46:47]
    s_bcnt1_i32_b64 s38, s[48:49]
    s_add_u32 s37, s37, s36
    s_add_u32 s38, s38, s37                   ; total
    s_and_b64 s[50:51], s[44:45], s[56:57]
    s_bcnt1_i32_b64 s39, s[50:51]
    s_and_b64 s[50:51], s[46:47], s[56:57]
    s_bcnt1_i32_b64 s40, s[50:51]
    s_add_u32 s40, s40, s39
    s_cmp_eq_u32 s20, 0
    s_cselect_b32 s36, 0, s36
    s_cselect_b32 s39, 0, s39
    s_cselect_b64 s[44:45], s[44:45], s[46:47]
    s_cmp_ge_u32 s20, 2
    s_cselect_b32 s36, s37, s36
    s_cselect_b32 s39, s40, s39
    s_cselect_b64 s[44:45], s[48:49], s[44:45]
    s_cmp_eq_u32 s20, 3
    s_cselect_b64 s[44:45], 0, s[44:45]
    s_and_b64 s[50:51], s[44:45], s[56:57]
    v_mov_b32 v20, s36
    v_mbcnt_lo_u32_b32 v20, s44, v20
    v_mbcnt_hi_u32_b32 v20, s45, v20          ; rank
    v_mov_b32 v21, s39
    v_mbcnt_lo_u32_b32 v21, s50, v21
    v_mbcnt_hi_u32_b32 v21, s51, v21
    v_sub_u32 v22, v20, v21
    v_sub_u32 v22, 15, v22
    v_cndmask_b32 v21, v22, v21, s[56:57]
    v_sub_u32 v22, 15, v21
    v_lshrrev_b32 v23, 3, v21
    v_min_u32 v21, v21, v22                   ; p' (0..7)
    v_and_b32 v22, 1, v21
    v_lshl_or_b32 v24, v22, 1, v23            ; qb
    v_lshrrev_b32 v21, 1, v21                 ; jj
    v_lshl_or_b32 v25, v24, 2, v21            ; T index
    v_and_b32 v26, 2, v21
    v_or_b32 v26, v26, v22                    ; qa'
    v_and_b32 v21, 1, v21
    v_lshl_or_b32 v21, v23, 1, v21            ; g'
    v_lshl_or_b32 v26, v26, 2, v21
    v_cmp_gt_u32 vcc, 16, v20
    v_lshrrev_b32 v27, 4, v0
    v_and_b32 v28, 15, v0
    v_cndmask_b32 v25, v20, v25, vcc
    v_cndmask_b32 v26, v20, v26, vcc
    v_lshlrev_b32 v25, 2, v25
    v_lshlrev_b32 v26, 2, v26
    v_lshlrev_b32 v27, 10, v27
    v_lshl_or_b32 v27, v28, 3, v27
    s_mov_b64 exec, s[44:45]
    ds_write_b32 v26, v0 offset:{LI}
    ds_write_b32 v25, v27 offset:{TT}
    s_mov_b64 exec, -1
    s_add_u32 s38, s38, 7
    s_lshr_b32 s38, s38, 3
    s_max_u32 s38, s38, 2
    s_sub_u32 s38, s38, 2
    s_mul_i32 s36, s30, {TABW}
    s_add_u32 s36, s36, {TAB}
    v_lshlrev_b32 v20, 4, v13
    v_lshlrev_b32 v21, 2, v14
    s_waitcnt lgkmcnt(0)
    s_barrier
    s_cmp_eq_u32 s20, 0
    s_cbranch_scc0 C_ov
    ds_read_b128 v[24:27], v20 offset:{LI}
    ds_read_b128 v[32:35], v{vL16} offset:{TT}
    s_lshl_b32 s37, s31, 10
    s_add_u32 s37, s37, s36
    s_lshl_b32 s39, s31, 6
    s_add_u32 s39, s39, s36
    s_add_u32 s39, s39, {L_T0}
    s_lshl_b32 s40, s31, 2
    s_add_u32 s40, s40, s36
    s_add_u32 s40, s40, {L_CNT}
    s_waitcnt lgkmcnt(1)
    v_lshl_add_u32 v24, v24, 6, v21
    v_lshl_add_u32 v25, v25, 6, v21
    v_lshl_add_u32 v26, v26, 6, v21
    v_lshl_add_u32 v27, v27, 6, v21
    ds_read_b32 v28, v24
    ds_read_b32 v29, v25
    ds_read_b32 v30, v26
    ds_read_b32 v31, v27
    v_mov_b32 v22, s38
    s_waitcnt lgkmcnt(0)
    buffer_store_dwordx4 v[28:31], v{vL16}, s[16:19], s37 offen sc1
    s_mov_b64 exec, 15
    buffer_store_dwordx4 v[32:35], v{vL16}, s[16:19], s39 offen sc1
    s_mov_b64 exec, 1
    buffer_store_dword v22, off, s[16:19], s40 sc1
    s_mov_b64 exec, -1
    s_branch C_sig
C_ov:                                         ; waves 1..3: overflow half chunks c = wave-1, +3, ...
    s_sub_u32 s39, s20, 1
    v_lshlrev_b32 v20, 3, v13
C_ovl:
    s_cmp_lt_u32 s39, s38
    s_cbranch_scc0 C_sig
    s_lshl_b32 s40, s39, 5
    v_add_u32 v22, s40, v20
    v_add_u32 v23, s40, v{vL16}
    ds_read_b64 v[24:25], v22 offset:{LI+64}
    ds_read_b128 v[32:35], v23 offset:{TT+64}
    s_lshl_b32 s37, s35, 4
    s_add_u32 s37, s37, s39
    s_mul_i32 s37, s37, 544
    s_add_u32 s37, s37, {OV}
    s_waitcnt lgkmcnt(1)
    v_lshl_add_u32 v24, v24, 6, v21
    v_lshl_add_u32 v25, v25, 6, v21
    ds_read_b32 v28, v24
    ds_read_b32 v29, v25
    s_waitcnt lgkmcnt(0)
    buffer_store_dwordx2 v[28:29], v{vL8}, s[16:19], s37 offen sc1
    s_mov_b64 exec, 3
    buffer_store_dwordx4 v[32:35], v{vL16}, s[16:19], s37 offen offset:512 sc1
    s_mov_b64 exec, -1
    s_add_u32 s39, s39, 3
    s_branch C_ovl
C_sig:
{stamp(o)}
{signal(o, 'C', CNT_C, FLAG_C, NC)}""")
    return "\n".join(L)

def wfrag(p):
    return vr(4 * p, 4, "a") if p < 64 else vr(vWF + 4 * (p - 64), 4)

def smf(rb, s, t, buf):
    p = s * 9 + t
    return smfmac(vr(vACC[rb] + 4 * t, 4), wfrag(p), vr(buf, 8), vr(vIDX + p // 2), p & 1)

def group_smf(gi, chain=True):
    rb, ks = GROUPS[gi]
    if chain:
        return [smf(rb, s, t, vBB + 8 * GBUF[s]) for t in range(9) for s in ks]
    return [smf(rb, s, t, vBB + 8 * GBUF[s]) for s in ks for t in range(9)]

def bread_to(rb, s, b):
    off = rb * 18432 + s * 1024
    return [ds_read("ds_read_b128", vr(b, 4), vr(vB0), f"offset:{off}"),
            ds_read("ds_read_b128", vr(b + 4, 4), vr(vB1), f"offset:{off}")]

def group_reads(gi):
    rb, ks = GROUPS[gi]
    return sum([bread_to(rb, s, vBB + 8 * GBUF[s]) for s in ks], [])

def bias_init(rb, t):
    return ds_read("ds_read_b128", vr(vACC[rb] + 4 * t, 4), vr(vTQ), f"offset:{L_BIAS + t*64}")

def tread(t, tok=None):
    i = ds_read("ds_read_b128", vr(vT, 4), vr(vTQ), f"offset:{L_T0 + t*64}")
    if tok:
        i.rd |= regs(tok)
    return i

def aread(t):
    return ds_read("ds_read_b128", vr(vA, 4), vr(vTA), f"offset:{t*1024}")

def xad(j):
    return valu(f"v_xad_u32 v{vT+j}, v{vT+j}, v{vXor}, v{vRow}", [vr(vT + j), vr(vXor), vr(vRow)], [vr(vT + j)])

def gather(j):
    return ds_read("ds_read2st64_b32", vr(vG + 2 * j, 2), vr(vT + j), "offset0:0 offset1:72")

def csmf(rb, t):
    return smfmac(vr(vACC[rb] + 4 * t, 4), vr(vA, 4), vr(vG, 8), vr(vCI), rb)

def epilogue(rb, soff, o, init=True):
    gs = []
    for ln in range(2):
        g = []
        a = vACC[rb] + 16 * ln
        X, Y, Z = a, a + 8, a + 4
        for j in range(4):
            g.append(valu(f"v_cvt_pk_bf16_f32 v{X+j}, v{a+2*j}, v{a+2*j+1}", [vr(a + 2 * j, 2)], [vr(X + j)]))
        for j in range(4):
            g.append(valu(f"v_cvt_pk_bf16_f32 v{Y+j}, v{a+8+2*j}, v{a+8+2*j+1}", [vr(a + 8 + 2 * j, 2)], [vr(Y + j)]))
        if init:
            g.append(bias_init(rb, 4 * ln + 3))
        for j in range(4):
            g.append(valu(f"v_cndmask_b32_dpp v{Z+j}, v{X+j}, v{Y+j}, vcc row_ror:8 row_mask:0xf bank_mask:0xf", [vr(X + j), vr(Y + j)], [vr(Z + j)]))
        g.append(I(f"buffer_store_dwordx4 {vr(Z,4)}, v{vS4}, s[12:15], {soff[1]} offen offset:{ln*128} {o['stf']}".rstrip(), "store", rd=[vr(Z, 4), vr(vS4)]))
        for j in range(4):
            g.append(valu(f"v_mov_b32_dpp v{X+j}, v{Y+j} row_ror:8 row_mask:0xf bank_mask:0xc", [vr(X + j), vr(Y + j)], [vr(X + j)]))
        g.append(I(f"buffer_store_dwordx4 {vr(X,4)}, v{vS4}, s[12:15], {soff[0]} offen offset:{ln*128} {o['stf']}".rstrip(), "store", rd=[vr(X, 4), vr(vS4)]))
        if init:
            g += [bias_init(rb, 4 * ln + 1), bias_init(rb, 4 * ln + 2), bias_init(rb, 4 * ln)]
        gs.append(g)
    g = []
    a = vACC[rb] + 32
    for j in range(2):
        g.append(valu(f"v_cvt_pk_bf16_f32 v{a+j}, v{a+2*j}, v{a+2*j+1}", [vr(a + 2 * j, 2)], [vr(a + j)]))
    g.append(I(f"ds_write_b64 v{vXw}, {vr(a,2)} offset:{(1-rb)*2*LTABW}", "dsw", rd=[vr(a, 2), vr(vXw)]))
    if init:
        g.append(bias_init(rb, 8))
    gs.append(g)
    if o["nostore"]:
        gs = [[i for i in g if i.kind != "store"] for g in gs]
    return gs

def xch(o, soff):
    return [ds_read("ds_read_b128", vr(vG, 4), vr(vTA), f"offset:{L_X}"),
            I(f"buffer_store_dwordx4 {vr(vG,4)}, v{vS2}, s[12:15], {soff} offen {o['stf']}".rstrip(), "store", rd=[vr(vG, 4), vr(vS2)])]

def xdma(o, m0base, soff):
    g = []
    for s in range(9):
        if s == 0:
            g.append(salu(f"s_mov_b32 m0, {m0base}"))
        else:
            g.append(salu("s_add_u32 m0, m0, 896"))
        g.append(I(f"buffer_load_dwordx4 v{vDma}, s[8:11], {soff} offen offset:{s*128} {o['xnt']} lds", "dma", rd=[vr(vDma), soff]))
    return g

def spin(tag, ctr, target):
    return f"""    v_readfirstlane_b32 s30, v0
    s_mov_b32 s31, {SPIN}
    s_cmp_ge_u32 s30, {target}
    s_cbranch_scc0 {tag}_spin
{tag}_ok:"""

def spin_out(tag, ctr, target):
    return f"""{tag}_spin:
    s_sleep 2
    buffer_load_dword v0, off, s[68:71], 0 offset:{ctr} sc1
    s_sub_u32 s31, s31, 1
    s_cbranch_scc1 M_end
    s_waitcnt vmcnt(0)
    v_readfirstlane_b32 s30, v0
    s_nop 0
    s_cmp_ge_u32 s30, {target}
    s_cbranch_scc0 {tag}_spin
    s_branch {tag}_ok"""

def gen_main(o):
    L = []
    A = L.append
    bstride = 256 * SLOT if o["inter"] else SLOT
    wgmul = SLOT if o["inter"] else 8 * SLOT
    tord = o["tord"]
    A(f""".p2align 8
.type {NAME}_kernel,@function
{NAME}_kernel:
    s_cmp_ge_u32 s2, 256
    s_cbranch_scc1 M_end
{stamp(o, True)}
    s_load_dwordx8 s[72:79], s[0:1], 0        ; x w b out
    s_load_dwordx4 s[80:83], s[0:1], 32
    v_lshrrev_b32 v20, 6, v0
    v_and_b32 v12, 63, v0                     ; lane
    v_readfirstlane_b32 s20, v20              ; wave
    v_lshrrev_b32 v13, 4, v12                 ; q
    v_and_b32 v14, 15, v12                    ; m
    v_lshlrev_b32 v{vL16}, 4, v12
    v_lshlrev_b32 v{vL8}, 3, v12
    s_mov_b32 s6, {576*576*2}
    s_mov_b32 s7, 0x20000
    s_mov_b32 s18, {WS_USED}
    s_mov_b32 s19, 0x20000
    s_mov_b32 s70, 256
    s_mov_b32 s71, 0x20000
    s_cmp_lt_u32 s2, {NF}
    s_cbranch_scc1 F_task
    s_cmp_lt_u32 s2, {NF+NC}
    s_cbranch_scc1 C_task
    s_mov_b32 s41, {o['nA']}
    s_mov_b32 s91, {role_sub(o, 2)}
{stamp(o)}
{stamp(o)}
M_x:
    ; x DMA lane offset: (tid/8)*1152 + ((tid%8) ^ ((tid/16)%8))*16
    v_lshrrev_b32 v22, 3, v0
    v_mul_u32_u24 v22, 1152, v22
    v_lshrrev_b32 v23, 4, v0
    v_xor_b32 v23, v23, v0
    v_and_b32 v23, 7, v23
    v_lshl_add_u32 v{vDma}, v23, 4, v22
    s_mov_b32 s10, {XB}
    s_mov_b32 s11, 0x20000
    s_mov_b32 s86, 1152
    s_mov_b32 s87, 0x20000
    s_mul_i32 s22, s2, {wgmul}
    s_mul_i32 s26, s20, 9216
    s_mov_b32 s24, s22
    s_mov_b32 s42, s26
    s_lshl_b32 s28, s20, 8
    s_lshl_b32 s30, s20, 5
    v_lshlrev_b32 v25, 4, v13
    v_lshlrev_b32 v26, 3, v13
    s_mov_b32 s21, 0
    s_waitcnt lgkmcnt(0)
    s_mov_b32 s8, s72
    s_mov_b32 s9, s73
    s_mov_b32 s84, s76
    s_mov_b32 s85, s77
    s_mov_b32 s68, s80
    s_mov_b32 s69, s81""")
    for u in range(4):
        A(f"    buffer_load_dwordx4 {vr(vBB+4*u,4)}, v25, s[84:87], s28 offen offset:{u*64}")
    A(f"    buffer_load_dwordx2 {vr(vBB+16,2)}, v26, s[84:87], s30 offen offset:1024")
    A(f"""M_xl:
    s_add_u32 s21, s21, 1
    s_cmp_lt_u32 s21, s41
    s_cbranch_scc1 M_xn
    buffer_load_dword v0, off, s[68:71], 0 offset:{FLAG_F} sc1
M_xn:""")
    A(text(finalize(xdma(o, "s42", "s22"))))
    A(f"""    s_add_u32 s22, s22, {bstride}
    s_add_u32 s42, s42, {SLOT}
    s_cmp_lt_u32 s21, s41
    s_cbranch_scc1 M_xl
    s_mov_b32 s12, s78
    s_mov_b32 s13, s79
    s_mov_b32 s14, {XB}
    s_mov_b32 s15, 0x20000
    s_mov_b32 s16, s82
    s_mov_b32 s17, s83
    s_mul_i32 s29, s20, {LTABW}
    s_add_u32 s29, s29, {LTAB}
    v_lshrrev_b32 v24, 1, v14                 ; f(m)
    v_and_b32 v27, 7, v14
    v_lshlrev_b32 v22, 7, v27
    v_lshl_or_b32 v{vXor}, v24, 4, v22        ; (f<<4) | (m%8)<<7
    v_lshrrev_b32 v23, 3, v14
    v_mul_u32_u24 v{vRow}, 9216, v23
    v_xad_u32 v{vB0}, v25, v{vXor}, v{vRow}
    v_xor_b32 v{vB1}, 64, v{vB0}
    v_add_u32 v{vTQ}, s29, v25
    v_add_u32 v{vTA}, s29, v{vL16}
    v_mul_u32_u24 v24, 1152, v27
    v_lshl_add_u32 v24, v23, 6, v24
    v_add3_u32 v{vS4}, v24, v25, s28          ; (m%8)*1152 + (m/8)*64 + q*16 + w*256
    v_lshrrev_b32 v24, 3, v12
    v_xor_b32 v28, v24, v12
    v_and_b32 v28, 7, v28
    v_mul_u32_u24 v24, 1152, v24
    v_lshl_add_u32 v24, v28, 4, v24
    v_add_u32 v{vS2}, 1024, v24               ; (l/8)*1152 + 1024 + ((l%8)^(l/8))*16
    s_lshl_b32 s30, s20, 1
    v_lshrrev_b32 v24, 1, v13
    v_add_u32 v24, s30, v24
    v_xor_b32 v24, v24, v27
    v_lshl_add_u32 v24, v24, 4, v22
    v_and_b32 v28, 8, v26
    v_mul_u32_u24 v29, {LTABW}, v23
    v_add3_u32 v24, v24, v28, v29
    v_add_u32 v{vXw}, {LTAB+L_X}, v24
    s_cmp_eq_u32 s20, 0
    s_mov_b32 s31, {0x40000000 + L_MB + 8}
    s_cselect_b32 s30, {L_MB}, s31
    v_mov_b32 v{vAt}, s31
    v_writelane_b32 v{vAt}, s30, 0
    s_lshr_b32 s30, s2, 3
    s_and_b32 s30, s30, 3                     ; shard
    s_lshl_b32 s92, s30, 8
    s_add_u32 s92, s92, {CTR - L_MB}
    s_add_u32 s30, s30, {n_static(o)}
    s_mul_i32 s93, s30, {SLOT}
    s_mov_b32 s94, {4*SLOT}
    s_and_b32 s95, s20, 1
    s_mul_i32 s95, s95, 9216
    v_add_u32 v{vQ8}, 512, v26
    v_mov_b32 v{vCI}, 0xeeee4444
    s_mov_b32 vcc_lo, 0xff00ff00
    s_mov_b32 vcc_hi, 0xff00ff00
    s_add_u32 s59, s24, 9216
    s_mul_i32 s43, s20, {81*1024}
    s_mul_i32 s53, s20, {21*512}
    s_add_u32 s53, s53, {IDX}
    s_mul_i32 s67, s20, {TABW}
    s_add_u32 s67, s67, {TAB}
{stamp(o)}
{"    s_waitcnt vmcnt(10)" if o["diag"] else ""}
{stamp(o)}
    s_waitcnt vmcnt(9)""")
    for j in range(18):
        A(f"    v_lshlrev_b32 v{vACC[0]+2*j}, 16, v{vBB+j}\n    v_and_b32 v{vACC[0]+2*j+1}, 0xffff0000, v{vBB+j}")
    A("    s_mov_b32 exec_lo, 0x00010001\n    s_mov_b32 exec_hi, 0x00010001")
    for t in range(9):
        A(f"    ds_write_b128 v{vTQ}, {vr(vACC[0]+4*t,4)} offset:{L_BIAS+t*64}")
    A("    s_mov_b64 exec, -1")
    A(stamp(o))
    A(spin("M_pf", FLAG_F, 1))
    A(stamp(o))

    lag, eC, cper = o["lag"], o["eC"], o["cper"]
    def wload(p):
        g = []
        if p % 4 == 0:
            r = p // 4
            if r and r % 8 == 0:
                g.append(salu("s_add_u32 s53, s53, 4096"))
            g.append(I(f"buffer_load_dwordx2 {vr(vIDX+2*r,2)}, v{vL8}, s[16:19], s53 offen offset:{(r%8)*512} {o['wsc']}", "load", rd=[vr(vL8)], wr=[vr(vIDX + 2 * r, 2)]))
            if p:
                g.append(salu("s_add_u32 s43, s43, 4096"))
        g.append(I(f"buffer_load_dwordx4 {wfrag(p)}, v{vL16}, s[16:19], s43 offen offset:{(p%4)*1024} {o['wsc']}", "load", rd=[vr(vL16)], wr=[wfrag(p)]))
        return g
    def pbuf(rb, s):
        return vBB + 8 * ((0, 1)[s & 1] if rb == 0 else (4, 3)[s & 1])
    seq = []
    for p in range(lag):
        seq += wload(p)
    seq += [bias_init(1, t) for t in range(9)]
    bar = I("s_barrier", "other", rd=[wfrag(0)])
    seq.append(bar)
    seq += bread_to(0, 0, pbuf(0, 0)) + bread_to(1, 0, pbuf(1, 0))
    e_tab = eC + lag + 1
    e_cnt = e_tab + lag + 1
    e_cor = e_cnt + 2
    assert e_cor + 9 * cper <= 81, e_cor
    extra = {e: [] for e in range(82)}
    extra[eC].append(I(f"buffer_load_dword v0, off, s[68:71], 0 offset:{FLAG_C} sc1", "load", wr=["v0"]))
    g = [I(spin("M_pc", FLAG_C, 1).strip(), "other", rd=["v0"]), salu("s_mov_b32 m0, s29")]
    for j in range(10):
        if j % 4 == 0 and j:
            g += [salu("s_add_u32 s67, s67, 4096"), salu("s_add_u32 m0, m0, 4096")]
        if j == 9:
            g.append(salu("s_mov_b32 exec_hi, 0x7f"))
        g.append(I(f"buffer_load_dwordx4 v{vL16}, s[16:19], s67 offen offset:{(j%4)*1024} sc1 lds", "dma", rd=[vr(vL16)], wr=[f"@tab{j}"]))
    g.append(salu("s_mov_b32 exec_hi, -1"))
    extra[e_tab] += g
    c0 = I(f"v_mov_b32 v0, s29", "valu", wr=["v0"])
    c1 = ds_read("ds_read_b128", vr(vG, 4), "v0", f"offset:{L_CNT}"); c1.rd |= regs("@tab9")
    extra[e_cnt] += [c0, c1, ds_read("ds_read_b128", vr(vG + 4, 4), "v0", f"offset:{L_CNT+16}"), ds_read("ds_read_b32", vr(vA), "v0", f"offset:{L_CNT+32}"), tread(tord[0])]
    extra[e_cnt + 1] += [valu(f"v_or3_b32 v0, v{vG}, v{vG+1}, v{vG+2}", [vr(vG, 3)], ["v0"]),
                         valu(f"v_or3_b32 v0, v0, v{vG+3}, v{vG+4}", [vr(vG + 3, 2)], ["v0"]),
                         valu(f"v_or3_b32 v0, v0, v{vG+5}, v{vG+6}", [vr(vG + 5, 2)], ["v0"]),
                         valu(f"v_or3_b32 v0, v0, v{vG+7}, v{vA}", [vr(vG + 7), vr(vA)], ["v0"]),
                         I("s_nop 0\n    v_readfirstlane_b32 s27, v0\n    s_nop 0\n    s_cmp_lg_u32 s27, 0\n    s_cbranch_scc1 M_pool\nM_poolr:", "other")]
    for k in range(9):
        e = e_cor + k * cper
        extra[e] += [xad(0), xad(1), gather(0), gather(1), aread(tord[k])]
        extra[e + 1] += [xad(2), xad(3), gather(2), gather(3)] + ([tread(tord[k + 1])] if k < 8 else [])
        extra[e + cper - 1] += [csmf(0, tord[k]), csmf(1, tord[k])]
    for e in range(81):
        s, t = divmod(e, 9)
        if e + lag < 81:
            seq += wload(e + lag)
        if t == 1 and s < 8:
            seq += bread_to(0, s + 1, pbuf(0, s + 1))
        if t == 2 and s < 8:
            seq += bread_to(1, s + 1, pbuf(1, s + 1))
        seq.append(smf(0, s, t, pbuf(0, s)))
        if s < 7:
            seq.append(smf(1, s, t, pbuf(1, s)))
        seq += extra[e]
    if o["diag"]:
        seq.append(I(stamp(o).strip(), "lgkm0"))
    seq.append(I(f"""s_cmp_lt_u32 s21, 2
    s_cbranch_scc1 M_xlate
M_xlater:
    s_mov_b32 s21, 0
    s_cmp_lg_u32 s27, 0
    s_cbranch_scc1 M_slow
M_slowr0:""", "other"))
    seq += sum(epilogue(0, ("s24", "s59"), o), [])
    seq += [salu("s_mov_b32 s21, 1"), salu(f"s_mov_b32 s25, {SLOT}"),
            salu(f"s_add_u32 s90, s24, {bstride}"),
            salu(f"s_add_u32 s88, s90, {bstride}"),
            salu("s_sub_u32 s22, s22, s91"),
            salu("s_cmp_eq_u32 s41, 3"),
            salu(f"s_cselect_b32 s28, 0, {2*SLOT}"),
            salu("s_add_u32 s28, s28, s26"),
            salu("s_add_u32 s23, s24, 18432"),
            salu("s_cmp_lt_u32 s20, 2"),
            salu("s_cselect_b32 s66, s23, s24"),
            salu("s_add_u32 s66, s66, s95"),
            valu("v_mov_b32 v0, s22", [], ["v0"]),
            I(f"ds_write_b32 v{vAt}, v0", "dsw", rd=["v0", vr(vAt)]),
            valu(f"v_mov_b32 v0, {L_MB}", [], ["v0"])]
    seq += [valu(f"v_add_u32 v{r}, {SLOT}, v{r}", [vr(r)], [vr(r)]) for r in (vRow, vB0, vB1)]
    A(text(finalize(seq, vm=True)))

    gorder = [7, 0, 1, 2, 3, 4, 5, 6]
    mains = []
    gstart = []
    for gi in gorder:
        gstart.append(len(mains))
        mains += group_smf(gi, o["chain"])
    b0, per = o["b0"], o["per"]
    stream = []
    pos = {}
    cpos = {}
    nxt = 0
    for k in range(162):
        pos[k] = len(stream)
        stream.append(mains[k])
        if nxt < 9 and k >= b0 + per * (nxt + 1) - 1 and mains[k].wr != mains[k + 1].wr:
            stream.append(csmf(0, tord[nxt]))
            cpos[nxt] = len(stream)
            stream.append(csmf(1, tord[nxt]))
            nxt += 1
    gp = Gaps(len(stream) + 1)
    for j, gi in enumerate(gorder):
        r = group_reads((gi + 1) % 8)
        if j == 0:
            x = xch(o, "s66")
            top_reads = [ds_read("ds_read_b32", "v0", "v0"), x[0]]
            gp.chain(r, 0, step=1)
            bar2 = I("s_barrier", "other", rd=[vr(vG, 4), "v0"])
            gp.chain([valu("v_readfirstlane_b32 s22, v0", ["v0"], ["s22"]), salu(f"s_cmp_lt_u32 s22, {XB}"), salu(f"s_cselect_b32 s10, {XB}, 0")], 4)
        else:
            gp.chain(r, pos[gstart[j] - 1], step=o["rstep"])
    k = cpos[o["slowat"]]
    gp.nv[k] += [salu("s_cmp_lg_u32 s27, 0"), I("s_cbranch_scc1 M_slow", "other"), I("M_slowr:", "label")]
    gp.put(tread(tord[0]), 7)
    for t in range(9):
        gp.reserve(cpos[t] - 2)
        k = pos[b0 - 1] if t == 0 else cpos[t - 1] - 2
        kg = pos[b0] if t == 0 else cpos[t - 1]
        for j in range(4):
            k = gp.put(xad(j), k) + 1
            kg = gp.put(gather(j), max(kg, k), 2) + o["gstep"]
        if t < 8:
            kg = gp.put(tread(tord[t + 1]), max(kg, k), 2)
        gp.put(aread(tord[t]), kg, 2)
    def win(lst):
        out = []
        for i in lst:
            if i.kind in ("store", "dma") and o["win"]:
                out.append(I(f"s_waitcnt vmcnt({(o['win'] if i.kind == 'dma' else o['wins'] or o['win']) - 1})", "wait"))
            out.append(i)
        return out
    gp.chain(win(x[1:]), 6, 3)
    gp.put(bar2, o["bar2"])
    atom = I(f"buffer_atomic_add v0, v{vAt}, s[16:19], s92 offen sc0 sc1", "store", rd=["v0", vr(vAt)])
    gp.chain([valu("v_mov_b32 v0, 1", [], ["v0"])] + win([atom]), pos[o["claim"][0]], 3)
    awt = I("s_waitcnt vmcnt(0)", "wait")
    gp.chain([awt, valu("v_mul_u32_u24 v0, s94, v0", ["v0"], ["v0"]), valu("v_add_u32 v0, s93, v0", ["v0"], ["v0"]),
              valu(f"v_min_u32 v0, {XB}, v0", ["v0"], ["v0"]),
              I(f"ds_write_b32 v{vAt}, v0", "dsw", rd=["v0", vr(vAt)]), valu(f"v_mov_b32 v0, {L_MB}", [], ["v0"])], pos[o["claim"][1]], 3)
    for u, g in enumerate(epilogue(1, ("s23", "s58"), o)):
        gp.chain(win(g), pos[o["e1"][u]], 3)
    for u, g in enumerate(epilogue(0, ("s24", "s59"), o)):
        gp.chain(win(g), pos[o["e0"][u]], 3)
    d = xdma(o, "s28", "s22")
    for j in range(9):
        k = gp.put(d[2 * j], pos[o["dma"][j]], 2)
        gp.chain(win([d[2 * j + 1]]), k + 1, 3)
    book = [salu(f"s_add_u32 s28, s28, {SLOT}"),
            salu(f"s_cmp_ge_u32 s28, {NSLOT*SLOT}"),
            salu(f"s_cselect_b32 s28, s26, s28"),
            salu(f"s_add_u32 s30, s25, {SLOT}"),
            salu(f"s_cmp_eq_u32 s30, {NSLOT*SLOT}"),
            salu(f"s_cselect_b32 s30, 0, s30"),
            salu(f"s_sub_u32 s31, s30, s25"),
            salu(f"s_mov_b32 s25, s30"),
            salu("s_cmp_eq_u32 s41, 3"),
            salu("s_cselect_b32 s90, s88, s22"),
            salu("s_mov_b32 s88, s22"),
            salu("s_cmp_lt_u32 s20, 2"),
            salu("s_cselect_b32 s66, s23, s24"),
            salu("s_add_u32 s66, s66, s95")]
    kb = gp.chain(book, pos[o["book"]], 3)
    k = gp.chain([valu(f"v_add_u32 v{r}, s31, v{r}", [vr(r)], [vr(r)]) for r in (vRow, vB0, vB1)], max(kb + 1, pos[152]))
    assert k < len(stream)
    body = []
    for k, m in enumerate(stream):
        body.append(m)
        body += gp.gap(k)
    assert not gp.gap(len(stream))
    for r in (vRow, vB0, vB1):
        w = [j for j, i in enumerate(body) if ("v", r) in i.wr]
        u = [j for j, i in enumerate(body) if ("v", r) in i.rd]
        assert len(w) == 1 and max(u) == w[0], r
    for rb in range(2):
        for t in range(9):
            R = regs(vr(vACC[rb] + 4 * t, 4))
            ev = "".join("I" if i.kind == "ds" else "M" if i.kind == "mfma" else "E" for i in body if (i.rd | i.wr) & R)
            assert re.fullmatch("M{10}E+I" if rb == 0 else "MME+IM{8}", ev), (rb, t, ev)
    sl = [j for j, i in enumerate(body) if "M_slowr" in i.text][0]
    assert all(j < sl for j, i in enumerate(body) if i.kind == "ds" and i.wr & regs(vr(vACC[1], 36)))
    assert all(j > sl for j, i in enumerate(body) if i.kind == "valu" and i.rd & regs(vr(vACC[0], 36)))
    assert body[sl - 3].kind == "mfma" and ("v", vCI) in body[sl - 3].rd and "abid:1" in body[sl - 3].text
    lastdma = max(j for j, i in enumerate(body) if i.kind == "dma")
    assert lastdma < body.index(book[0]) and sl < body.index(book[0])
    assert all(j > body.index(bar2) for j, i in enumerate(body) if i.kind == "dsw")
    assert body.index(x[1]) < min(j for j, i in enumerate(body) if "read2st64" in i.text)
    for j, i in enumerate(body):
        if "cselect" in i.text or "s_cbranch_scc" in i.text:
            p = max(q for q in range(j) if body[q].kind == "salu" and "s_mov" not in body[q].text)
            assert body[p].text.startswith("s_cmp"), (i.text, body[p].text)
    firstdma = min(j for j, i in enumerate(body) if i.kind == "dma")
    assert [j for j, i in enumerate(body) if "s_cselect_b32 s10" in i.text][0] < firstdma
    isvm = lambda i: i.kind in ("dma", "store")
    awt.text = f"s_waitcnt vmcnt({sum(isvm(i) for i in body[body.index(atom) + 1:body.index(awt)])})"
    nstrict = sum(isvm(i) for i in body[lastdma + 1:])
    nloose = nstrict + sum(isvm(i) for i in body)
    assert nstrict <= 4
    seq = []
    seq.append(I("M_top:", "label"))
    if o["diag"]:
        seq.append(I(stamp(o).strip(), "other"))
    seq.append(salu(f"s_add_u32 s23, s24, 18432"))
    seq.append(salu(f"s_add_u32 s58, s24, 27648"))
    seq.append(salu(f"s_mov_b32 s24, s90"))
    seq.append(salu(f"s_add_u32 s59, s90, 9216"))
    seq.append(I(f"s_cmp_eq_u32 s41, 3\n    s_cbranch_scc1 M_top2\n    s_waitcnt vmcnt({nstrict})\nM_top2:", "other"))
    seq.append(I(f"s_waitcnt vmcnt({nloose}) lgkmcnt(0)", "lgkm0"))
    seq.append(I("s_barrier", "other"))
    seq += top_reads
    seq += body
    seq.append(salu(f"s_cmp_lt_u32 s90, {XB}"))
    seq.append(I("s_cbranch_scc1 M_top", "other"))
    seq.append(salu(f"s_add_u32 s23, s24, 18432"))
    seq.append(salu(f"s_add_u32 s58, s24, 27648"))
    seq.append(I("s_waitcnt lgkmcnt(0)", "lgkm0"))
    seq.append(I("s_barrier", "other"))
    x = xch(o, "s66")
    g7 = group_smf(7, True)
    g7 = g7[16:] + g7[:16]
    ep = epilogue(1, ("s23", "s58"), o, init=False)
    gt = Gaps(60)
    gt.chain([x[1], I("s_barrier", "other"), salu("s_add_u32 s66, s23, s95")], 4, 3)
    k = gt.chain(ep[2], 7, 3)
    x2 = xch(o, "s66")
    gt.chain([I("s_waitcnt lgkmcnt(0)", "lgkm0"), I("s_barrier", "other"), x2[0]], k + 3, 3)
    k = gt.chain(ep[0], 11, 3)
    gt.chain(ep[1], k + 1, 3)
    seq.append(x[0])
    for k in range(60):
        if k < 18:
            seq.append(g7[k])
        seq += gt.gap(k)
    seq.append(I("s_cmp_lt_u32 s20, 2\n    s_cbranch_scc0 M_fin", "other"))
    seq.append(x2[1])
    seq.append(I("M_fin:", "label"))
    A(text(finalize(seq)))
    A(stamp(o))
    A(stamp_out(o))
    A("M_end:\n    s_endpgm")
    A(spin_out("M_pf", FLAG_F, 1))
    A(spin_out("M_pc", FLAG_C, 1))
    A("M_xlate:")
    A(text(finalize(xdma(o, "s42", "s22"))))
    A(f"""    s_add_u32 s22, s22, {bstride}
    s_add_u32 s42, s42, {SLOT}
    s_branch M_xlater""")
    A("M_pool:")
    for t in range(9):
        A(f"    v_readfirstlane_b32 s{32+t}, v{vG+t if t < 8 else vA}")
    A(f"""    s_mov_b32 s27, 0
    s_add_u32 s54, s29, {L_POOL}
    s_mul_i32 s55, s20, {9*16*544}
    s_add_u32 s55, s55, {OV}
    s_mov_b32 exec_hi, 3""")
    for t in range(9):
        A(f"""    s_min_u32 s{32+t}, s{32+t}, 16
    s_mov_b32 s{44+t}, s27
    s_mov_b32 s56, 0
M_pool{t}:
    s_cmp_lt_u32 s56, s{32+t}
    s_cbranch_scc0 M_poole{t}
    s_add_u32 s57, s27, s56
    s_cmp_lt_u32 s57, {NPOOL}
    s_cbranch_scc0 M_poole{t}
    s_mul_i32 s57, s57, 544
    s_add_u32 m0, s57, s54
    s_add_u32 s57, s56, {t*16}
    s_mul_i32 s57, s57, 544
    s_add_u32 s57, s57, s55
    buffer_load_dwordx4 v{vL16}, s[16:19], s57 offen sc1 lds
    s_add_u32 s56, s56, 1
    s_branch M_pool{t}
M_poole{t}:
    s_add_u32 s27, s27, s{32+t}""")
    A("    s_mov_b32 exec_hi, -1\n    s_branch M_poolr")
    A("M_slow:")
    T, Aa, G = vTs, vAs, vGs
    for t in range(9):
        A(f"""    s_mov_b32 s56, 0
M_sl{t}:
    s_cmp_lt_u32 s56, s{32+t}
    s_cbranch_scc0 M_sle{t}
    s_add_u32 s57, s{44+t}, s56
    s_cmp_lt_u32 s57, {NPOOL}
    s_cbranch_scc0 M_slg{t}
    s_mul_i32 s57, s57, 544
    s_add_u32 s57, s57, s54
    v_add_u32 v{vTMP}, s57, v{vQ8}
    v_add_u32 v{vTMP+1}, s57, v{vL8}
    ds_read_b64 {vr(T,2)}, v{vTMP}
    ds_read_b64 {vr(Aa,2)}, v{vTMP+1}
    s_waitcnt lgkmcnt(0)
    s_branch M_slc{t}
M_slg{t}:
    s_add_u32 s57, s56, {t*16}
    s_mul_i32 s57, s57, 544
    s_add_u32 s57, s57, s55
    buffer_load_dwordx2 {vr(T,2)}, v{vQ8}, s[16:19], s57 offen sc1
    buffer_load_dwordx2 {vr(Aa,2)}, v{vL8}, s[16:19], s57 offen sc1
    s_waitcnt vmcnt(0)
M_slc{t}:
    v_xad_u32 v{T}, v{T}, v{vXor}, v{vRow}
    v_xad_u32 v{T+1}, v{T+1}, v{vXor}, v{vRow}
    ds_read2st64_b32 {vr(G,2)}, v{T} offset0:0 offset1:72
    ds_read2st64_b32 {vr(G+2,2)}, v{T+1} offset0:0 offset1:72
    s_add_u32 s56, s56, 1
    s_nop 7
    s_waitcnt lgkmcnt(0)
    v_smfmac_f32_16x16x32_bf16 {vr(vACC[0]+4*t,4)}, {vr(Aa,2)}, {vr(G,4)}, v{vCI}
    v_smfmac_f32_16x16x32_bf16 {vr(vACC[1]+4*t,4)}, {vr(Aa,2)}, {vr(G,4)}, v{vCI} abid:2
    s_branch M_sl{t}
M_sle{t}:""")
    A("    s_nop 7\n    s_cmp_eq_u32 s21, 0\n    s_cbranch_scc1 M_slowr0\n    s_branch M_slowr")
    A(gen_ftask(o))
    A(gen_ctask(o))
    return "\n".join(L)

def gen(**kw):
    o = dict(DEF)
    o.update(kw)
    hdr = f"""; out = x @ prune_2of4(w) + b   (bf16, M=65536 K=576 N=576); generated by dev/gen3.py
; @launch grid=(256,1,1) block=(256,1,1) lds={LDS_BYTES}
.amdgcn_target "amdgcn-amd-amdhsa--gfx950"
.text
.globl {NAME}_kernel
"""
    kd = f"""
.section .rodata,"a"
.p2align 6
.amdhsa_kernel {NAME}_kernel
  .amdhsa_next_free_vgpr 512
  .amdhsa_next_free_sgpr 100
  .amdhsa_accum_offset 256
  .amdhsa_group_segment_fixed_size 0
  .amdhsa_kernarg_size 48
  .amdhsa_user_sgpr_count 2
  .amdhsa_user_sgpr_kernarg_segment_ptr 1
  .amdhsa_system_sgpr_workgroup_id_x 1
  .amdhsa_float_denorm_mode_32 3
.end_amdhsa_kernel
"""
    src = hdr + gen_main(o) + kd
    return "\n".join(l for l in src.split("\n") if l.strip()) + "\n"

if __name__ == "__main__":
    kw = {}
    out = f"/code/{NAME}.s"
    for a in sys.argv[1:]:
        if "=" in a:
            k, v = a.split("=", 1)
            assert k in DEF, k
            kw[k] = int(v) if v.lstrip("-").isdigit() else (eval(v) if v.startswith("[") else v)
        else:
            out = a
    open(out, "w").write(gen(**kw))
    print("wrote", out)
```

```python
import sys
from asmlib import *

NAME = "standalone__structured_sparse_n_m__ragged"
XB = 16 * 4096 * 576 * 2
WSB = 301989888
WF = 0
IDX = 331776
TABW = 9856
TAB = IDX + 44 * 1024
OV = TAB + 4 * TABW
CTR = (OV + 36 * 16 * 544 + 1023) // 1024 * 1024
SIG = CTR + 1024
WS_USED = SIG + 128 * 256
NF, NC = 84, 36
CNT_F, CNT_C = 0, 64
FLAG_F, FLAG_C = 128, 192
SLOT = 36864
NSLOT = 3
LTAB = NSLOT * SLOT
L_T0, L_CNT, L_BIAS, L_POOL = 9216, 9792, 9840, 10416
NPOOL = 3
L_X = L_POOL + NPOOL * 544
LTABW = L_X + 1024
L_MB = LTAB + 4 * LTABW
LDS_BYTES = L_MB + 16
SPIN = 1 << 17

DEF = dict(xnt="nt", stf="sc1", stf2="", inter=1, diag=0, nA=3, nF=2, nC=2, lag=12, eC=10, cper=4,
           gstep=1, book=140, b0=24, per=12, tord=[8, 0, 1, 2, 3, 4, 5, 6, 7], e1=[10, 44, 24], e0=[106, 137, 102],
           dma=[10, 18, 38, 46, 68, 76, 84, 98, 108], nostore=0, hold=1, wsc="sc1", chain=1, win=7, wins=0, rstep=1, slowat=5, bar2=16, claim=[90, 150], touch=0, ctouch=1, xtail=0, ppos=5, nfast=24, testfb=0)

DIAG = 1 << 20
def stamp(o, first=False):
    if not o["diag"]:
        return ""
    L = []
    if first:
        L += ["    s_mov_b32 s62, 0", "    v_mov_b32 v255, 0"]
    L += ["    s_mov_b32 s63, m0", "    s_memrealtime s[60:61]", "    s_memtime s[64:65]", "    s_waitcnt lgkmcnt(0)", "    s_mov_b32 m0, s62", "    v_writelane_b32 v255, s60, m0",
          "    s_add_u32 m0, s62, 32", "    v_writelane_b32 v255, s64, m0", "    s_add_u32 s62, s62, 1", "    s_mov_b32 m0, s63"]
    return "\n".join(L)
def stamp_out(o):
    if not o["diag"]:
        return ""
    L = ["    s_mov_b64 exec, -1", "    s_waitcnt vmcnt(0)", stamp(o), f"    s_mov_b32 s18, {WSB}",
         "    s_lshl_b32 s60, s2, 2", "    s_add_u32 s60, s60, s20", "    s_lshl_b32 s60, s60, 8", f"    s_add_u32 s60, s60, {DIAG}",
         "    v_mbcnt_lo_u32_b32 v0, -1, 0", "    v_mbcnt_hi_u32_b32 v0, -1, v0", "    v_lshlrev_b32 v0, 2, v0",
         "    buffer_store_dword v255, v0, s[16:19], s60 offen"]
    return "\n".join(L)

def lut_tables():
    l64 = 0
    l32 = 0
    for nk in range(16):
        keep = [j for j in range(4) if not (nk >> j) & 1]
        e = 0
        if len(keep) >= 2:
            ia, ib = keep[-2], keep[-1]
            for j in keep[:-2]:
                assert j < 2
                e |= 1 << j
        elif len(keep) == 1:
            ib = keep[0]
            ia = (ib + 1) % 4
            if ia > ib:
                ia, ib = ib, ia
        else:
            ia, ib = 0, 1
        l64 |= (ia | ib << 2) << (4 * nk)
        l32 |= e << (2 * nk)
    return l64, l32

vB0, vB1, vXor, vRow, vDma, vS4, vS2, vTA, vTQ, vCI, vL16 = range(1, 12)
vIDX = 12
vL8, vQ8 = 54, 55
vWF = 56
vACC = (124, 160)
vBB = 196
vT, vA, vG = 236, 240, 244
vTs, vAs, vGs = vA, vA + 2, vG
vTMP = vG + 4
vXw, vAt = 252, 253
GROUPS = [(0, (0, 1, 2)), (0, (3, 4)), (0, (5, 6)), (0, (7, 8)), (1, (0, 1, 2)), (1, (3, 4)), (1, (5, 6)), (1, (7, 8))]
GBUF = {0: 0, 1: 1, 2: 2, 3: 3, 4: 4, 5: 0, 6: 1, 7: 3, 8: 4}

def notkept(a):
    return f"""    v_and_b32 v44, 0x7fff, v{a}
    v_and_b32 v45, 0x7fff, v{a+1}
    v_and_b32 v46, 0x7fff, v{a+2}
    v_and_b32 v47, 0x7fff, v{a+3}
    v_max_u32 v48, v44, v45
    v_min_u32 v49, v44, v45
    v_max_u32 v50, v46, v47
    v_min_u32 v51, v46, v47
    v_min_u32 v48, v48, v50
    v_max3_u32 v48, v48, v49, v51
    v_max_u32 v48, 1, v48
    v_sub_u32 v47, v47, v48
    v_sub_u32 v46, v46, v48
    v_sub_u32 v45, v45, v48
    v_sub_u32 v44, v44, v48
    v_lshrrev_b32 v49, 31, v47
    v_alignbit_b32 v49, v49, v46, 31
    v_alignbit_b32 v49, v49, v45, 31
    v_alignbit_b32 v49, v49, v44, 31"""

def colcalc():
    return """    s_lshr_b32 s33, s31, 1
    s_lshl_b32 s33, s33, 5
    s_and_b32 s34, s31, 1
    s_lshl_b32 s34, s34, 2
    s_add_u32 s33, s33, s34
    s_lshl_b32 s34, s30, 7
    s_add_u32 s33, s33, s34                   ; 128w + 32u + 4hf
    s_lshl_b32 s34, s30, 4
    s_add_u32 s34, s34, 512
    s_cmp_lt_u32 s31, 8
    s_cselect_b32 s33, s33, s34
    s_cselect_b32 s34, 3, 2
    v_lshrrev_b32 v15, 2, v14
    v_lshlrev_b32 v15, s34, v15
    v_and_b32 v16, 3, v14
    v_add3_u32 v15, v15, v16, s33
    v_lshlrev_b32 v15, 1, v15"""

def entry_addr():
    return f"""    s_lshl_b32 s96, s20, 4
    s_and_b32 s97, s2, 15
    s_add_u32 s96, s96, s97
    s_lshl_b32 s96, s96, 8
    s_add_u32 s96, s96, {SIG}
    s_add_u32 s97, s96, {64*256}
    v_lshlrev_b32 v{vAt}, 14, v12"""

def entry_read():
    return f"""    s_mov_b32 s16, s82
    s_mov_b32 s17, s83
    s_mov_b64 exec, 3
    buffer_load_dword v{vAt}, v{vAt}, s[16:19], s96 offen sc1
    s_mov_b64 exec, -1"""

def signal(o, tag, kind, ctr, flag, n):
    return f"""    s_lshl_b32 s30, s30, 12
    s_add_u32 s30, s30, {SIG + kind*64*256}
    v_lshlrev_b32 v17, 8, v12
    v_mov_b32 v16, 1
    s_waitcnt vmcnt(0)
{stamp(o)}
    s_barrier
    s_cmp_lg_u32 s20, 0
    s_cbranch_scc1 M_x
    s_mov_b64 exec, 0xffff
    buffer_atomic_add v16, v17, s[16:19], s30 offen sc1
    s_mov_b64 exec, 1
    v_mov_b32 v{vXw}, 1
    s_mov_b32 s98, {n-1}
    s_mov_b32 s99, {flag}
    buffer_atomic_add v{vXw}, off, s[68:71], 0 offset:{ctr} sc0 sc1
    s_mov_b64 exec, -1
    s_branch M_x"""

def gen_ftask(o):
    L = []
    A = L.append
    l64, l32 = lut_tables()
    A(f"""F_task:
    s_mul_i32 s30, s2, 49
    s_lshr_b32 s30, s30, 10                   ; w = wg/21
    s_mul_i32 s31, s30, 21
    s_sub_u32 s35, s2, s31
    s_lshl_b32 s35, s35, 2
    s_add_u32 s35, s35, s20                   ; p
    s_min_u32 s35, s35, 80
    s_mul_i32 s32, s35, 57
    s_lshr_b32 s32, s32, 9                    ; s
    s_mul_i32 s31, s32, 9
    s_sub_u32 s31, s35, s31                   ; t
{colcalc()}
    v_mul_u32_u24 v16, {16*1152}, v13
    v_add_u32 v15, v15, v16
    s_mul_i32 s36, s32, {64*1152}
    s_add_u32 s37, s36, 4608
    s_add_u32 s38, s36, 9216
    s_add_u32 s39, s36, 13824
    s_waitcnt lgkmcnt(0)
    s_mov_b32 s4, s74
    s_mov_b32 s5, s75
{entry_read()}""")
    for j in range(16):
        A(f"    buffer_load_ushort v{16+j}, v15, s[4:7], s{36+j//4} offen offset:{(j%4)*1152}")
    A(f"""    s_mov_b32 s68, s80
    s_mov_b32 s69, s81
    s_mov_b32 s36, {l64 & 0xffffffff}
    s_mov_b32 s37, {l64 >> 32}
    s_mov_b32 s38, 0x0202
    v_mov_b32 v41, 0x01000100
    v_mov_b32 v40, 0
    s_mul_i32 s39, s30, 81
    s_add_u32 s39, s39, s35
    s_lshl_b32 s39, s39, 10
    s_mul_i32 s40, s30, 21
    s_sub_u32 s40, s2, s40                    ; r4
    s_and_b32 s33, s40, 1
    s_lshr_b32 s40, s40, 1
    s_mul_i32 s34, s30, 11
    s_add_u32 s40, s40, s34
    s_lshl_b32 s40, s40, 10
    s_lshl_b32 s33, s33, 3
    s_add_u32 s40, s40, s33
    s_add_u32 s40, s40, {IDX}
    s_lshl_b32 s33, s20, 1
    v_add_u32 v42, s33, v{vL8}
    s_mov_b32 s41, {o['nF']}""")
    for g in range(4):
        a = 16 + 4 * g
        A(f"    s_waitcnt vmcnt({12 - 4*g})")
        A(notkept(a))
        A(f"""    v_lshlrev_b32 v50, 2, v49
    v_lshrrev_b64 v[52:53], v50, s[36:37]
    v_lshl_or_b32 v44, v{a+1}, 16, v{a}
    v_lshl_or_b32 v45, v{a+3}, 16, v{a+2}
    v_and_b32 v46, 3, v52
    v_bfe_u32 v47, v52, 2, 2
    v_and_b32 v52, 15, v52
    v_lshl_or_b32 v46, v47, 16, v46
    v_lshl_or_b32 v40, v52, {4*g}, v40
    v_mad_u32_u24 v46, v46, s38, v41
    v_perm_b32 v{32+g}, v45, v44, v46""")
    A(f"""    ds_write_b16 v42, v40
    buffer_store_dwordx4 v[32:35], v{vL16}, s[16:19], s39 offen sc1
    s_waitcnt lgkmcnt(0)
    s_barrier
    s_cmp_lg_u32 s20, 0
    s_cbranch_scc1 F_sig
    ds_read_b64 v[36:37], v{vL8}
    s_waitcnt lgkmcnt(0)
    buffer_store_dwordx2 v[36:37], v{vL16}, s[16:19], s40 offen sc1
    s_cmp_lg_u32 s2, 0
    s_cbranch_scc1 F_sig
    v_mov_b32 v44, 0
    v_mov_b32 v45, 0
    v_mov_b32 v46, 0
    v_mov_b32 v47, 0
    s_mov_b32 s40, {CTR}
    buffer_store_dwordx4 v[44:47], v{vL16}, s[16:19], s40 offen sc1
F_sig:
{stamp(o)}
{signal(o, 'F', 0, CNT_F, FLAG_F, NF)}""")
    return "\n".join(L)

def gen_ctask(o):
    FL, LI, TT = 9728, 10752, 11520
    L = []
    A = L.append
    l64, l32 = lut_tables()
    A(f"""C_task:
    s_sub_u32 s35, s2, {NF}                   ; tau
    s_mul_i32 s30, s35, 57
    s_lshr_b32 s30, s30, 9                    ; w
    s_mul_i32 s31, s30, 9
    s_sub_u32 s31, s35, s31                   ; t
{colcalc()}
    v_lshrrev_b32 v17, 4, v0                  ; 4*qa+g
    v_mul_u32_u24 v16, {4*1152}, v17
    v_add_u32 v15, v15, v16
    s_mov_b32 s36, 0
    s_waitcnt lgkmcnt(0)
    s_mov_b32 s4, s74
    s_mov_b32 s5, s75
{entry_read()}""")
    for r in range(9):
        for j in range(4):
            A(f"    buffer_load_ushort v{60+4*r+j}, v15, s[4:7], s36 offen offset:{j*1152}")
        if r < 8:
            A(f"    s_add_u32 s36, s36, {64*1152}")
    A(f"""    s_mov_b32 s68, s80
    s_mov_b32 s69, s81
    s_mov_b32 s41, {o['nC']}
    v_lshlrev_b32 v18, 2, v0                  ; tid*4
    v_mov_b32 v19, 0
    ds_write_b32 v18, v19 offset:9216
    ds_write_b32 v18, v19 offset:{FL}
    v_mov_b32 v19, 144
    v_lshlrev_b32 v20, 1, v0
    v_and_b32 v20, 8, v20
    s_cmp_eq_u32 s20, 3
    s_cbranch_scc1 C_a
    ds_write_b32 v18, v19 offset:{LI}
    ds_write_b32 v18, v20 offset:{TT}
C_a:
    s_mov_b32 s37, {l32}
    s_mov_b32 s38, 0xffff
    v_lshlrev_b32 v17, 2, v17
    s_waitcnt lgkmcnt(0)
    s_barrier""")
    for r in range(9):
        a = 60 + 4 * r
        A(f"    s_waitcnt vmcnt({32 - 4*r})")
        A(notkept(a))
        A(f"""    v_lshlrev_b32 v50, 1, v49
    v_lshrrev_b32 v50, v50, s37
    v_lshl_or_b32 v44, v{a+1}, 16, v{a}
    v_and_b32 v46, 1, v50
    v_bfe_u32 v47, v50, 1, 1
    v_lshl_or_b32 v46, v47, 16, v46
    v_mul_u32_u24 v46, s38, v46
    v_and_b32 v44, v44, v46
    ds_write_b32 v18, v44 offset:{r*1024}
    ds_or_b32 v17, v44 offset:{FL + r*64}""")
    A(f"""    v_lshlrev_b32 v19, 2, v12                 ; lane*4
    s_waitcnt lgkmcnt(0)
    s_barrier
    ds_read_b32 v20, v19 offset:{FL}
    ds_read_b32 v21, v19 offset:{FL+256}
    ds_read_b32 v22, v19 offset:{FL+512}
    s_mov_b32 s56, 0x55555555
    s_mov_b32 s57, 0x55555555
    s_waitcnt lgkmcnt(0)
    v_cmp_ne_u32 s[44:45], 0, v20
    v_cmp_ne_u32 s[46:47], 0, v21
    v_cmp_ne_u32 s[48:49], 0, v22
    s_nop 3
    s_bcnt1_i32_b64 s36, s[44:45]
    s_bcnt1_i32_b64 s37, s[46:47]
    s_bcnt1_i32_b64 s38, s[48:49]
    s_add_u32 s37, s37, s36
    s_add_u32 s38, s38, s37                   ; total
    s_and_b64 s[50:51], s[44:45], s[56:57]
    s_bcnt1_i32_b64 s39, s[50:51]
    s_and_b64 s[50:51], s[46:47], s[56:57]
    s_bcnt1_i32_b64 s40, s[50:51]
    s_add_u32 s40, s40, s39
    s_cmp_eq_u32 s20, 0
    s_cselect_b32 s36, 0, s36
    s_cselect_b32 s39, 0, s39
    s_cselect_b64 s[44:45], s[44:45], s[46:47]
    s_cmp_ge_u32 s20, 2
    s_cselect_b32 s36, s37, s36
    s_cselect_b32 s39, s40, s39
    s_cselect_b64 s[44:45], s[48:49], s[44:45]
    s_cmp_eq_u32 s20, 3
    s_cselect_b64 s[44:45], 0, s[44:45]
    s_and_b64 s[50:51], s[44:45], s[56:57]
    v_mov_b32 v20, s36
    v_mbcnt_lo_u32_b32 v20, s44, v20
    v_mbcnt_hi_u32_b32 v20, s45, v20          ; rank
    v_mov_b32 v21, s39
    v_mbcnt_lo_u32_b32 v21, s50, v21
    v_mbcnt_hi_u32_b32 v21, s51, v21
    v_sub_u32 v22, v20, v21
    v_sub_u32 v22, 15, v22
    v_cndmask_b32 v21, v22, v21, s[56:57]
    v_sub_u32 v22, 15, v21
    v_lshrrev_b32 v23, 3, v21
    v_min_u32 v21, v21, v22                   ; p' (0..7)
    v_and_b32 v22, 1, v21
    v_lshl_or_b32 v24, v22, 1, v23            ; qb
    v_lshrrev_b32 v21, 1, v21                 ; jj
    v_lshl_or_b32 v25, v24, 2, v21            ; T index
    v_and_b32 v26, 2, v21
    v_or_b32 v26, v26, v22                    ; qa'
    v_and_b32 v21, 1, v21
    v_lshl_or_b32 v21, v23, 1, v21            ; g'
    v_lshl_or_b32 v26, v26, 2, v21
    v_cmp_gt_u32 vcc, 16, v20
    v_lshrrev_b32 v27, 4, v0
    v_and_b32 v28, 15, v0
    v_cndmask_b32 v25, v20, v25, vcc
    v_cndmask_b32 v26, v20, v26, vcc
    v_lshlrev_b32 v25, 2, v25
    v_lshlrev_b32 v26, 2, v26
    v_lshlrev_b32 v27, 10, v27
    v_lshl_or_b32 v27, v28, 3, v27
    s_mov_b64 exec, s[44:45]
    ds_write_b32 v26, v0 offset:{LI}
    ds_write_b32 v25, v27 offset:{TT}
    s_mov_b64 exec, -1
    s_add_u32 s38, s38, 7
    s_lshr_b32 s38, s38, 3
    s_max_u32 s38, s38, 2
    s_sub_u32 s38, s38, 2
    s_mul_i32 s36, s30, {TABW}
    s_add_u32 s36, s36, {TAB}
    v_lshlrev_b32 v20, 4, v13
    v_lshlrev_b32 v21, 2, v14
    s_waitcnt lgkmcnt(0)
    s_barrier
    s_cmp_eq_u32 s20, 0
    s_cbranch_scc0 C_ov
    ds_read_b128 v[24:27], v20 offset:{LI}
    ds_read_b128 v[32:35], v{vL16} offset:{TT}
    s_lshl_b32 s37, s31, 10
    s_add_u32 s37, s37, s36
    s_lshl_b32 s39, s31, 6
    s_add_u32 s39, s39, s36
    s_add_u32 s39, s39, {L_T0}
    s_lshl_b32 s40, s31, 2
    s_add_u32 s40, s40, s36
    s_add_u32 s40, s40, {L_CNT}
    s_waitcnt lgkmcnt(1)
    v_lshl_add_u32 v24, v24, 6, v21
    v_lshl_add_u32 v25, v25, 6, v21
    v_lshl_add_u32 v26, v26, 6, v21
    v_lshl_add_u32 v27, v27, 6, v21
    ds_read_b32 v28, v24
    ds_read_b32 v29, v25
    ds_read_b32 v30, v26
    ds_read_b32 v31, v27
    v_mov_b32 v22, s38
    s_waitcnt lgkmcnt(0)
    buffer_store_dwordx4 v[28:31], v{vL16}, s[16:19], s37 offen sc1
    s_mov_b64 exec, 15
    buffer_store_dwordx4 v[32:35], v{vL16}, s[16:19], s39 offen sc1
    s_mov_b64 exec, 1
    buffer_store_dword v22, off, s[16:19], s40 sc1
    s_mov_b64 exec, -1
    s_branch C_sig
C_ov:                                         ; waves 1..3: overflow half chunks c = wave-1, +3, ...
    s_sub_u32 s39, s20, 1
    v_lshlrev_b32 v20, 3, v13
C_ovl:
    s_cmp_lt_u32 s39, s38
    s_cbranch_scc0 C_sig
    s_lshl_b32 s40, s39, 5
    v_add_u32 v22, s40, v20
    v_add_u32 v23, s40, v{vL16}
    ds_read_b64 v[24:25], v22 offset:{LI+64}
    ds_read_b128 v[32:35], v23 offset:{TT+64}
    s_lshl_b32 s37, s35, 4
    s_add_u32 s37, s37, s39
    s_mul_i32 s37, s37, 544
    s_add_u32 s37, s37, {OV}
    s_waitcnt lgkmcnt(1)
    v_lshl_add_u32 v24, v24, 6, v21
    v_lshl_add_u32 v25, v25, 6, v21
    ds_read_b32 v28, v24
    ds_read_b32 v29, v25
    s_waitcnt lgkmcnt(0)
    buffer_store_dwordx2 v[28:29], v{vL8}, s[16:19], s37 offen sc1
    s_mov_b64 exec, 3
    buffer_store_dwordx4 v[32:35], v{vL16}, s[16:19], s37 offen offset:512 sc1
    s_mov_b64 exec, -1
    s_add_u32 s39, s39, 3
    s_branch C_ovl
C_sig:
{stamp(o)}
{signal(o, 'C', 1, CNT_C, FLAG_C, NC)}""")
    return "\n".join(L)

def wfrag(p):
    return vr(4 * p, 4, "a") if p < 64 else vr(vWF + 4 * (p - 64), 4)

def smf(rb, s, t, buf):
    p = s * 9 + t
    return smfmac(vr(vACC[rb] + 4 * t, 4), wfrag(p), vr(buf, 8), vr(vIDX + p // 2), p & 1)

def group_smf(gi, chain=True):
    rb, ks = GROUPS[gi]
    if chain:
        return [smf(rb, s, t, vBB + 8 * GBUF[s]) for t in range(9) for s in ks]
    return [smf(rb, s, t, vBB + 8 * GBUF[s]) for s in ks for t in range(9)]

def bread_to(rb, s, b):
    off = rb * 18432 + s * 1024
    return [ds_read("ds_read_b128", vr(b, 4), vr(vB0), f"offset:{off}"),
            ds_read("ds_read_b128", vr(b + 4, 4), vr(vB1), f"offset:{off}")]

def group_reads(gi):
    rb, ks = GROUPS[gi]
    return sum([bread_to(rb, s, vBB + 8 * GBUF[s]) for s in ks], [])

def bias_init(rb, t):
    return ds_read("ds_read_b128", vr(vACC[rb] + 4 * t, 4), vr(vTQ), f"offset:{L_BIAS + t*64}")

def tread(t, tok=None):
    i = ds_read("ds_read_b128", vr(vT, 4), vr(vTQ), f"offset:{L_T0 + t*64}")
    if tok:
        i.rd |= regs(tok)
    return i

def aread(t):
    return ds_read("ds_read_b128", vr(vA, 4), vr(vTA), f"offset:{t*1024}")

def xad(j):
    return valu(f"v_xad_u32 v{vT+j}, v{vT+j}, v{vXor}, v{vRow}", [vr(vT + j), vr(vXor), vr(vRow)], [vr(vT + j)])

def gather(j):
    return ds_read("ds_read2st64_b32", vr(vG + 2 * j, 2), vr(vT + j), "offset0:0 offset1:72")

def csmf(rb, t):
    return smfmac(vr(vACC[rb] + 4 * t, 4), vr(vA, 4), vr(vG, 8), vr(vCI), rb)

def epilogue(rb, soff, o, init=True):
    gs = []
    for ln in range(2):
        g = []
        a = vACC[rb] + 16 * ln
        X, Y, Z = a, a + 8, a + 4
        for j in range(4):
            g.append(valu(f"v_cvt_pk_bf16_f32 v{X+j}, v{a+2*j}, v{a+2*j+1}", [vr(a + 2 * j, 2)], [vr(X + j)]))
        for j in range(4):
            g.append(valu(f"v_cvt_pk_bf16_f32 v{Y+j}, v{a+8+2*j}, v{a+8+2*j+1}", [vr(a + 8 + 2 * j, 2)], [vr(Y + j)]))
        if init:
            g.append(bias_init(rb, 4 * ln + 3))
        for j in range(4):
            g.append(valu(f"v_cndmask_b32_dpp v{Z+j}, v{X+j}, v{Y+j}, vcc row_ror:8 row_mask:0xf bank_mask:0xf", [vr(X + j), vr(Y + j)], [vr(Z + j)]))
        g.append(I(f"buffer_store_dwordx4 {vr(Z,4)}, v{vS4}, s[12:15], {soff[1]} offen offset:{ln*128} {o['stf']}".rstrip(), "store", rd=[vr(Z, 4), vr(vS4)]))
        for j in range(4):
            g.append(valu(f"v_mov_b32_dpp v{X+j}, v{Y+j} row_ror:8 row_mask:0xf bank_mask:0xc", [vr(X + j), vr(Y + j)], [vr(X + j)]))
        g.append(I(f"buffer_store_dwordx4 {vr(X,4)}, v{vS4}, s[12:15], {soff[0]} offen offset:{ln*128} {o['stf']}".rstrip(), "store", rd=[vr(X, 4), vr(vS4)]))
        if init:
            g += [bias_init(rb, 4 * ln + 1), bias_init(rb, 4 * ln + 2), bias_init(rb, 4 * ln)]
        gs.append(g)
    g = []
    a = vACC[rb] + 32
    for j in range(2):
        g.append(valu(f"v_cvt_pk_bf16_f32 v{a+j}, v{a+2*j}, v{a+2*j+1}", [vr(a + 2 * j, 2)], [vr(a + j)]))
    g.append(I(f"ds_write_b64 v{vXw}, {vr(a,2)} offset:{(1-rb)*2*LTABW}", "dsw", rd=[vr(a, 2), vr(vXw)]))
    if init:
        g.append(bias_init(rb, 8))
    gs.append(g)
    if o["nostore"]:
        gs = [[i for i in g if i.kind != "store"] for g in gs]
    return gs

def xch(o, soff):
    return [ds_read("ds_read_b128", vr(vG, 4), vr(vTA), f"offset:{L_X}"),
            I(f"buffer_store_dwordx4 {vr(vG,4)}, v{vS2}, s[12:15], {soff} offen {o['stf']}".rstrip(), "store", rd=[vr(vG, 4), vr(vS2)])]

def xdma(o, m0base, soff):
    g = []
    for s in range(9):
        if s == 0:
            g.append(salu(f"s_mov_b32 m0, {m0base}"))
        else:
            g.append(salu("s_add_u32 m0, m0, 896"))
        g.append(I(f"buffer_load_dwordx4 v{vDma}, s[8:11], {soff} offen offset:{s*128} {o['xnt']} lds", "dma", rd=[vr(vDma), soff]))
    return g

def spin(tag, base, target):
    return f"""    v_readfirstlane_b32 s30, v0
    s_mov_b32 s31, 0
    s_sub_u32 s30, s30, {base}
    s_cmp_eq_u32 s30, {target}
    s_cbranch_scc0 {tag}_spin
{tag}_ok:"""

def spin_out(o, tag, base, target, soff, flag):
    return f"""{tag}_spin:
    s_sleep 1
    buffer_load_dword v0, off, s[16:19], {soff} sc1
    s_add_u32 s31, s31, 1
    s_waitcnt vmcnt(0)
    v_readfirstlane_b32 s30, v0
    s_nop 0
    s_sub_u32 s30, s30, {base}
    s_cmp_eq_u32 s30, {target}
    s_cbranch_scc1 {tag}_ok
    s_cmp_lt_u32 s31, {o['nfast']}
    s_cbranch_scc1 {tag}_spin
{tag}_spin2:
    s_sleep 4
    buffer_load_dword v0, off, s[68:71], 0 offset:{flag} sc1
    s_add_u32 s31, s31, 1
    s_cmp_ge_u32 s31, {SPIN}
    s_cbranch_scc1 M_end
    s_waitcnt vmcnt(0)
    v_readfirstlane_b32 s30, v0
    s_nop 0
    s_cmp_eq_u32 s30, 1
    s_cbranch_scc0 {tag}_spin2
    s_branch {tag}_ok"""

def ctouch(o):
    if not o["ctouch"]:
        return ""
    return f"""    s_getpc_b64 s[84:85]
    s_lshr_b32 s30, s2, 3
    s_and_b32 s30, s30, 15
    s_lshl_b32 s30, s30, 11
    s_and_b32 s84, s84, 0xffffff00
    s_mov_b32 s86, M_codeend-{NAME}_kernel
    s_mov_b32 s87, 0x20000
    v_lshlrev_b32 v254, 3, v0
    s_mov_b32 exec_lo, 0x00010001
    s_mov_b32 exec_hi, 0x00010001
    buffer_load_dword v254, v254, s[84:87], s30 offen
    s_mov_b64 exec, -1"""

def gen_main(o):
    L = []
    A = L.append
    bstride = 256 * SLOT if o["inter"] else SLOT
    wgmul = SLOT if o["inter"] else 8 * SLOT
    tord = o["tord"]
    A(f""".p2align 8
.type {NAME}_kernel,@function
{NAME}_kernel:
    s_cmp_ge_u32 s2, 256
    s_cbranch_scc1 M_end
{stamp(o, True)}
    s_load_dwordx8 s[72:79], s[0:1], 0        ; x w b out
    s_load_dwordx4 s[80:83], s[0:1], 32
    v_lshrrev_b32 v20, 6, v0
    v_and_b32 v12, 63, v0                     ; lane
    v_readfirstlane_b32 s20, v20              ; wave
    v_lshrrev_b32 v13, 4, v12                 ; q
    v_and_b32 v14, 15, v12                    ; m
    v_lshlrev_b32 v{vL16}, 4, v12
    v_lshlrev_b32 v{vL8}, 3, v12
{ctouch(o)}
    s_mov_b32 s6, {576*576*2}
    s_mov_b32 s7, 0x20000
    s_mov_b32 s18, {WS_USED}
    s_mov_b32 s19, 0x20000
    s_mov_b32 s70, 256
    s_mov_b32 s71, 0x20000
{entry_addr()}
    s_mov_b32 s98, -1
    s_mov_b32 s99, 0
    v_mov_b32 v{vXw}, 0
    s_cmp_lt_u32 s2, {NF}
    s_cbranch_scc1 F_task
    s_cmp_lt_u32 s2, {NF+NC}
    s_cbranch_scc1 C_task
    s_mov_b32 s41, {o['nA']}
{stamp(o)}
{stamp(o)}
M_x:
    ; x DMA lane offset: (tid/8)*1152 + ((tid%8) ^ ((tid/16)%8))*16
    v_lshrrev_b32 v22, 3, v0
    v_mul_u32_u24 v22, 1152, v22
    v_lshrrev_b32 v23, 4, v0
    v_xor_b32 v23, v23, v0
    v_and_b32 v23, 7, v23
    v_lshl_add_u32 v{vDma}, v23, 4, v22
    s_mov_b32 s10, {XB}
    s_mov_b32 s11, 0x20000
    s_mov_b32 s86, 1152
    s_mov_b32 s87, 0x20000
    s_mul_i32 s22, s2, {wgmul}
    s_mul_i32 s26, s20, 9216
    s_mov_b32 s24, s22
    s_mov_b32 s42, s26
    s_lshl_b32 s28, s20, 8
    s_lshl_b32 s30, s20, 5
    v_lshlrev_b32 v25, 4, v13
    v_lshlrev_b32 v26, 3, v13
    s_mov_b32 s21, 0
    s_waitcnt lgkmcnt(0)
    s_mov_b32 s8, s72
    s_mov_b32 s9, s73
    s_mov_b32 s84, s76
    s_mov_b32 s85, s77
    s_mov_b32 s68, s80
    s_mov_b32 s69, s81
    s_cmp_lt_u32 s2, {NF+NC}
    s_cbranch_scc1 M_x1
{entry_read()}
M_x1:""")
    for u in range(4):
        A(f"    buffer_load_dwordx4 {vr(vBB+4*u,4)}, v25, s[84:87], s28 offen offset:{u*64}")
    A(f"    buffer_load_dwordx2 {vr(vBB+16,2)}, v26, s[84:87], s30 offen offset:1024")
    A("M_xl:\n    s_add_u32 s21, s21, 1")
    d = xdma(o, "s42", "s22")
    pp = 2 * o["ppos"]
    A(text(finalize(d[:pp])))
    A(f"""    s_cmp_lt_u32 s21, s41
    s_cbranch_scc1 M_xn
    buffer_load_dword v0, off, s[16:19], s96 sc1
M_xn:""")
    A(text(finalize(d[pp:])))
    A(f"""    s_add_u32 s22, s22, {bstride}
    s_add_u32 s42, s42, {SLOT}
    s_cmp_lt_u32 s21, s41
    s_cbranch_scc1 M_xl
    s_mov_b32 s12, s78
    s_mov_b32 s13, s79
    s_mov_b32 s14, {XB}
    s_mov_b32 s15, 0x20000
    s_waitcnt vmcnt(10)
    v_readlane_b32 s100, v{vAt}, 0
    v_readlane_b32 s101, v{vAt}, 1
    v_readlane_b32 s30, v{vXw}, 0
{"    s_add_u32 s100, s100, 5" if o["testfb"] else "    s_nop 0"}
{"    s_add_u32 s101, s101, 5" if o["testfb"] else ""}
    s_cmp_lg_u32 s30, s98
    s_cbranch_scc1 M_nf
    v_mov_b32 v22, 1
    s_mov_b64 exec, 1
    buffer_store_dword v22, off, s[68:71], s99 sc1
    s_mov_b64 exec, -1
M_nf:
    s_mul_i32 s29, s20, {LTABW}
    s_add_u32 s29, s29, {LTAB}
    v_lshrrev_b32 v24, 1, v14                 ; f(m)
    v_and_b32 v27, 7, v14
    v_lshlrev_b32 v22, 7, v27
    v_lshl_or_b32 v{vXor}, v24, 4, v22        ; (f<<4) | (m%8)<<7
    v_lshrrev_b32 v23, 3, v14
    v_mul_u32_u24 v{vRow}, 9216, v23
    v_xad_u32 v{vB0}, v25, v{vXor}, v{vRow}
    v_xor_b32 v{vB1}, 64, v{vB0}
    v_add_u32 v{vTQ}, s29, v25
    v_add_u32 v{vTA}, s29, v{vL16}
    v_mul_u32_u24 v24, 1152, v27
    v_lshl_add_u32 v24, v23, 6, v24
    v_add3_u32 v{vS4}, v24, v25, s28          ; (m%8)*1152 + (m/8)*64 + q*16 + w*256
    v_lshrrev_b32 v24, 3, v12
    v_xor_b32 v28, v24, v12
    v_and_b32 v28, 7, v28
    v_mul_u32_u24 v24, 1152, v24
    v_lshl_add_u32 v24, v28, 4, v24
    v_add_u32 v{vS2}, 1024, v24               ; (l/8)*1152 + 1024 + ((l%8)^(l/8))*16
    s_lshl_b32 s30, s20, 1
    v_lshrrev_b32 v24, 1, v13
    v_add_u32 v24, s30, v24
    v_xor_b32 v24, v24, v27
    v_lshl_add_u32 v24, v24, 4, v22
    v_and_b32 v28, 8, v26
    v_mul_u32_u24 v29, {LTABW}, v23
    v_add3_u32 v24, v24, v28, v29
    v_add_u32 v{vXw}, {LTAB+L_X}, v24
    s_cmp_eq_u32 s20, 0
    s_mov_b32 s31, {0x40000000 + L_MB + 8}
    s_cselect_b32 s30, {L_MB}, s31
    v_mov_b32 v{vAt}, s31
    v_writelane_b32 v{vAt}, s30, 0
    s_lshr_b32 s30, s2, 3
    s_and_b32 s30, s30, 3                     ; shard
    s_lshl_b32 s92, s30, 8
    s_add_u32 s92, s92, {CTR - L_MB}
    s_add_u32 s30, s30, 768
    s_mul_i32 s93, s30, {SLOT}
    s_mov_b32 s94, {4*SLOT}
    s_and_b32 s95, s20, 1
    s_mul_i32 s95, s95, 9216
    v_add_u32 v{vQ8}, 512, v26
    v_mov_b32 v{vCI}, 0xeeee4444
    s_mov_b32 vcc_lo, 0xff00ff00
    s_mov_b32 vcc_hi, 0xff00ff00
    s_add_u32 s59, s24, 9216
    s_mul_i32 s43, s20, {81*1024}
    s_mul_i32 s53, s20, {11*1024}
    s_add_u32 s53, s53, {IDX}
    s_mul_i32 s67, s20, {TABW}
    s_add_u32 s67, s67, {TAB}
{stamp(o)}
{stamp(o)}""")
    for j in range(18):
        A(f"    v_lshlrev_b32 v{vACC[0]+2*j}, 16, v{vBB+j}\n    v_and_b32 v{vACC[0]+2*j+1}, 0xffff0000, v{vBB+j}")
    A("    s_mov_b32 exec_lo, 0x00010001\n    s_mov_b32 exec_hi, 0x00010001")
    for t in range(9):
        A(f"    ds_write_b128 v{vTQ}, {vr(vACC[0]+4*t,4)} offset:{L_BIAS+t*64}")
    A("    s_mov_b64 exec, -1")
    if o["xtail"]:
        A(f"""    s_cmp_lt_u32 s2, {NF+NC}
    s_cbranch_scc1 M_nt
    s_sub_u32 s30, s2, {NF+NC}
    s_lshl_b32 s30, s30, 2
    s_add_u32 s30, s30, s20
    s_lshl_b32 s30, s30, 13
    s_sub_u32 s30, {XB - 8192}, s30
    v_lshlrev_b32 v{vG}, 3, v{vL16}""")
        for r in range(o["xtail"]):
            A(f"    buffer_load_dword v{vG+1+r}, v{vG}, s[8:11], s30 offen")
            A(f"    s_sub_u32 s30, s30, {(256-NF-NC)*4*8192}")
        A("M_nt:")
    A(f"    s_waitcnt vmcnt({9 - o['ppos']})")
    A(stamp(o))
    A(spin("M_pf", "s100", 21))
    A(stamp(o))

    lag, eC, cper = o["lag"], o["eC"], o["cper"]
    def wload(p):
        g = []
        if p % 8 == 0:
            r = p // 8
            n = 4 if r < 10 else 1
            if r and r % 4 == 0:
                g.append(salu("s_add_u32 s53, s53, 4096"))
            g.append(I(f"buffer_load_dword{'x4' if n == 4 else ''} {vr(vIDX+4*r,n)}, v{vL16}, s[16:19], s53 offen offset:{(r%4)*1024} {o['wsc']}", "load", rd=[vr(vL16)], wr=[vr(vIDX + 4 * r, n)]))
        if p % 4 == 0 and p:
            g.append(salu("s_add_u32 s43, s43, 4096"))
        g.append(I(f"buffer_load_dwordx4 {wfrag(p)}, v{vL16}, s[16:19], s43 offen offset:{(p%4)*1024} {o['wsc']}", "load", rd=[vr(vL16)], wr=[wfrag(p)]))
        return g
    def pbuf(rb, s):
        return vBB + 8 * ((0, 1)[s & 1] if rb == 0 else (4, 3)[s & 1])
    seq = []
    if o["touch"]:
        A(f"""    s_lshr_b32 s30, s2, 3
    s_lshl_b32 s30, s30, 2
    s_add_u32 s30, s30, s20
    s_mul_i32 s31, s30, 1425
    s_lshr_b32 s31, s31, 16
    s_mul_i32 s31, s31, 46
    s_sub_u32 s30, s30, s31
    s_lshl_b32 s30, s30, 13
    v_lshlrev_b32 v0, 3, v{vL16}
    s_mov_b32 s18, {TAB}
    buffer_load_dword v0, v0, s[16:19], s30 offen sc1
    s_mov_b32 s18, {WS_USED}""")
    for p in range(lag):
        seq += wload(p)
    seq += [bias_init(1, t) for t in range(9)]
    bar = I("s_barrier", "other", rd=[wfrag(0)])
    seq.append(bar)
    seq += bread_to(0, 0, pbuf(0, 0)) + bread_to(1, 0, pbuf(1, 0))
    e_tab = eC + lag + 1
    e_cnt = e_tab + lag + 1
    e_cor = e_cnt + 2
    assert e_cor + 9 * cper <= 81, e_cor
    extra = {e: [] for e in range(82)}
    extra[eC].append(I(f"buffer_load_dword v0, off, s[16:19], s97 sc1", "load", wr=["v0"]))
    g = [I(spin("M_pc", "s101", 9).strip(), "other", rd=["v0"]), salu("s_mov_b32 m0, s29")]
    for j in range(10):
        if j % 4 == 0 and j:
            g += [salu("s_add_u32 s67, s67, 4096"), salu("s_add_u32 m0, m0, 4096")]
        if j == 9:
            g.append(salu("s_mov_b32 exec_hi, 0x7f"))
        g.append(I(f"buffer_load_dwordx4 v{vL16}, s[16:19], s67 offen offset:{(j%4)*1024} sc1 lds", "dma", rd=[vr(vL16)], wr=[f"@tab{j}"]))
    g.append(salu("s_mov_b32 exec_hi, -1"))
    extra[e_tab] += g
    c0 = I(f"v_mov_b32 v0, s29", "valu", wr=["v0"])
    c1 = ds_read("ds_read_b128", vr(vG, 4), "v0", f"offset:{L_CNT}"); c1.rd |= regs("@tab9")
    extra[e_cnt] += [c0, c1, ds_read("ds_read_b128", vr(vG + 4, 4), "v0", f"offset:{L_CNT+16}"), ds_read("ds_read_b32", vr(vA), "v0", f"offset:{L_CNT+32}"), tread(tord[0])]
    extra[e_cnt + 1] += [valu(f"v_or3_b32 v0, v{vG}, v{vG+1}, v{vG+2}", [vr(vG, 3)], ["v0"]),
                         valu(f"v_or3_b32 v0, v0, v{vG+3}, v{vG+4}", [vr(vG + 3, 2)], ["v0"]),
                         valu(f"v_or3_b32 v0, v0, v{vG+5}, v{vG+6}", [vr(vG + 5, 2)], ["v0"]),
                         valu(f"v_or3_b32 v0, v0, v{vG+7}, v{vA}", [vr(vG + 7), vr(vA)], ["v0"]),
                         I("s_nop 0\n    v_readfirstlane_b32 s27, v0\n    s_nop 0\n    s_cmp_lg_u32 s27, 0\n    s_cbranch_scc1 M_pool\nM_poolr:", "other")]
    for k in range(9):
        e = e_cor + k * cper
        extra[e] += [xad(0), xad(1), gather(0), gather(1), aread(tord[k])]
        extra[e + 1] += [xad(2), xad(3), gather(2), gather(3)] + ([tread(tord[k + 1])] if k < 8 else [])
        extra[e + cper - 1] += [csmf(0, tord[k]), csmf(1, tord[k])]
    for e in range(81):
        s, t = divmod(e, 9)
        if e + lag < 81:
            seq += wload(e + lag)
        if t == 1 and s < 8:
            seq += bread_to(0, s + 1, pbuf(0, s + 1))
        if t == 2 and s < 8:
            seq += bread_to(1, s + 1, pbuf(1, s + 1))
        seq.append(smf(0, s, t, pbuf(0, s)))
        if s < 7:
            seq.append(smf(1, s, t, pbuf(1, s)))
        seq += extra[e]
    if o["diag"]:
        seq.append(I(stamp(o).strip(), "lgkm0"))
    seq.append(I(f"""s_cmp_lt_u32 s21, 2
    s_cbranch_scc1 M_xlate
M_xlater:
    s_mov_b32 s21, 0
    s_cmp_lg_u32 s27, 0
    s_cbranch_scc1 M_slow
M_slowr0:""", "other"))
    seq += sum(epilogue(0, ("s24", "s59"), o), [])
    seq += [salu("s_mov_b32 s21, 1"), salu(f"s_mov_b32 s25, {SLOT}"),
            salu(f"s_add_u32 s90, s24, {bstride}"),
            salu(f"s_add_u32 s22, s90, {bstride}"),
            salu(f"s_add_u32 s28, s26, {2*SLOT}"),
            salu("s_cmp_eq_u32 s41, 3"),
            salu(f"s_cselect_b32 s88, 0, {XB}"),
            salu(f"s_cselect_b32 s89, 0x30000, s28"),
            salu("s_add_u32 s23, s24, 18432"),
            salu("s_cmp_lt_u32 s20, 2"),
            salu("s_cselect_b32 s66, s23, s24"),
            salu("s_add_u32 s66, s66, s95"),
            valu("v_mov_b32 v0, s22", [], ["v0"]),
            I(f"ds_write_b32 v{vAt}, v0", "dsw", rd=["v0", vr(vAt)]),
            valu(f"v_mov_b32 v0, {L_MB}", [], ["v0"])]
    seq += [valu(f"v_add_u32 v{r}, {SLOT}, v{r}", [vr(r)], [vr(r)]) for r in (vRow, vB0, vB1)]
    A(text(finalize(seq, vm=True)))

    gorder = [7, 0, 1, 2, 3, 4, 5, 6]
    mains = []
    gstart = []
    for gi in gorder:
        gstart.append(len(mains))
        mains += group_smf(gi, o["chain"])
    b0, per = o["b0"], o["per"]
    stream = []
    pos = {}
    cpos = {}
    nxt = 0
    for k in range(162):
        pos[k] = len(stream)
        stream.append(mains[k])
        if nxt < 9 and k >= b0 + per * (nxt + 1) - 1 and mains[k].wr != mains[k + 1].wr:
            stream.append(csmf(0, tord[nxt]))
            cpos[nxt] = len(stream)
            stream.append(csmf(1, tord[nxt]))
            nxt += 1
    gp = Gaps(len(stream) + 1)
    for j, gi in enumerate(gorder):
        r = group_reads((gi + 1) % 8)
        if j == 0:
            x = xch(o, "s66")
            top_reads = [ds_read("ds_read_b32", "v0", "v0"), x[0]]
            gp.chain(r, 0, step=1)
            bar2 = I("s_barrier", "other", rd=[vr(vG, 4), "v0"])
            gp.chain([valu("v_readfirstlane_b32 s22, v0", ["v0"], ["s22"]), salu(f"s_cmp_lt_u32 s22, {XB}"), salu(f"s_cselect_b32 s10, s88, 0")], 4)
        else:
            gp.chain(r, pos[gstart[j] - 1], step=o["rstep"])
    k = cpos[o["slowat"]]
    gp.nv[k] += [salu("s_cmp_lg_u32 s27, 0"), I("s_cbranch_scc1 M_slow", "other"), I("M_slowr:", "label")]
    gp.put(tread(tord[0]), 7)
    for t in range(9):
        gp.reserve(cpos[t] - 2)
        k = pos[b0 - 1] if t == 0 else cpos[t - 1] - 2
        kg = pos[b0] if t == 0 else cpos[t - 1]
        for j in range(4):
            k = gp.put(xad(j), k) + 1
            kg = gp.put(gather(j), max(kg, k), 2) + o["gstep"]
        if t < 8:
            kg = gp.put(tread(tord[t + 1]), max(kg, k), 2)
        gp.put(aread(tord[t]), kg, 2)
    def win(lst):
        out = []
        for i in lst:
            if i.kind in ("store", "dma") and o["win"]:
                out.append(I(f"s_waitcnt vmcnt({(o['win'] if i.kind == 'dma' else o['wins'] or o['win']) - 1})", "wait"))
            out.append(i)
        return out
    gp.chain(win(x[1:]), 6, 3)
    gp.put(bar2, o["bar2"])
    atom = I(f"buffer_atomic_add v0, v{vAt}, s[16:19], s92 offen sc0 sc1", "store", rd=["v0", vr(vAt)])
    gp.chain([valu("v_mov_b32 v0, 1", [], ["v0"])] + win([atom]), pos[o["claim"][0]], 3)
    awt = I("s_waitcnt vmcnt(0)", "wait")
    gp.chain([awt, valu("v_mul_u32_u24 v0, s94, v0", ["v0"], ["v0"]), valu("v_add_u32 v0, s93, v0", ["v0"], ["v0"]),
              valu(f"v_min_u32 v0, {XB}, v0", ["v0"], ["v0"]),
              I(f"ds_write_b32 v{vAt}, v0", "dsw", rd=["v0", vr(vAt)]), valu(f"v_mov_b32 v0, {L_MB}", [], ["v0"])], pos[o["claim"][1]], 3)
    for u, g in enumerate(epilogue(1, ("s23", "s58"), o)):
        gp.chain(win(g), pos[o["e1"][u]], 3)
    for u, g in enumerate(epilogue(0, ("s24", "s59"), o)):
        gp.chain(win(g), pos[o["e0"][u]], 3)
    d = xdma(o, "s89", "s22")
    for j in range(9):
        k = gp.put(d[2 * j], pos[o["dma"][j]], 2)
        gp.chain(win([d[2 * j + 1]]), k + 1, 3)
    book = [salu(f"s_add_u32 s28, s28, {SLOT}"),
            salu(f"s_cmp_ge_u32 s28, {NSLOT*SLOT}"),
            salu(f"s_cselect_b32 s28, s26, s28"),
            salu(f"s_add_u32 s30, s25, {SLOT}"),
            salu(f"s_cmp_eq_u32 s30, {NSLOT*SLOT}"),
            salu(f"s_cselect_b32 s30, 0, s30"),
            salu(f"s_sub_u32 s31, s30, s25"),
            salu(f"s_mov_b32 s25, s30"),
            salu("s_mov_b32 s89, s28"),
            salu("s_mov_b32 s90, s22"),
            salu(f"s_mov_b32 s88, {XB}"),
            salu("s_cmp_lt_u32 s20, 2"),
            salu("s_cselect_b32 s66, s23, s24"),
            salu("s_add_u32 s66, s66, s95")]
    kb = gp.chain(book, pos[o["book"]], 3)
    k = gp.chain([valu(f"v_add_u32 v{r}, s31, v{r}", [vr(r)], [vr(r)]) for r in (vRow, vB0, vB1)], max(kb + 1, pos[152]))
    assert k < len(stream)
    body = []
    for k, m in enumerate(stream):
        body.append(m)
        body += gp.gap(k)
    assert not gp.gap(len(stream))
    for r in (vRow, vB0, vB1):
        w = [j for j, i in enumerate(body) if ("v", r) in i.wr]
        u = [j for j, i in enumerate(body) if ("v", r) in i.rd]
        assert len(w) == 1 and max(u) == w[0], r
    for rb in range(2):
        for t in range(9):
            R = regs(vr(vACC[rb] + 4 * t, 4))
            ev = "".join("I" if i.kind == "ds" else "M" if i.kind == "mfma" else "E" for i in body if (i.rd | i.wr) & R)
            assert re.fullmatch("M{10}E+I" if rb == 0 else "MME+IM{8}", ev), (rb, t, ev)
    sl = [j for j, i in enumerate(body) if "M_slowr" in i.text][0]
    assert all(j < sl for j, i in enumerate(body) if i.kind == "ds" and i.wr & regs(vr(vACC[1], 36)))
    assert all(j > sl for j, i in enumerate(body) if i.kind == "valu" and i.rd & regs(vr(vACC[0], 36)))
    assert body[sl - 3].kind == "mfma" and ("v", vCI) in body[sl - 3].rd and "abid:1" in body[sl - 3].text
    lastdma = max(j for j, i in enumerate(body) if i.kind == "dma")
    assert lastdma < body.index(book[0]) and sl < body.index(book[0])
    assert all(j > body.index(bar2) for j, i in enumerate(body) if i.kind == "dsw")
    assert body.index(x[1]) < min(j for j, i in enumerate(body) if "read2st64" in i.text)
    for j, i in enumerate(body):
        if "cselect" in i.text or "s_cbranch_scc" in i.text:
            p = max(q for q in range(j) if body[q].kind == "salu" and "s_mov" not in body[q].text)
            assert body[p].text.startswith("s_cmp"), (i.text, body[p].text)
    firstdma = min(j for j, i in enumerate(body) if i.kind == "dma")
    assert [j for j, i in enumerate(body) if "s_cselect_b32 s10" in i.text][0] < firstdma
    isvm = lambda i: i.kind in ("dma", "store")
    awt.text = f"s_waitcnt vmcnt({sum(isvm(i) for i in body[body.index(atom) + 1:body.index(awt)])})"
    nstrict = sum(isvm(i) for i in body[lastdma + 1:])
    nloose = nstrict + sum(isvm(i) for i in body)
    assert nstrict <= 4
    seq = []
    seq.append(I("M_top:", "label"))
    if o["diag"]:
        seq.append(I(stamp(o).strip(), "other"))
    seq.append(salu(f"s_add_u32 s23, s24, 18432"))
    seq.append(salu(f"s_add_u32 s58, s24, 27648"))
    seq.append(salu(f"s_mov_b32 s24, s90"))
    seq.append(salu(f"s_add_u32 s59, s90, 9216"))
    seq.append(I(f"s_waitcnt vmcnt({nstrict}) lgkmcnt(0)", "lgkm0"))
    seq.append(I("s_barrier", "other"))
    seq += top_reads
    seq += body
    seq.append(salu(f"s_cmp_lt_u32 s90, {XB}"))
    seq.append(I("s_cbranch_scc1 M_top", "other"))
    seq.append(salu(f"s_add_u32 s23, s24, 18432"))
    seq.append(salu(f"s_add_u32 s58, s24, 27648"))
    seq.append(I("s_waitcnt lgkmcnt(0)", "lgkm0"))
    seq.append(I("s_barrier", "other"))
    x = xch(o, "s66")
    g7 = group_smf(7, True)
    g7 = g7[16:] + g7[:16]
    ep = epilogue(1, ("s23", "s58"), o, init=False)
    gt = Gaps(60)
    gt.chain([x[1], I("s_barrier", "other"), salu("s_add_u32 s66, s23, s95")], 4, 3)
    k = gt.chain(ep[2], 7, 3)
    x2 = xch(o, "s66")
    gt.chain([I("s_waitcnt lgkmcnt(0)", "lgkm0"), I("s_barrier", "other"), x2[0]], k + 3, 3)
    k = gt.chain(ep[0], 11, 3)
    gt.chain(ep[1], k + 1, 3)
    seq.append(x[0])
    for k in range(60):
        if k < 18:
            seq.append(g7[k])
        seq += gt.gap(k)
    seq.append(I("s_cmp_lt_u32 s20, 2\n    s_cbranch_scc0 M_fin", "other"))
    seq.append(x2[1])
    seq.append(I("M_fin:", "label"))
    A(text(finalize(seq)))
    A(stamp(o))
    A(stamp_out(o))
    A("M_end:\n    s_endpgm")
    A(spin_out(o, "M_pf", "s100", 21, "s96", FLAG_F))
    A(spin_out(o, "M_pc", "s101", 9, "s97", FLAG_C))
    A("M_xlate:")
    A(text(finalize(xdma(o, "s42", "s22"))))
    A(f"""    s_add_u32 s22, s22, {bstride}
    s_add_u32 s42, s42, {SLOT}
    s_branch M_xlater""")
    A("M_pool:")
    for t in range(9):
        A(f"    v_readfirstlane_b32 s{32+t}, v{vG+t if t < 8 else vA}")
    A(f"""    s_mov_b32 s27, 0
    s_add_u32 s54, s29, {L_POOL}
    s_mul_i32 s55, s20, {9*16*544}
    s_add_u32 s55, s55, {OV}
    s_mov_b32 exec_hi, 3""")
    for t in range(9):
        A(f"""    s_min_u32 s{32+t}, s{32+t}, 16
    s_mov_b32 s{44+t}, s27
    s_mov_b32 s56, 0
M_pool{t}:
    s_cmp_lt_u32 s56, s{32+t}
    s_cbranch_scc0 M_poole{t}
    s_add_u32 s57, s27, s56
    s_cmp_lt_u32 s57, {NPOOL}
    s_cbranch_scc0 M_poole{t}
    s_mul_i32 s57, s57, 544
    s_add_u32 m0, s57, s54
    s_add_u32 s57, s56, {t*16}
    s_mul_i32 s57, s57, 544
    s_add_u32 s57, s57, s55
    buffer_load_dwordx4 v{vL16}, s[16:19], s57 offen sc1 lds
    s_add_u32 s56, s56, 1
    s_branch M_pool{t}
M_poole{t}:
    s_add_u32 s27, s27, s{32+t}""")
    A("    s_mov_b32 exec_hi, -1\n    s_branch M_poolr")
    A("M_slow:")
    T, Aa, G = vTs, vAs, vGs
    for t in range(9):
        A(f"""    s_mov_b32 s56, 0
M_sl{t}:
    s_cmp_lt_u32 s56, s{32+t}
    s_cbranch_scc0 M_sle{t}
    s_add_u32 s57, s{44+t}, s56
    s_cmp_lt_u32 s57, {NPOOL}
    s_cbranch_scc0 M_slg{t}
    s_mul_i32 s57, s57, 544
    s_add_u32 s57, s57, s54
    v_add_u32 v{vTMP}, s57, v{vQ8}
    v_add_u32 v{vTMP+1}, s57, v{vL8}
    ds_read_b64 {vr(T,2)}, v{vTMP}
    ds_read_b64 {vr(Aa,2)}, v{vTMP+1}
    s_waitcnt lgkmcnt(0)
    s_branch M_slc{t}
M_slg{t}:
    s_add_u32 s57, s56, {t*16}
    s_mul_i32 s57, s57, 544
    s_add_u32 s57, s57, s55
    buffer_load_dwordx2 {vr(T,2)}, v{vQ8}, s[16:19], s57 offen sc1
    buffer_load_dwordx2 {vr(Aa,2)}, v{vL8}, s[16:19], s57 offen sc1
    s_waitcnt vmcnt(0)
M_slc{t}:
    v_xad_u32 v{T}, v{T}, v{vXor}, v{vRow}
    v_xad_u32 v{T+1}, v{T+1}, v{vXor}, v{vRow}
    ds_read2st64_b32 {vr(G,2)}, v{T} offset0:0 offset1:72
    ds_read2st64_b32 {vr(G+2,2)}, v{T+1} offset0:0 offset1:72
    s_add_u32 s56, s56, 1
    s_nop 7
    s_waitcnt lgkmcnt(0)
    v_smfmac_f32_16x16x32_bf16 {vr(vACC[0]+4*t,4)}, {vr(Aa,2)}, {vr(G,4)}, v{vCI}
    v_smfmac_f32_16x16x32_bf16 {vr(vACC[1]+4*t,4)}, {vr(Aa,2)}, {vr(G,4)}, v{vCI} abid:2
    s_branch M_sl{t}
M_sle{t}:""")
    A("    s_nop 7\n    s_cmp_eq_u32 s21, 0\n    s_cbranch_scc1 M_slowr0\n    s_branch M_slowr")
    A(gen_ftask(o))
    A(gen_ctask(o))
    A("M_codeend:")
    return "\n".join(L)

def gen(**kw):
    o = dict(DEF)
    o.update(kw)
    hdr = f"""; out = x @ prune_2of4(w) + b   (bf16, M=65536 K=576 N=576); generated by dev/gen3.py
; @launch grid=(256,1,1) block=(256,1,1) lds={LDS_BYTES}
.amdgcn_target "amdgcn-amd-amdhsa--gfx950"
.text
.globl {NAME}_kernel
"""
    kd = f"""
.section .rodata,"a"
.p2align 6
.amdhsa_kernel {NAME}_kernel
  .amdhsa_next_free_vgpr 512
  .amdhsa_next_free_sgpr 102
  .amdhsa_accum_offset 256
  .amdhsa_group_segment_fixed_size 0
  .amdhsa_kernarg_size 48
  .amdhsa_user_sgpr_count 2
  .amdhsa_user_sgpr_kernarg_segment_ptr 1
  .amdhsa_system_sgpr_workgroup_id_x 1
  .amdhsa_float_denorm_mode_32 3
.end_amdhsa_kernel
"""
    src = hdr + gen_main(o) + kd
    return "\n".join(l for l in src.split("\n") if l.strip()) + "\n"

if __name__ == "__main__":
    kw = {}
    out = f"/code/{NAME}.s"
    for a in sys.argv[1:]:
        if "=" in a:
            k, v = a.split("=", 1)
            assert k in DEF, k
            kw[k] = int(v) if v.lstrip("-").isdigit() else (eval(v) if v.startswith("[") else v)
        else:
            out = a
    open(out, "w").write(gen(**kw))
    print("wrote", out)
```

```python
import sys
from asmlib import *

NAME = "standalone__structured_sparse_n_m__ragged"
XB = 16 * 4096 * 576 * 2
WSB = 301989888
WF = 0
IDX = 331776
TABW = 9856
TAB = IDX + 84 * 512
OV = TAB + 4 * TABW
CTR = (OV + 36 * 16 * 544 + 1023) // 1024 * 1024
WS_USED = CTR + 1024
NF, NC = 84, 36
CNT_F, CNT_C = 0, 64
FLAG_F, FLAG_C = 128, 192
SLOT = 36864
NSLOT = 3
LTAB = NSLOT * SLOT
L_T0, L_CNT, L_BIAS, L_POOL = 9216, 9792, 9840, 10416
NPOOL = 3
L_X = L_POOL + NPOOL * 544
LTABW = L_X + 1024
L_MB = LTAB + 4 * LTABW
LDS_BYTES = L_MB + 16
SPIN = 1 << 17

DEF = dict(xnt="nt", stf="sc1", stf2="", inter=1, diag=0, nA=3, nF=2, nC=2, lag=8, eC=14, cper=5,
           gstep=1, book=140, b0=24, per=12, tord=[8, 0, 1, 2, 3, 4, 5, 6, 7], e1=[10, 44, 24], e0=[106, 137, 102],
           dma=[10, 18, 38, 46, 68, 76, 84, 98, 108], nostore=0, hold=1, wsc="sc1", chain=1, win=7, wins=0, rstep=1, slowat=5, bar2=16, claim=[90, 150], touch=1, ctouch=1, xtail=1)

DIAG = 1 << 20
def stamp(o, first=False):
    if not o["diag"]:
        return ""
    L = []
    if first:
        L += ["    s_mov_b32 s62, 0", "    v_mov_b32 v255, 0"]
    L += ["    s_mov_b32 s63, m0", "    s_memrealtime s[60:61]", "    s_memtime s[64:65]", "    s_waitcnt lgkmcnt(0)", "    s_mov_b32 m0, s62", "    v_writelane_b32 v255, s60, m0",
          "    s_add_u32 m0, s62, 32", "    v_writelane_b32 v255, s64, m0", "    s_add_u32 s62, s62, 1", "    s_mov_b32 m0, s63"]
    return "\n".join(L)
def stamp_out(o):
    if not o["diag"]:
        return ""
    L = ["    s_mov_b64 exec, -1", "    s_waitcnt vmcnt(0)", stamp(o), f"    s_mov_b32 s18, {WSB}",
         "    s_lshl_b32 s60, s2, 2", "    s_add_u32 s60, s60, s20", "    s_lshl_b32 s60, s60, 8", f"    s_add_u32 s60, s60, {DIAG}",
         "    v_mbcnt_lo_u32_b32 v0, -1, 0", "    v_mbcnt_hi_u32_b32 v0, -1, v0", "    v_lshlrev_b32 v0, 2, v0",
         "    buffer_store_dword v255, v0, s[16:19], s60 offen"]
    return "\n".join(L)

def lut_tables():
    l64 = 0
    l32 = 0
    for nk in range(16):
        keep = [j for j in range(4) if not (nk >> j) & 1]
        e = 0
        if len(keep) >= 2:
            ia, ib = keep[-2], keep[-1]
            for j in keep[:-2]:
                assert j < 2
                e |= 1 << j
        elif len(keep) == 1:
            ib = keep[0]
            ia = (ib + 1) % 4
            if ia > ib:
                ia, ib = ib, ia
        else:
            ia, ib = 0, 1
        l64 |= (ia | ib << 2) << (4 * nk)
        l32 |= e << (2 * nk)
    return l64, l32

vB0, vB1, vXor, vRow, vDma, vS4, vS2, vTA, vTQ, vCI, vL16 = range(1, 12)
vIDX = 12
vL8, vQ8 = 54, 55
vWF = 56
vACC = (124, 160)
vBB = 196
vT, vA, vG = 236, 240, 244
vTs, vAs, vGs = vA, vA + 2, vG
vTMP = vG + 4
vXw, vAt = 252, 253
GROUPS = [(0, (0, 1, 2)), (0, (3, 4)), (0, (5, 6)), (0, (7, 8)), (1, (0, 1, 2)), (1, (3, 4)), (1, (5, 6)), (1, (7, 8))]
GBUF = {0: 0, 1: 1, 2: 2, 3: 3, 4: 4, 5: 0, 6: 1, 7: 3, 8: 4}

def notkept(a):
    return f"""    v_and_b32 v44, 0x7fff, v{a}
    v_and_b32 v45, 0x7fff, v{a+1}
    v_and_b32 v46, 0x7fff, v{a+2}
    v_and_b32 v47, 0x7fff, v{a+3}
    v_max_u32 v48, v44, v45
    v_min_u32 v49, v44, v45
    v_max_u32 v50, v46, v47
    v_min_u32 v51, v46, v47
    v_min_u32 v48, v48, v50
    v_max3_u32 v48, v48, v49, v51
    v_max_u32 v48, 1, v48
    v_sub_u32 v47, v47, v48
    v_sub_u32 v46, v46, v48
    v_sub_u32 v45, v45, v48
    v_sub_u32 v44, v44, v48
    v_lshrrev_b32 v49, 31, v47
    v_alignbit_b32 v49, v49, v46, 31
    v_alignbit_b32 v49, v49, v45, 31
    v_alignbit_b32 v49, v49, v44, 31"""

def colcalc():
    return """    s_lshr_b32 s33, s31, 1
    s_lshl_b32 s33, s33, 5
    s_and_b32 s34, s31, 1
    s_lshl_b32 s34, s34, 2
    s_add_u32 s33, s33, s34
    s_lshl_b32 s34, s30, 7
    s_add_u32 s33, s33, s34                   ; 128w + 32u + 4hf
    s_lshl_b32 s34, s30, 4
    s_add_u32 s34, s34, 512
    s_cmp_lt_u32 s31, 8
    s_cselect_b32 s33, s33, s34
    s_cselect_b32 s34, 3, 2
    v_lshrrev_b32 v15, 2, v14
    v_lshlrev_b32 v15, s34, v15
    v_and_b32 v16, 3, v14
    v_add3_u32 v15, v15, v16, s33
    v_lshlrev_b32 v15, 1, v15"""

def signal(o, tag, ctr, flag, n):
    return f"""    s_waitcnt vmcnt(0)
{stamp(o)}
    s_barrier
    s_cmp_lg_u32 s20, 0
    s_cbranch_scc1 {tag}_done
    v_mov_b32 v16, 1
    v_mov_b32 v17, 1
    s_mov_b64 exec, 1
    buffer_atomic_add v16, off, s[68:71], 0 offset:{ctr} sc0 sc1
    s_waitcnt vmcnt(0)
    v_cmp_eq_u32 vcc, {n-1}, v16
    s_and_b64 exec, exec, vcc
    s_cbranch_execz {tag}_nf
    buffer_store_dword v17, off, s[68:71], 0 offset:{flag} sc1
{tag}_nf:
    s_mov_b64 exec, -1
{tag}_done:
{"    s_barrier" if o["hold"] else ""}
    s_branch M_x"""

def gen_ftask(o):
    L = []
    A = L.append
    l64, l32 = lut_tables()
    A(f"""F_task:
    s_mul_i32 s30, s2, 49
    s_lshr_b32 s30, s30, 10                   ; w = wg/21
    s_mul_i32 s31, s30, 21
    s_sub_u32 s35, s2, s31
    s_lshl_b32 s35, s35, 2
    s_add_u32 s35, s35, s20                   ; p
    s_min_u32 s35, s35, 80
    s_mul_i32 s32, s35, 57
    s_lshr_b32 s32, s32, 9                    ; s
    s_mul_i32 s31, s32, 9
    s_sub_u32 s31, s35, s31                   ; t
{colcalc()}
    v_mul_u32_u24 v16, {16*1152}, v13
    v_add_u32 v15, v15, v16
    s_mul_i32 s36, s32, {64*1152}
    s_add_u32 s37, s36, 4608
    s_add_u32 s38, s36, 9216
    s_add_u32 s39, s36, 13824
    s_waitcnt lgkmcnt(0)
    s_mov_b32 s4, s74
    s_mov_b32 s5, s75""")
    for j in range(16):
        A(f"    buffer_load_ushort v{16+j}, v15, s[4:7], s{36+j//4} offen offset:{(j%4)*1152}")
    A(f"""    s_mov_b32 s16, s82
    s_mov_b32 s17, s83
    s_mov_b32 s68, s80
    s_mov_b32 s69, s81
    s_mov_b32 s36, {l64 & 0xffffffff}
    s_mov_b32 s37, {l64 >> 32}
    s_mov_b32 s38, 0x0202
    v_mov_b32 v41, 0x01000100
    v_mov_b32 v40, 0
    s_mul_i32 s39, s30, 81
    s_add_u32 s39, s39, s35
    s_lshl_b32 s39, s39, 10
    s_lshl_b32 s40, s2, 9
    s_add_u32 s40, s40, {IDX}
    s_lshl_b32 s33, s20, 1
    v_add_u32 v42, s33, v{vL8}
    s_mov_b32 s41, {o['nF']}""")
    for g in range(4):
        a = 16 + 4 * g
        A(f"    s_waitcnt vmcnt({12 - 4*g})")
        A(notkept(a))
        A(f"""    v_lshlrev_b32 v50, 2, v49
    v_lshrrev_b64 v[52:53], v50, s[36:37]
    v_lshl_or_b32 v44, v{a+1}, 16, v{a}
    v_lshl_or_b32 v45, v{a+3}, 16, v{a+2}
    v_and_b32 v46, 3, v52
    v_bfe_u32 v47, v52, 2, 2
    v_and_b32 v52, 15, v52
    v_lshl_or_b32 v46, v47, 16, v46
    v_lshl_or_b32 v40, v52, {4*g}, v40
    v_mad_u32_u24 v46, v46, s38, v41
    v_perm_b32 v{32+g}, v45, v44, v46""")
    A(f"""    ds_write_b16 v42, v40
    buffer_store_dwordx4 v[32:35], v{vL16}, s[16:19], s39 offen sc1
    s_waitcnt lgkmcnt(0)
    s_barrier
    s_cmp_lg_u32 s20, 0
    s_cbranch_scc1 F_sig
    s_mov_b32 exec_hi, 0
    ds_read_b128 v[36:39], v{vL16}
    s_waitcnt lgkmcnt(0)
    buffer_store_dwordx4 v[36:39], v{vL16}, s[16:19], s40 offen sc1
    s_mov_b64 exec, -1
    s_cmp_lg_u32 s2, 0
    s_cbranch_scc1 F_sig
    v_mov_b32 v44, 0
    v_mov_b32 v45, 0
    v_mov_b32 v46, 0
    v_mov_b32 v47, 0
    s_mov_b32 s40, {CTR}
    buffer_store_dwordx4 v[44:47], v{vL16}, s[16:19], s40 offen sc1
F_sig:
{stamp(o)}
{signal(o, 'F', CNT_F, FLAG_F, NF)}""")
    return "\n".join(L)

def gen_ctask(o):
    FL, LI, TT = 9728, 10752, 11520
    L = []
    A = L.append
    l64, l32 = lut_tables()
    A(f"""C_task:
    s_sub_u32 s35, s2, {NF}                   ; tau
    s_mul_i32 s30, s35, 57
    s_lshr_b32 s30, s30, 9                    ; w
    s_mul_i32 s31, s30, 9
    s_sub_u32 s31, s35, s31                   ; t
{colcalc()}
    v_lshrrev_b32 v17, 4, v0                  ; 4*qa+g
    v_mul_u32_u24 v16, {4*1152}, v17
    v_add_u32 v15, v15, v16
    s_mov_b32 s36, 0
    s_waitcnt lgkmcnt(0)
    s_mov_b32 s4, s74
    s_mov_b32 s5, s75""")
    for r in range(9):
        for j in range(4):
            A(f"    buffer_load_ushort v{60+4*r+j}, v15, s[4:7], s36 offen offset:{j*1152}")
        if r < 8:
            A(f"    s_add_u32 s36, s36, {64*1152}")
    A(f"""    s_mov_b32 s16, s82
    s_mov_b32 s17, s83
    s_mov_b32 s68, s80
    s_mov_b32 s69, s81
    s_mov_b32 s41, {o['nC']}
    v_lshlrev_b32 v18, 2, v0                  ; tid*4
    v_mov_b32 v19, 0
    ds_write_b32 v18, v19 offset:9216
    ds_write_b32 v18, v19 offset:{FL}
    v_mov_b32 v19, 144
    v_lshlrev_b32 v20, 1, v0
    v_and_b32 v20, 8, v20
    s_cmp_eq_u32 s20, 3
    s_cbranch_scc1 C_a
    ds_write_b32 v18, v19 offset:{LI}
    ds_write_b32 v18, v20 offset:{TT}
C_a:
    s_mov_b32 s37, {l32}
    s_mov_b32 s38, 0xffff
    v_lshlrev_b32 v17, 2, v17
    s_waitcnt lgkmcnt(0)
    s_barrier""")
    for r in range(9):
        a = 60 + 4 * r
        A(f"    s_waitcnt vmcnt({32 - 4*r})")
        A(notkept(a))
        A(f"""    v_lshlrev_b32 v50, 1, v49
    v_lshrrev_b32 v50, v50, s37
    v_lshl_or_b32 v44, v{a+1}, 16, v{a}
    v_and_b32 v46, 1, v50
    v_bfe_u32 v47, v50, 1, 1
    v_lshl_or_b32 v46, v47, 16, v46
    v_mul_u32_u24 v46, s38, v46
    v_and_b32 v44, v44, v46
    ds_write_b32 v18, v44 offset:{r*1024}
    ds_or_b32 v17, v44 offset:{FL + r*64}""")
    A(f"""    v_lshlrev_b32 v19, 2, v12                 ; lane*4
    s_waitcnt lgkmcnt(0)
    s_barrier
    ds_read_b32 v20, v19 offset:{FL}
    ds_read_b32 v21, v19 offset:{FL+256}
    ds_read_b32 v22, v19 offset:{FL+512}
    s_mov_b32 s56, 0x55555555
    s_mov_b32 s57, 0x55555555
    s_waitcnt lgkmcnt(0)
    v_cmp_ne_u32 s[44:45], 0, v20
    v_cmp_ne_u32 s[46:47], 0, v21
    v_cmp_ne_u32 s[48:49], 0, v22
    s_nop 3
    s_bcnt1_i32_b64 s36, s[44:45]
    s_bcnt1_i32_b64 s37, s[46:47]
    s_bcnt1_i32_b64 s38, s[48:49]
    s_add_u32 s37, s37, s36
    s_add_u32 s38, s38, s37                   ; total
    s_and_b64 s[50:51], s[44:45], s[56:57]
    s_bcnt1_i32_b64 s39, s[50:51]
    s_and_b64 s[50:51], s[46:47], s[56:57]
    s_bcnt1_i32_b64 s40, s[50:51]
    s_add_u32 s40, s40, s39
    s_cmp_eq_u32 s20, 0
    s_cselect_b32 s36, 0, s36
    s_cselect_b32 s39, 0, s39
    s_cselect_b64 s[44:45], s[44:45], s[46:47]
    s_cmp_ge_u32 s20, 2
    s_cselect_b32 s36, s37, s36
    s_cselect_b32 s39, s40, s39
    s_cselect_b64 s[44:45], s[48:49], s[44:45]
    s_cmp_eq_u32 s20, 3
    s_cselect_b64 s[44:45], 0, s[44:45]
    s_and_b64 s[50:51], s[44:45], s[56:57]
    v_mov_b32 v20, s36
    v_mbcnt_lo_u32_b32 v20, s44, v20
    v_mbcnt_hi_u32_b32 v20, s45, v20          ; rank
    v_mov_b32 v21, s39
    v_mbcnt_lo_u32_b32 v21, s50, v21
    v_mbcnt_hi_u32_b32 v21, s51, v21
    v_sub_u32 v22, v20, v21
    v_sub_u32 v22, 15, v22
    v_cndmask_b32 v21, v22, v21, s[56:57]
    v_sub_u32 v22, 15, v21
    v_lshrrev_b32 v23, 3, v21
    v_min_u32 v21, v21, v22                   ; p' (0..7)
    v_and_b32 v22, 1, v21
    v_lshl_or_b32 v24, v22, 1, v23            ; qb
    v_lshrrev_b32 v21, 1, v21                 ; jj
    v_lshl_or_b32 v25, v24, 2, v21            ; T index
    v_and_b32 v26, 2, v21
    v_or_b32 v26, v26, v22                    ; qa'
    v_and_b32 v21, 1, v21
    v_lshl_or_b32 v21, v23, 1, v21            ; g'
    v_lshl_or_b32 v26, v26, 2, v21
    v_cmp_gt_u32 vcc, 16, v20
    v_lshrrev_b32 v27, 4, v0
    v_and_b32 v28, 15, v0
    v_cndmask_b32 v25, v20, v25, vcc
    v_cndmask_b32 v26, v20, v26, vcc
    v_lshlrev_b32 v25, 2, v25
    v_lshlrev_b32 v26, 2, v26
    v_lshlrev_b32 v27, 10, v27
    v_lshl_or_b32 v27, v28, 3, v27
    s_mov_b64 exec, s[44:45]
    ds_write_b32 v26, v0 offset:{LI}
    ds_write_b32 v25, v27 offset:{TT}
    s_mov_b64 exec, -1
    s_add_u32 s38, s38, 7
    s_lshr_b32 s38, s38, 3
    s_max_u32 s38, s38, 2
    s_sub_u32 s38, s38, 2
    s_mul_i32 s36, s30, {TABW}
    s_add_u32 s36, s36, {TAB}
    v_lshlrev_b32 v20, 4, v13
    v_lshlrev_b32 v21, 2, v14
    s_waitcnt lgkmcnt(0)
    s_barrier
    s_cmp_eq_u32 s20, 0
    s_cbranch_scc0 C_ov
    ds_read_b128 v[24:27], v20 offset:{LI}
    ds_read_b128 v[32:35], v{vL16} offset:{TT}
    s_lshl_b32 s37, s31, 10
    s_add_u32 s37, s37, s36
    s_lshl_b32 s39, s31, 6
    s_add_u32 s39, s39, s36
    s_add_u32 s39, s39, {L_T0}
    s_lshl_b32 s40, s31, 2
    s_add_u32 s40, s40, s36
    s_add_u32 s40, s40, {L_CNT}
    s_waitcnt lgkmcnt(1)
    v_lshl_add_u32 v24, v24, 6, v21
    v_lshl_add_u32 v25, v25, 6, v21
    v_lshl_add_u32 v26, v26, 6, v21
    v_lshl_add_u32 v27, v27, 6, v21
    ds_read_b32 v28, v24
    ds_read_b32 v29, v25
    ds_read_b32 v30, v26
    ds_read_b32 v31, v27
    v_mov_b32 v22, s38
    s_waitcnt lgkmcnt(0)
    buffer_store_dwordx4 v[28:31], v{vL16}, s[16:19], s37 offen sc1
    s_mov_b64 exec, 15
    buffer_store_dwordx4 v[32:35], v{vL16}, s[16:19], s39 offen sc1
    s_mov_b64 exec, 1
    buffer_store_dword v22, off, s[16:19], s40 sc1
    s_mov_b64 exec, -1
    s_branch C_sig
C_ov:                                         ; waves 1..3: overflow half chunks c = wave-1, +3, ...
    s_sub_u32 s39, s20, 1
    v_lshlrev_b32 v20, 3, v13
C_ovl:
    s_cmp_lt_u32 s39, s38
    s_cbranch_scc0 C_sig
    s_lshl_b32 s40, s39, 5
    v_add_u32 v22, s40, v20
    v_add_u32 v23, s40, v{vL16}
    ds_read_b64 v[24:25], v22 offset:{LI+64}
    ds_read_b128 v[32:35], v23 offset:{TT+64}
    s_lshl_b32 s37, s35, 4
    s_add_u32 s37, s37, s39
    s_mul_i32 s37, s37, 544
    s_add_u32 s37, s37, {OV}
    s_waitcnt lgkmcnt(1)
    v_lshl_add_u32 v24, v24, 6, v21
    v_lshl_add_u32 v25, v25, 6, v21
    ds_read_b32 v28, v24
    ds_read_b32 v29, v25
    s_waitcnt lgkmcnt(0)
    buffer_store_dwordx2 v[28:29], v{vL8}, s[16:19], s37 offen sc1
    s_mov_b64 exec, 3
    buffer_store_dwordx4 v[32:35], v{vL16}, s[16:19], s37 offen offset:512 sc1
    s_mov_b64 exec, -1
    s_add_u32 s39, s39, 3
    s_branch C_ovl
C_sig:
{stamp(o)}
{signal(o, 'C', CNT_C, FLAG_C, NC)}""")
    return "\n".join(L)

def wfrag(p):
    return vr(4 * p, 4, "a") if p < 64 else vr(vWF + 4 * (p - 64), 4)

def smf(rb, s, t, buf):
    p = s * 9 + t
    return smfmac(vr(vACC[rb] + 4 * t, 4), wfrag(p), vr(buf, 8), vr(vIDX + p // 2), p & 1)

def group_smf(gi, chain=True):
    rb, ks = GROUPS[gi]
    if chain:
        return [smf(rb, s, t, vBB + 8 * GBUF[s]) for t in range(9) for s in ks]
    return [smf(rb, s, t, vBB + 8 * GBUF[s]) for s in ks for t in range(9)]

def bread_to(rb, s, b):
    off = rb * 18432 + s * 1024
    return [ds_read("ds_read_b128", vr(b, 4), vr(vB0), f"offset:{off}"),
            ds_read("ds_read_b128", vr(b + 4, 4), vr(vB1), f"offset:{off}")]

def group_reads(gi):
    rb, ks = GROUPS[gi]
    return sum([bread_to(rb, s, vBB + 8 * GBUF[s]) for s in ks], [])

def bias_init(rb, t):
    return ds_read("ds_read_b128", vr(vACC[rb] + 4 * t, 4), vr(vTQ), f"offset:{L_BIAS + t*64}")

def tread(t, tok=None):
    i = ds_read("ds_read_b128", vr(vT, 4), vr(vTQ), f"offset:{L_T0 + t*64}")
    if tok:
        i.rd |= regs(tok)
    return i

def aread(t):
    return ds_read("ds_read_b128", vr(vA, 4), vr(vTA), f"offset:{t*1024}")

def xad(j):
    return valu(f"v_xad_u32 v{vT+j}, v{vT+j}, v{vXor}, v{vRow}", [vr(vT + j), vr(vXor), vr(vRow)], [vr(vT + j)])

def gather(j):
    return ds_read("ds_read2st64_b32", vr(vG + 2 * j, 2), vr(vT + j), "offset0:0 offset1:72")

def csmf(rb, t):
    return smfmac(vr(vACC[rb] + 4 * t, 4), vr(vA, 4), vr(vG, 8), vr(vCI), rb)

def epilogue(rb, soff, o, init=True):
    gs = []
    for ln in range(2):
        g = []
        a = vACC[rb] + 16 * ln
        X, Y, Z = a, a + 8, a + 4
        for j in range(4):
            g.append(valu(f"v_cvt_pk_bf16_f32 v{X+j}, v{a+2*j}, v{a+2*j+1}", [vr(a + 2 * j, 2)], [vr(X + j)]))
        for j in range(4):
            g.append(valu(f"v_cvt_pk_bf16_f32 v{Y+j}, v{a+8+2*j}, v{a+8+2*j+1}", [vr(a + 8 + 2 * j, 2)], [vr(Y + j)]))
        if init:
            g.append(bias_init(rb, 4 * ln + 3))
        for j in range(4):
            g.append(valu(f"v_cndmask_b32_dpp v{Z+j}, v{X+j}, v{Y+j}, vcc row_ror:8 row_mask:0xf bank_mask:0xf", [vr(X + j), vr(Y + j)], [vr(Z + j)]))
        g.append(I(f"buffer_store_dwordx4 {vr(Z,4)}, v{vS4}, s[12:15], {soff[1]} offen offset:{ln*128} {o['stf']}".rstrip(), "store", rd=[vr(Z, 4), vr(vS4)]))
        for j in range(4):
            g.append(valu(f"v_mov_b32_dpp v{X+j}, v{Y+j} row_ror:8 row_mask:0xf bank_mask:0xc", [vr(X + j), vr(Y + j)], [vr(X + j)]))
        g.append(I(f"buffer_store_dwordx4 {vr(X,4)}, v{vS4}, s[12:15], {soff[0]} offen offset:{ln*128} {o['stf']}".rstrip(), "store", rd=[vr(X, 4), vr(vS4)]))
        if init:
            g += [bias_init(rb, 4 * ln + 1), bias_init(rb, 4 * ln + 2), bias_init(rb, 4 * ln)]
        gs.append(g)
    g = []
    a = vACC[rb] + 32
    for j in range(2):
        g.append(valu(f"v_cvt_pk_bf16_f32 v{a+j}, v{a+2*j}, v{a+2*j+1}", [vr(a + 2 * j, 2)], [vr(a + j)]))
    g.append(I(f"ds_write_b64 v{vXw}, {vr(a,2)} offset:{(1-rb)*2*LTABW}", "dsw", rd=[vr(a, 2), vr(vXw)]))
    if init:
        g.append(bias_init(rb, 8))
    gs.append(g)
    if o["nostore"]:
        gs = [[i for i in g if i.kind != "store"] for g in gs]
    return gs

def xch(o, soff):
    return [ds_read("ds_read_b128", vr(vG, 4), vr(vTA), f"offset:{L_X}"),
            I(f"buffer_store_dwordx4 {vr(vG,4)}, v{vS2}, s[12:15], {soff} offen {o['stf']}".rstrip(), "store", rd=[vr(vG, 4), vr(vS2)])]

def xdma(o, m0base, soff):
    g = []
    for s in range(9):
        if s == 0:
            g.append(salu(f"s_mov_b32 m0, {m0base}"))
        else:
            g.append(salu("s_add_u32 m0, m0, 896"))
        g.append(I(f"buffer_load_dwordx4 v{vDma}, s[8:11], {soff} offen offset:{s*128} {o['xnt']} lds", "dma", rd=[vr(vDma), soff]))
    return g

def spin(tag, ctr, target):
    return f"""    v_readfirstlane_b32 s30, v0
    s_mov_b32 s31, {SPIN}
    s_cmp_ge_u32 s30, {target}
    s_cbranch_scc0 {tag}_spin
{tag}_ok:"""

def spin_out(tag, ctr, target):
    return f"""{tag}_spin:
    s_sleep 2
    buffer_load_dword v0, off, s[68:71], 0 offset:{ctr} sc1
    s_sub_u32 s31, s31, 1
    s_cbranch_scc1 M_end
    s_waitcnt vmcnt(0)
    v_readfirstlane_b32 s30, v0
    s_nop 0
    s_cmp_ge_u32 s30, {target}
    s_cbranch_scc0 {tag}_spin
    s_branch {tag}_ok"""

def ctouch(o):
    if not o["ctouch"]:
        return ""
    return f"""    s_getpc_b64 s[84:85]
    s_lshr_b32 s30, s2, 3
    s_and_b32 s30, s30, 15
    s_lshl_b32 s30, s30, 11
    s_and_b32 s84, s84, 0xffffff00
    s_mov_b32 s86, M_codeend-{NAME}_kernel
    s_mov_b32 s87, 0x20000
    v_lshlrev_b32 v254, 3, v0
    s_mov_b32 exec_lo, 0x00010001
    s_mov_b32 exec_hi, 0x00010001
    buffer_load_dword v254, v254, s[84:87], s30 offen
    s_mov_b64 exec, -1"""

def gen_main(o):
    L = []
    A = L.append
    bstride = 256 * SLOT if o["inter"] else SLOT
    wgmul = SLOT if o["inter"] else 8 * SLOT
    tord = o["tord"]
    A(f""".p2align 8
.type {NAME}_kernel,@function
{NAME}_kernel:
    s_cmp_ge_u32 s2, 256
    s_cbranch_scc1 M_end
{stamp(o, True)}
    s_load_dwordx8 s[72:79], s[0:1], 0        ; x w b out
    s_load_dwordx4 s[80:83], s[0:1], 32
    v_lshrrev_b32 v20, 6, v0
    v_and_b32 v12, 63, v0                     ; lane
    v_readfirstlane_b32 s20, v20              ; wave
    v_lshrrev_b32 v13, 4, v12                 ; q
    v_and_b32 v14, 15, v12                    ; m
    v_lshlrev_b32 v{vL16}, 4, v12
    v_lshlrev_b32 v{vL8}, 3, v12
{ctouch(o)}
    s_mov_b32 s6, {576*576*2}
    s_mov_b32 s7, 0x20000
    s_mov_b32 s18, {WS_USED}
    s_mov_b32 s19, 0x20000
    s_mov_b32 s70, 256
    s_mov_b32 s71, 0x20000
    s_cmp_lt_u32 s2, {NF}
    s_cbranch_scc1 F_task
    s_cmp_lt_u32 s2, {NF+NC}
    s_cbranch_scc1 C_task
    s_mov_b32 s41, {o['nA']}
{stamp(o)}
{stamp(o)}
M_x:
    ; x DMA lane offset: (tid/8)*1152 + ((tid%8) ^ ((tid/16)%8))*16
    v_lshrrev_b32 v22, 3, v0
    v_mul_u32_u24 v22, 1152, v22
    v_lshrrev_b32 v23, 4, v0
    v_xor_b32 v23, v23, v0
    v_and_b32 v23, 7, v23
    v_lshl_add_u32 v{vDma}, v23, 4, v22
    s_mov_b32 s10, {XB}
    s_mov_b32 s11, 0x20000
    s_mov_b32 s86, 1152
    s_mov_b32 s87, 0x20000
    s_mul_i32 s22, s2, {wgmul}
    s_mul_i32 s26, s20, 9216
    s_mov_b32 s24, s22
    s_mov_b32 s42, s26
    s_lshl_b32 s28, s20, 8
    s_lshl_b32 s30, s20, 5
    v_lshlrev_b32 v25, 4, v13
    v_lshlrev_b32 v26, 3, v13
    s_mov_b32 s21, 0
    s_waitcnt lgkmcnt(0)
    s_mov_b32 s8, s72
    s_mov_b32 s9, s73
    s_mov_b32 s84, s76
    s_mov_b32 s85, s77
    s_mov_b32 s68, s80
    s_mov_b32 s69, s81""")
    for u in range(4):
        A(f"    buffer_load_dwordx4 {vr(vBB+4*u,4)}, v25, s[84:87], s28 offen offset:{u*64}")
    A(f"    buffer_load_dwordx2 {vr(vBB+16,2)}, v26, s[84:87], s30 offen offset:1024")
    A(f"""M_xl:
    s_add_u32 s21, s21, 1
    s_cmp_lt_u32 s21, s41
    s_cbranch_scc1 M_xn
    buffer_load_dword v0, off, s[68:71], 0 offset:{FLAG_F} sc1
M_xn:""")
    A(text(finalize(xdma(o, "s42", "s22"))))
    A(f"""    s_add_u32 s22, s22, {bstride}
    s_add_u32 s42, s42, {SLOT}
    s_cmp_lt_u32 s21, s41
    s_cbranch_scc1 M_xl
    s_mov_b32 s12, s78
    s_mov_b32 s13, s79
    s_mov_b32 s14, {XB}
    s_mov_b32 s15, 0x20000
    s_mov_b32 s16, s82
    s_mov_b32 s17, s83
    s_mul_i32 s29, s20, {LTABW}
    s_add_u32 s29, s29, {LTAB}
    v_lshrrev_b32 v24, 1, v14                 ; f(m)
    v_and_b32 v27, 7, v14
    v_lshlrev_b32 v22, 7, v27
    v_lshl_or_b32 v{vXor}, v24, 4, v22        ; (f<<4) | (m%8)<<7
    v_lshrrev_b32 v23, 3, v14
    v_mul_u32_u24 v{vRow}, 9216, v23
    v_xad_u32 v{vB0}, v25, v{vXor}, v{vRow}
    v_xor_b32 v{vB1}, 64, v{vB0}
    v_add_u32 v{vTQ}, s29, v25
    v_add_u32 v{vTA}, s29, v{vL16}
    v_mul_u32_u24 v24, 1152, v27
    v_lshl_add_u32 v24, v23, 6, v24
    v_add3_u32 v{vS4}, v24, v25, s28          ; (m%8)*1152 + (m/8)*64 + q*16 + w*256
    v_lshrrev_b32 v24, 3, v12
    v_xor_b32 v28, v24, v12
    v_and_b32 v28, 7, v28
    v_mul_u32_u24 v24, 1152, v24
    v_lshl_add_u32 v24, v28, 4, v24
    v_add_u32 v{vS2}, 1024, v24               ; (l/8)*1152 + 1024 + ((l%8)^(l/8))*16
    s_lshl_b32 s30, s20, 1
    v_lshrrev_b32 v24, 1, v13
    v_add_u32 v24, s30, v24
    v_xor_b32 v24, v24, v27
    v_lshl_add_u32 v24, v24, 4, v22
    v_and_b32 v28, 8, v26
    v_mul_u32_u24 v29, {LTABW}, v23
    v_add3_u32 v24, v24, v28, v29
    v_add_u32 v{vXw}, {LTAB+L_X}, v24
    s_cmp_eq_u32 s20, 0
    s_mov_b32 s31, {0x40000000 + L_MB + 8}
    s_cselect_b32 s30, {L_MB}, s31
    v_mov_b32 v{vAt}, s31
    v_writelane_b32 v{vAt}, s30, 0
    s_lshr_b32 s30, s2, 3
    s_and_b32 s30, s30, 3                     ; shard
    s_lshl_b32 s92, s30, 8
    s_add_u32 s92, s92, {CTR - L_MB}
    s_add_u32 s30, s30, 768
    s_mul_i32 s93, s30, {SLOT}
    s_mov_b32 s94, {4*SLOT}
    s_and_b32 s95, s20, 1
    s_mul_i32 s95, s95, 9216
    v_add_u32 v{vQ8}, 512, v26
    v_mov_b32 v{vCI}, 0xeeee4444
    s_mov_b32 vcc_lo, 0xff00ff00
    s_mov_b32 vcc_hi, 0xff00ff00
    s_add_u32 s59, s24, 9216
    s_mul_i32 s43, s20, {81*1024}
    s_mul_i32 s53, s20, {21*512}
    s_add_u32 s53, s53, {IDX}
    s_mul_i32 s67, s20, {TABW}
    s_add_u32 s67, s67, {TAB}
{stamp(o)}
{"    s_waitcnt vmcnt(10)" if o["diag"] else ""}
{stamp(o)}
    s_waitcnt vmcnt(9)""")
    for j in range(18):
        A(f"    v_lshlrev_b32 v{vACC[0]+2*j}, 16, v{vBB+j}\n    v_and_b32 v{vACC[0]+2*j+1}, 0xffff0000, v{vBB+j}")
    A("    s_mov_b32 exec_lo, 0x00010001\n    s_mov_b32 exec_hi, 0x00010001")
    for t in range(9):
        A(f"    ds_write_b128 v{vTQ}, {vr(vACC[0]+4*t,4)} offset:{L_BIAS+t*64}")
    A("    s_mov_b64 exec, -1")
    if o["xtail"]:
        A(f"""    s_cmp_lt_u32 s2, {NF+NC}
    s_cbranch_scc1 M_nt
    s_sub_u32 s30, s2, {NF+NC}
    s_lshl_b32 s30, s30, 2
    s_add_u32 s30, s30, s20
    s_lshl_b32 s30, s30, 13
    s_sub_u32 s30, {XB - 8192}, s30
    v_lshlrev_b32 v{vG}, 3, v{vL16}""")
        for r in range(o["xtail"]):
            A(f"    buffer_load_dword v{vG+1+r}, v{vG}, s[8:11], s30 offen")
            A(f"    s_sub_u32 s30, s30, {(256-NF-NC)*4*8192}")
        A("M_nt:")
    A(stamp(o))
    A(spin("M_pf", FLAG_F, 1))
    A(stamp(o))

    lag, eC, cper = o["lag"], o["eC"], o["cper"]
    def wload(p):
        g = []
        if p % 4 == 0:
            r = p // 4
            if r and r % 8 == 0:
                g.append(salu("s_add_u32 s53, s53, 4096"))
            g.append(I(f"buffer_load_dwordx2 {vr(vIDX+2*r,2)}, v{vL8}, s[16:19], s53 offen offset:{(r%8)*512} {o['wsc']}", "load", rd=[vr(vL8)], wr=[vr(vIDX + 2 * r, 2)]))
            if p:
                g.append(salu("s_add_u32 s43, s43, 4096"))
        g.append(I(f"buffer_load_dwordx4 {wfrag(p)}, v{vL16}, s[16:19], s43 offen offset:{(p%4)*1024} {o['wsc']}", "load", rd=[vr(vL16)], wr=[wfrag(p)]))
        return g
    def pbuf(rb, s):
        return vBB + 8 * ((0, 1)[s & 1] if rb == 0 else (4, 3)[s & 1])
    seq = []
    if o["touch"]:
        A(f"""    s_lshr_b32 s30, s2, 3
    s_lshl_b32 s30, s30, 2
    s_add_u32 s30, s30, s20
    s_mul_i32 s31, s30, 1425
    s_lshr_b32 s31, s31, 16
    s_mul_i32 s31, s31, 46
    s_sub_u32 s30, s30, s31
    s_lshl_b32 s30, s30, 13
    v_lshlrev_b32 v0, 3, v{vL16}
    s_mov_b32 s18, {TAB}
    buffer_load_dword v0, v0, s[16:19], s30 offen sc1
    s_mov_b32 s18, {WS_USED}""")
    for p in range(lag):
        seq += wload(p)
    seq += [bias_init(1, t) for t in range(9)]
    bar = I("s_barrier", "other", rd=[wfrag(0)])
    seq.append(bar)
    seq += bread_to(0, 0, pbuf(0, 0)) + bread_to(1, 0, pbuf(1, 0))
    e_tab = eC + lag + 1
    e_cnt = e_tab + lag + 1
    e_cor = e_cnt + 2
    assert e_cor + 9 * cper <= 81, e_cor
    extra = {e: [] for e in range(82)}
    extra[eC].append(I(f"buffer_load_dword v0, off, s[68:71], 0 offset:{FLAG_C} sc1", "load", wr=["v0"]))
    g = [I(spin("M_pc", FLAG_C, 1).strip(), "other", rd=["v0"]), salu("s_mov_b32 m0, s29")]
    for j in range(10):
        if j % 4 == 0 and j:
            g += [salu("s_add_u32 s67, s67, 4096"), salu("s_add_u32 m0, m0, 4096")]
        if j == 9:
            g.append(salu("s_mov_b32 exec_hi, 0x7f"))
        g.append(I(f"buffer_load_dwordx4 v{vL16}, s[16:19], s67 offen offset:{(j%4)*1024} sc1 lds", "dma", rd=[vr(vL16)], wr=[f"@tab{j}"]))
    g.append(salu("s_mov_b32 exec_hi, -1"))
    extra[e_tab] += g
    c0 = I(f"v_mov_b32 v0, s29", "valu", wr=["v0"])
    c1 = ds_read("ds_read_b128", vr(vG, 4), "v0", f"offset:{L_CNT}"); c1.rd |= regs("@tab9")
    extra[e_cnt] += [c0, c1, ds_read("ds_read_b128", vr(vG + 4, 4), "v0", f"offset:{L_CNT+16}"), ds_read("ds_read_b32", vr(vA), "v0", f"offset:{L_CNT+32}"), tread(tord[0])]
    extra[e_cnt + 1] += [valu(f"v_or3_b32 v0, v{vG}, v{vG+1}, v{vG+2}", [vr(vG, 3)], ["v0"]),
                         valu(f"v_or3_b32 v0, v0, v{vG+3}, v{vG+4}", [vr(vG + 3, 2)], ["v0"]),
                         valu(f"v_or3_b32 v0, v0, v{vG+5}, v{vG+6}", [vr(vG + 5, 2)], ["v0"]),
                         valu(f"v_or3_b32 v0, v0, v{vG+7}, v{vA}", [vr(vG + 7), vr(vA)], ["v0"]),
                         I("s_nop 0\n    v_readfirstlane_b32 s27, v0\n    s_nop 0\n    s_cmp_lg_u32 s27, 0\n    s_cbranch_scc1 M_pool\nM_poolr:", "other")]
    for k in range(9):
        e = e_cor + k * cper
        extra[e] += [xad(0), xad(1), gather(0), gather(1), aread(tord[k])]
        extra[e + 1] += [xad(2), xad(3), gather(2), gather(3)] + ([tread(tord[k + 1])] if k < 8 else [])
        extra[e + cper - 1] += [csmf(0, tord[k]), csmf(1, tord[k])]
    for e in range(81):
        s, t = divmod(e, 9)
        if e + lag < 81:
            seq += wload(e + lag)
        if t == 1 and s < 8:
            seq += bread_to(0, s + 1, pbuf(0, s + 1))
        if t == 2 and s < 8:
            seq += bread_to(1, s + 1, pbuf(1, s + 1))
        seq.append(smf(0, s, t, pbuf(0, s)))
        if s < 7:
            seq.append(smf(1, s, t, pbuf(1, s)))
        seq += extra[e]
    if o["diag"]:
        seq.append(I(stamp(o).strip(), "lgkm0"))
    seq.append(I(f"""s_cmp_lt_u32 s21, 2
    s_cbranch_scc1 M_xlate
M_xlater:
    s_mov_b32 s21, 0
    s_cmp_lg_u32 s27, 0
    s_cbranch_scc1 M_slow
M_slowr0:""", "other"))
    seq += sum(epilogue(0, ("s24", "s59"), o), [])
    seq += [salu("s_mov_b32 s21, 1"), salu(f"s_mov_b32 s25, {SLOT}"),
            salu(f"s_add_u32 s90, s24, {bstride}"),
            salu(f"s_add_u32 s22, s90, {bstride}"),
            salu(f"s_add_u32 s28, s26, {2*SLOT}"),
            salu("s_cmp_eq_u32 s41, 3"),
            salu(f"s_cselect_b32 s88, 0, {XB}"),
            salu(f"s_cselect_b32 s89, 0x30000, s28"),
            salu("s_add_u32 s23, s24, 18432"),
            salu("s_cmp_lt_u32 s20, 2"),
            salu("s_cselect_b32 s66, s23, s24"),
            salu("s_add_u32 s66, s66, s95"),
            valu("v_mov_b32 v0, s22", [], ["v0"]),
            I(f"ds_write_b32 v{vAt}, v0", "dsw", rd=["v0", vr(vAt)]),
            valu(f"v_mov_b32 v0, {L_MB}", [], ["v0"])]
    seq += [valu(f"v_add_u32 v{r}, {SLOT}, v{r}", [vr(r)], [vr(r)]) for r in (vRow, vB0, vB1)]
    A(text(finalize(seq, vm=True)))

    gorder = [7, 0, 1, 2, 3, 4, 5, 6]
    mains = []
    gstart = []
    for gi in gorder:
        gstart.append(len(mains))
        mains += group_smf(gi, o["chain"])
    b0, per = o["b0"], o["per"]
    stream = []
    pos = {}
    cpos = {}
    nxt = 0
    for k in range(162):
        pos[k] = len(stream)
        stream.append(mains[k])
        if nxt < 9 and k >= b0 + per * (nxt + 1) - 1 and mains[k].wr != mains[k + 1].wr:
            stream.append(csmf(0, tord[nxt]))
            cpos[nxt] = len(stream)
            stream.append(csmf(1, tord[nxt]))
            nxt += 1
    gp = Gaps(len(stream) + 1)
    for j, gi in enumerate(gorder):
        r = group_reads((gi + 1) % 8)
        if j == 0:
            x = xch(o, "s66")
            top_reads = [ds_read("ds_read_b32", "v0", "v0"), x[0]]
            gp.chain(r, 0, step=1)
            bar2 = I("s_barrier", "other", rd=[vr(vG, 4), "v0"])
            gp.chain([valu("v_readfirstlane_b32 s22, v0", ["v0"], ["s22"]), salu(f"s_cmp_lt_u32 s22, {XB}"), salu(f"s_cselect_b32 s10, s88, 0")], 4)
        else:
            gp.chain(r, pos[gstart[j] - 1], step=o["rstep"])
    k = cpos[o["slowat"]]
    gp.nv[k] += [salu("s_cmp_lg_u32 s27, 0"), I("s_cbranch_scc1 M_slow", "other"), I("M_slowr:", "label")]
    gp.put(tread(tord[0]), 7)
    for t in range(9):
        gp.reserve(cpos[t] - 2)
        k = pos[b0 - 1] if t == 0 else cpos[t - 1] - 2
        kg = pos[b0] if t == 0 else cpos[t - 1]
        for j in range(4):
            k = gp.put(xad(j), k) + 1
            kg = gp.put(gather(j), max(kg, k), 2) + o["gstep"]
        if t < 8:
            kg = gp.put(tread(tord[t + 1]), max(kg, k), 2)
        gp.put(aread(tord[t]), kg, 2)
    def win(lst):
        out = []
        for i in lst:
            if i.kind in ("store", "dma") and o["win"]:
                out.append(I(f"s_waitcnt vmcnt({(o['win'] if i.kind == 'dma' else o['wins'] or o['win']) - 1})", "wait"))
            out.append(i)
        return out
    gp.chain(win(x[1:]), 6, 3)
    gp.put(bar2, o["bar2"])
    atom = I(f"buffer_atomic_add v0, v{vAt}, s[16:19], s92 offen sc0 sc1", "store", rd=["v0", vr(vAt)])
    gp.chain([valu("v_mov_b32 v0, 1", [], ["v0"])] + win([atom]), pos[o["claim"][0]], 3)
    awt = I("s_waitcnt vmcnt(0)", "wait")
    gp.chain([awt, valu("v_mul_u32_u24 v0, s94, v0", ["v0"], ["v0"]), valu("v_add_u32 v0, s93, v0", ["v0"], ["v0"]),
              valu(f"v_min_u32 v0, {XB}, v0", ["v0"], ["v0"]),
              I(f"ds_write_b32 v{vAt}, v0", "dsw", rd=["v0", vr(vAt)]), valu(f"v_mov_b32 v0, {L_MB}", [], ["v0"])], pos[o["claim"][1]], 3)
    for u, g in enumerate(epilogue(1, ("s23", "s58"), o)):
        gp.chain(win(g), pos[o["e1"][u]], 3)
    for u, g in enumerate(epilogue(0, ("s24", "s59"), o)):
        gp.chain(win(g), pos[o["e0"][u]], 3)
    d = xdma(o, "s89", "s22")
    for j in range(9):
        k = gp.put(d[2 * j], pos[o["dma"][j]], 2)
        gp.chain(win([d[2 * j + 1]]), k + 1, 3)
    book = [salu(f"s_add_u32 s28, s28, {SLOT}"),
            salu(f"s_cmp_ge_u32 s28, {NSLOT*SLOT}"),
            salu(f"s_cselect_b32 s28, s26, s28"),
            salu(f"s_add_u32 s30, s25, {SLOT}"),
            salu(f"s_cmp_eq_u32 s30, {NSLOT*SLOT}"),
            salu(f"s_cselect_b32 s30, 0, s30"),
            salu(f"s_sub_u32 s31, s30, s25"),
            salu(f"s_mov_b32 s25, s30"),
            salu("s_mov_b32 s89, s28"),
            salu("s_mov_b32 s90, s22"),
            salu(f"s_mov_b32 s88, {XB}"),
            salu("s_cmp_lt_u32 s20, 2"),
            salu("s_cselect_b32 s66, s23, s24"),
            salu("s_add_u32 s66, s66, s95")]
    kb = gp.chain(book, pos[o["book"]], 3)
    k = gp.chain([valu(f"v_add_u32 v{r}, s31, v{r}", [vr(r)], [vr(r)]) for r in (vRow, vB0, vB1)], max(kb + 1, pos[152]))
    assert k < len(stream)
    body = []
    for k, m in enumerate(stream):
        body.append(m)
        body += gp.gap(k)
    assert not gp.gap(len(stream))
    for r in (vRow, vB0, vB1):
        w = [j for j, i in enumerate(body) if ("v", r) in i.wr]
        u = [j for j, i in enumerate(body) if ("v", r) in i.rd]
        assert len(w) == 1 and max(u) == w[0], r
    for rb in range(2):
        for t in range(9):
            R = regs(vr(vACC[rb] + 4 * t, 4))
            ev = "".join("I" if i.kind == "ds" else "M" if i.kind == "mfma" else "E" for i in body if (i.rd | i.wr) & R)
            assert re.fullmatch("M{10}E+I" if rb == 0 else "MME+IM{8}", ev), (rb, t, ev)
    sl = [j for j, i in enumerate(body) if "M_slowr" in i.text][0]
    assert all(j < sl for j, i in enumerate(body) if i.kind == "ds" and i.wr & regs(vr(vACC[1], 36)))
    assert all(j > sl for j, i in enumerate(body) if i.kind == "valu" and i.rd & regs(vr(vACC[0], 36)))
    assert body[sl - 3].kind == "mfma" and ("v", vCI) in body[sl - 3].rd and "abid:1" in body[sl - 3].text
    lastdma = max(j for j, i in enumerate(body) if i.kind == "dma")
    assert lastdma < body.index(book[0]) and sl < body.index(book[0])
    assert all(j > body.index(bar2) for j, i in enumerate(body) if i.kind == "dsw")
    assert body.index(x[1]) < min(j for j, i in enumerate(body) if "read2st64" in i.text)
    for j, i in enumerate(body):
        if "cselect" in i.text or "s_cbranch_scc" in i.text:
            p = max(q for q in range(j) if body[q].kind == "salu" and "s_mov" not in body[q].text)
            assert body[p].text.startswith("s_cmp"), (i.text, body[p].text)
    firstdma = min(j for j, i in enumerate(body) if i.kind == "dma")
    assert [j for j, i in enumerate(body) if "s_cselect_b32 s10" in i.text][0] < firstdma
    isvm = lambda i: i.kind in ("dma", "store")
    awt.text = f"s_waitcnt vmcnt({sum(isvm(i) for i in body[body.index(atom) + 1:body.index(awt)])})"
    nstrict = sum(isvm(i) for i in body[lastdma + 1:])
    nloose = nstrict + sum(isvm(i) for i in body)
    assert nstrict <= 4
    seq = []
    seq.append(I("M_top:", "label"))
    if o["diag"]:
        seq.append(I(stamp(o).strip(), "other"))
    seq.append(salu(f"s_add_u32 s23, s24, 18432"))
    seq.append(salu(f"s_add_u32 s58, s24, 27648"))
    seq.append(salu(f"s_mov_b32 s24, s90"))
    seq.append(salu(f"s_add_u32 s59, s90, 9216"))
    seq.append(I(f"s_waitcnt vmcnt({nstrict}) lgkmcnt(0)", "lgkm0"))
    seq.append(I("s_barrier", "other"))
    seq += top_reads
    seq += body
    seq.append(salu(f"s_cmp_lt_u32 s90, {XB}"))
    seq.append(I("s_cbranch_scc1 M_top", "other"))
    seq.append(salu(f"s_add_u32 s23, s24, 18432"))
    seq.append(salu(f"s_add_u32 s58, s24, 27648"))
    seq.append(I("s_waitcnt lgkmcnt(0)", "lgkm0"))
    seq.append(I("s_barrier", "other"))
    x = xch(o, "s66")
    g7 = group_smf(7, True)
    g7 = g7[16:] + g7[:16]
    ep = epilogue(1, ("s23", "s58"), o, init=False)
    gt = Gaps(60)
    gt.chain([x[1], I("s_barrier", "other"), salu("s_add_u32 s66, s23, s95")], 4, 3)
    k = gt.chain(ep[2], 7, 3)
    x2 = xch(o, "s66")
    gt.chain([I("s_waitcnt lgkmcnt(0)", "lgkm0"), I("s_barrier", "other"), x2[0]], k + 3, 3)
    k = gt.chain(ep[0], 11, 3)
    gt.chain(ep[1], k + 1, 3)
    seq.append(x[0])
    for k in range(60):
        if k < 18:
            seq.append(g7[k])
        seq += gt.gap(k)
    seq.append(I("s_cmp_lt_u32 s20, 2\n    s_cbranch_scc0 M_fin", "other"))
    seq.append(x2[1])
    seq.append(I("M_fin:", "label"))
    A(text(finalize(seq)))
    A(stamp(o))
    A(stamp_out(o))
    A("M_end:\n    s_endpgm")
    A(spin_out("M_pf", FLAG_F, 1))
    A(spin_out("M_pc", FLAG_C, 1))
    A("M_xlate:")
    A(text(finalize(xdma(o, "s42", "s22"))))
    A(f"""    s_add_u32 s22, s22, {bstride}
    s_add_u32 s42, s42, {SLOT}
    s_branch M_xlater""")
    A("M_pool:")
    for t in range(9):
        A(f"    v_readfirstlane_b32 s{32+t}, v{vG+t if t < 8 else vA}")
    A(f"""    s_mov_b32 s27, 0
    s_add_u32 s54, s29, {L_POOL}
    s_mul_i32 s55, s20, {9*16*544}
    s_add_u32 s55, s55, {OV}
    s_mov_b32 exec_hi, 3""")
    for t in range(9):
        A(f"""    s_min_u32 s{32+t}, s{32+t}, 16
    s_mov_b32 s{44+t}, s27
    s_mov_b32 s56, 0
M_pool{t}:
    s_cmp_lt_u32 s56, s{32+t}
    s_cbranch_scc0 M_poole{t}
    s_add_u32 s57, s27, s56
    s_cmp_lt_u32 s57, {NPOOL}
    s_cbranch_scc0 M_poole{t}
    s_mul_i32 s57, s57, 544
    s_add_u32 m0, s57, s54
    s_add_u32 s57, s56, {t*16}
    s_mul_i32 s57, s57, 544
    s_add_u32 s57, s57, s55
    buffer_load_dwordx4 v{vL16}, s[16:19], s57 offen sc1 lds
    s_add_u32 s56, s56, 1
    s_branch M_pool{t}
M_poole{t}:
    s_add_u32 s27, s27, s{32+t}""")
    A("    s_mov_b32 exec_hi, -1\n    s_branch M_poolr")
    A("M_slow:")
    T, Aa, G = vTs, vAs, vGs
    for t in range(9):
        A(f"""    s_mov_b32 s56, 0
M_sl{t}:
    s_cmp_lt_u32 s56, s{32+t}
    s_cbranch_scc0 M_sle{t}
    s_add_u32 s57, s{44+t}, s56
    s_cmp_lt_u32 s57, {NPOOL}
    s_cbranch_scc0 M_slg{t}
    s_mul_i32 s57, s57, 544
    s_add_u32 s57, s57, s54
    v_add_u32 v{vTMP}, s57, v{vQ8}
    v_add_u32 v{vTMP+1}, s57, v{vL8}
    ds_read_b64 {vr(T,2)}, v{vTMP}
    ds_read_b64 {vr(Aa,2)}, v{vTMP+1}
    s_waitcnt lgkmcnt(0)
    s_branch M_slc{t}
M_slg{t}:
    s_add_u32 s57, s56, {t*16}
    s_mul_i32 s57, s57, 544
    s_add_u32 s57, s57, s55
    buffer_load_dwordx2 {vr(T,2)}, v{vQ8}, s[16:19], s57 offen sc1
    buffer_load_dwordx2 {vr(Aa,2)}, v{vL8}, s[16:19], s57 offen sc1
    s_waitcnt vmcnt(0)
M_slc{t}:
    v_xad_u32 v{T}, v{T}, v{vXor}, v{vRow}
    v_xad_u32 v{T+1}, v{T+1}, v{vXor}, v{vRow}
    ds_read2st64_b32 {vr(G,2)}, v{T} offset0:0 offset1:72
    ds_read2st64_b32 {vr(G+2,2)}, v{T+1} offset0:0 offset1:72
    s_add_u32 s56, s56, 1
    s_nop 7
    s_waitcnt lgkmcnt(0)
    v_smfmac_f32_16x16x32_bf16 {vr(vACC[0]+4*t,4)}, {vr(Aa,2)}, {vr(G,4)}, v{vCI}
    v_smfmac_f32_16x16x32_bf16 {vr(vACC[1]+4*t,4)}, {vr(Aa,2)}, {vr(G,4)}, v{vCI} abid:2
    s_branch M_sl{t}
M_sle{t}:""")
    A("    s_nop 7\n    s_cmp_eq_u32 s21, 0\n    s_cbranch_scc1 M_slowr0\n    s_branch M_slowr")
    A(gen_ftask(o))
    A(gen_ctask(o))
    A("M_codeend:")
    return "\n".join(L)

def gen(**kw):
    o = dict(DEF)
    o.update(kw)
    hdr = f"""; out = x @ prune_2of4(w) + b   (bf16, M=65536 K=576 N=576); generated by dev/gen3.py
; @launch grid=(256,1,1) block=(256,1,1) lds={LDS_BYTES}
.amdgcn_target "amdgcn-amd-amdhsa--gfx950"
.text
.globl {NAME}_kernel
"""
    kd = f"""
.section .rodata,"a"
.p2align 6
.amdhsa_kernel {NAME}_kernel
  .amdhsa_next_free_vgpr 512
  .amdhsa_next_free_sgpr 100
  .amdhsa_accum_offset 256
  .amdhsa_group_segment_fixed_size 0
  .amdhsa_kernarg_size 48
  .amdhsa_user_sgpr_count 2
  .amdhsa_user_sgpr_kernarg_segment_ptr 1
  .amdhsa_system_sgpr_workgroup_id_x 1
  .amdhsa_float_denorm_mode_32 3
.end_amdhsa_kernel
"""
    src = hdr + gen_main(o) + kd
    return "\n".join(l for l in src.split("\n") if l.strip()) + "\n"

if __name__ == "__main__":
    kw = {}
    out = f"/code/{NAME}.s"
    for a in sys.argv[1:]:
        if "=" in a:
            k, v = a.split("=", 1)
            assert k in DEF, k
            kw[k] = int(v) if v.lstrip("-").isdigit() else (eval(v) if v.startswith("[") else v)
        else:
            out = a
    open(out, "w").write(gen(**kw))
    print("wrote", out)
```

```python
import re

def regs(spec):
    m = re.fullmatch(r"([vas])\[(\d+):(\d+)\]", spec)
    if m:
        return {(m.group(1), i) for i in range(int(m.group(2)), int(m.group(3)) + 1)}
    m = re.fullmatch(r"([vas])(\d+)", spec)
    if m:
        return {(m.group(1), int(m.group(2)))}
    if spec.startswith("@"):
        return {("@", spec)}
    return set()

def vr(base, n=1, f="v"):
    return f"{f}{base}" if n == 1 else f"{f}[{base}:{base+n-1}]"

class I:
    def __init__(self, text, kind, rd=(), wr=()):
        self.text = text
        self.kind = kind
        self.rd = set().union(*[regs(r) for r in rd]) if rd else set()
        self.wr = set().union(*[regs(r) for r in wr]) if wr else set()

def smfmac(d, a, b, idx, abid, shape="16x16x64"):
    t = f"v_smfmac_f32_{shape}_bf16 {d}, {a}, {b}, {idx}" + (f" abid:{abid}" if abid else "")
    return I(t, "mfma", rd=[d, a, b, idx], wr=[d])

def valu(text, rd, wr):
    return I(text, "valu", rd=rd, wr=wr)

def ds_read(op, d, addr, suffix=""):
    return I(f"{op} {d}, {addr} {suffix}".rstrip(), "ds", rd=[addr], wr=[d])

def salu(text):
    return I(text, "salu")

def nslots(ins):
    m = re.fullmatch(r"s_nop (\d+)", ins.text)
    if m:
        return int(m.group(1)) + 1
    if ins.kind == "label":
        return 0
    return 1

def finalize(seq, mfma_wait=8, vm=False, hoist=False):
    out = []
    pend = []
    vpend = []
    for ins in seq:
        if ins.kind == "lgkm0":
            pend = []
            out.append(ins)
            continue
        touch = ins.rd | ins.wr
        if vm:
            need = -1
            for j, d in enumerate(vpend):
                if d & touch:
                    need = j
            if need >= 0:
                n = min(len(vpend) - 1 - need, 63)
                w = I(f"s_waitcnt vmcnt({n})", "wait")
                if ins.kind == "mfma" and out and out[-1].kind == "valu":
                    out.insert(len(out) - 1, w)
                else:
                    out.append(w)
                vpend = vpend[len(vpend) - n:] if n else []
            if ins.kind in ("load", "dma", "store"):
                vpend.append(ins.wr)
        need = -1
        for j, d in enumerate(pend):
            if d & touch:
                need = j
        if need >= 0:
            n = len(pend) - 1 - need
            n = min(n, 15)
            j, m = len(out), len(pend) - 1 - need
            if ins.kind == "mfma" and j and out[j - 1].kind == "valu":
                j -= 1
            while j and hoist and out[j - 1].kind in ("ds", "dsw") and m > 0:
                j -= 1
                m -= 1
            w = I(f"s_waitcnt lgkmcnt({min(m, 15)})", "wait")
            if m > 15:
                n = n + (len(pend) - 1 - need - m)
            if j and out[j - 1].text.startswith("s_waitcnt lgkmcnt") and out[j - 1].kind == "wait":
                out[j - 1] = w
            else:
                out.insert(j, w)
            pend = pend[len(pend) - n:] if n else []
        req = 0
        dist = 0
        for prev in reversed(out):
            if dist >= 24:
                break
            r = 0
            if prev.kind == "mfma":
                if ins.kind == "mfma":
                    if prev.wr & (ins.rd - ins.wr):
                        r = mfma_wait
                    elif (prev.wr & ins.wr) and prev.wr != ins.wr:
                        r = mfma_wait
                    elif (prev.wr & ins.wr) and prev.text.split()[0] != ins.text.split()[0]:
                        r = mfma_wait
                elif ins.kind in ("valu", "ds", "dsw", "store", "load", "dma"):
                    if prev.wr & touch:
                        r = mfma_wait
            if prev.kind == "valu" and ins.kind == "mfma" and (prev.wr & ins.rd):
                r = max(r, 2)
            if prev.kind == "valu" and ins.kind in ("dma", "store", "load") and any(x[0] == "s" for x in prev.wr & ins.rd):
                r = max(r, 5)
            if prev.kind == "valu" and ins.kind == "valu" and any(x[0] == "s" for x in prev.wr & ins.rd):
                r = max(r, 2)
            if prev.kind == "valu" and "readfirstlane" in ins.text and (prev.wr & ins.rd):
                r = max(r, 1)
            if prev.kind == "valu" and "_dpp" in ins.text and (prev.wr & ins.rd):
                r = max(r, 2)
            if prev.kind == "store" and ins.kind in ("valu", "ds", "load", "mfma") and (prev.rd & ins.wr):
                r = max(r, 2)
            if prev.kind == "salu" and prev.text.split()[1].startswith("m0") and ins.kind == "dma":
                r = max(r, 1)
            req = max(req, r - dist)
            dist += nslots(prev)
        while req > 0:
            k = min(req, 16)
            out.append(I(f"s_nop {k-1}", "nop"))
            req -= k
        out.append(ins)
        if ins.kind in ("ds", "dsw"):
            pend.append(ins.wr)
            assert len(pend) <= 15 or True
    return out

def text(seq):
    return "\n".join(("" if i.kind == "label" else "    ") + i.text for i in seq)


class Gaps:
    def __init__(self, n, cap=3):
        self.nv = [[] for _ in range(n)]
        self.v = [None] * n
        self.res = [0] * n
        self.cap = cap
    exact = False
    def load(self, k, extra=None):
        l = [i for i in self.nv[k] if i.kind != "label"] + ([extra] if extra is not None and extra.kind != "valu" else [])
        v = self.v[k] is not None or (extra is not None and extra.kind == "valu")
        n = len(l) + v + self.res[k]
        if self.exact:
            d = sum(i.kind in ("ds", "dsw") for i in l)
            n += d if v else max(d - 1, 0)
        return n
    def reserve(self, k):
        self.res[k] += 1
    def put(self, ins, k, cap=None):
        cap = 3 if self.exact else (cap or self.cap)
        while self.load(k, ins) > cap or (ins.kind == "valu" and self.v[k] is not None):
            k += 1
        if ins.kind == "valu":
            self.v[k] = ins
        else:
            self.nv[k].append(ins)
        return k
    def chain(self, lst, k, cap=None, step=0):
        prev = None
        for ins in lst:
            if prev is not None:
                k += max(step, 1 if prev.kind == "valu" or (self.exact and prev.kind in ("ds", "dsw") and ins.kind not in ("ds", "dsw", "valu")) else 0)
            k = self.put(ins, k, cap)
            prev = ins
        return k
    def backlog(self):
        b, out = 0, []
        for k in range(len(self.nv)):
            w = sum(32 if "read2" in i.text else 16 if "b128" in i.text else 8 for i in self.nv[k] if i.kind in ("ds", "dsw"))
            b = max(0, b - 16) + w
            out.append(b)
        return out
    def lds_chain(self, lst, k, last, theta, cap=3):
        for j, ins in enumerate(lst):
            bl = self.backlog()
            hi = last - (len(lst) - 1 - j)
            c = [q for q in range(k, max(hi, k) + 1) if self.load(q) < cap]
            good = [q for q in c if max(bl[q:q + 2]) <= theta]
            q = good[0] if good else (min(c, key=lambda z: max(bl[z:z + 2])) if c else k)
            k = self.put(ins, q, cap) + 1
        return k - 1
    def gap(self, k):
        if self.exact:
            self.nv[k].sort(key=lambda i: i.kind in ("ds", "dsw"))
        return self.nv[k] + ([self.v[k]] if self.v[k] is not None else [])


def gap_cost(seq, lat=56):
    t = last = 0
    free, ready, prev, n = 0, [], None, 0
    for i in seq:
        if i.kind == "label":
            continue
        if i.kind == "mfma":
            t = max(t, last + 16) if n else t
            last = t
            t += 4
            n += 1
        else:
            if prev is not None and prev.kind in ("ds", "dsw"):
                t += 4
            if i.kind == "valu":
                t = max(t, last + 12)
            if prev is not None and prev.kind == "valu" and i.kind in ("ds", "dsw"):
                t += 8
            m = re.search(r"lgkmcnt\((\d+)\)", i.text)
            if m and len(ready) > int(m.group(1)):
                t = max(t, ready[len(ready) - 1 - int(m.group(1))])
            if i.kind in ("ds", "dsw"):
                free = max(free, t) + (30 if "read2" in i.text else 16 if "b128" in i.text or "b32" in i.text else 24 if i.kind == "dsw" else 8)
                ready.append(free + lat)
            if i.kind == "dma":
                free = max(free, t) + 32
            if i.kind == "store":
                last += 12
            t += 4 * nslots(i) * (i.text.count("\n") + 1) + 4 * i.text.count("s_cbranch")
        prev = i
    return t - 16 * n
```

```python
import sys
from asmlib import *

NAME = "standalone__structured_sparse_n_m__ragged"
XB = 16 * 4096 * 576 * 2
WSB = 301989888
WSTR = 96 * 1024
U_REC, U_I8 = 0, 4
RA, RB = 176, 96
def u_idx(s): return 6 + 10 * s
def u_frag(s, t): return 7 + 10 * s + t
EFB = 4 * WSTR
CTR = EFB + 324 * 1024
SIG = CTR + 1024
WS_USED = SIG + 64 * 256
NF = 81
NARR = 27
CNT_F = 0
SLOT = 36864
NSLOT = 3
LTAB = NSLOT * SLOT
L_T0, L_OVL, L_CNT, L_BIAS, L_X = 9216, 9792, 10112, 10240, 10816
LTABW = L_X + 2048
L_MB = LTAB + 4 * LTABW
LDS_BYTES = L_MB + 16
RAW = 2 * SLOT
R_CNT = RAW + 8192
MDUM = 1 << 30
SPIN = 1 << 17

DEF = dict(xnt="nt", stf="sc1", inter=1, diag=0, nA=2, nF=2, lag=12, ecor=36, cper=5,
           gstep=1, book=132, b0=24, per=12, tord=[3, 1, 2, 0, 8, 7, 5, 6, 4], e1=[10, 44, 36], e0=[106, 137, 102],
           dma=[14, 38, 48, 74, 86, 102, 114, 138, 146], nostore=0, wsc="sc1", chain=1, win=75, rstep=1, slowat=5,
           bar2=21, claim=[8, 72, 84], touch=0, ctouch=2, xtail=16, pw=3, nfast=24, testfb=0, ov=[46, 58, 70, 91], pf="atom", slp=4, R=16, xwin=0, fx=4, fx2=0, fxb=0, dstep=9, q=0, nh=0, hb0=8, hper=9, hp=[6, 10, 30, 22, 66], estat=0, fe1=0, fov=0, fbar2=0, fgstep=0, frstep=0, exact=0, maxres=30, cost=0, cchain=1, align=1, toob=1, pn=0, pwin=0, pdma=[], xw=[], wwin=0, wth=160, wfrom=1, theta=-1, rlead=7, lastrd=150, xa=7, tst=[], exp=0, xfull=0, xat=81, early=[(2, 65)], fwin=0, xA=0, n2=4, x2at=81, nsh=4, xst=6, x2pre=0, stail=0, sfull=0, sdist=[2, 2, 2, 2, 2, 2, 2, 1, 17], fb0=22, fper=11, fe0=[100, 124, 104], fslowat=5, fbook=84, fl=[116, 140, 147, 179])

DIAG = 1 << 20
def stamp(o, first=False, cond=False):
    if not o["diag"]:
        return ""
    if cond:
        return "    s_cmp_lg_u32 s21, 1\n    s_cbranch_scc1 D_c\n" + stamp(o) + "\n" + stamp(o) + "\nD_c:"
    L = []
    if first:
        L += ["    s_mov_b32 s62, 0", "    v_mov_b32 v255, 0"]
    L += ["    s_mov_b32 s63, m0", "    s_memrealtime s[60:61]", "    s_memtime s[64:65]", "    s_waitcnt lgkmcnt(0)", "    s_mov_b32 m0, s62", "    v_writelane_b32 v255, s60, m0",
          "    s_add_u32 m0, s62, 32", "    v_writelane_b32 v255, s64, m0", "    s_add_u32 s62, s62, 1", "    s_mov_b32 m0, s63"]
    return "\n".join(L)
def stamp_out(o):
    if not o["diag"]:
        return ""
    L = ["    s_mov_b64 exec, -1", "    s_waitcnt vmcnt(0)", stamp(o), f"    s_mov_b32 s18, {WSB}",
         "    s_lshl_b32 s60, s2, 2", "    s_add_u32 s60, s60, s20", "    s_lshl_b32 s60, s60, 8", f"    s_add_u32 s60, s60, {DIAG}",
         "    v_mbcnt_lo_u32_b32 v0, -1, 0", "    v_mbcnt_hi_u32_b32 v0, -1, v0", "    v_lshlrev_b32 v0, 2, v0",
         "    buffer_store_dword v255, v0, s[16:19], s60 offen"]
    return "\n".join(L)

def lut_tables():
    l64 = 0
    l32 = 0
    for nk in range(16):
        keep = [j for j in range(4) if not (nk >> j) & 1]
        e = 0
        if len(keep) >= 2:
            ia, ib = keep[-2], keep[-1]
            for j in keep[:-2]:
                assert j < 2
                e |= 1 << j
        elif len(keep) == 1:
            ib = keep[0]
            ia = (ib + 1) % 4
            if ia > ib:
                ia, ib = ib, ia
        else:
            ia, ib = 0, 1
        l64 |= (ia | ib << 2) << (4 * nk)
        l32 |= e << (2 * nk)
    return l64, l32

vB0, vB1, vXor, vRow, vDma, vS4, vS2, vTA, vTQ, vCI, vL16 = range(1, 12)
vIDX = 12
vXw, vL8, vD1 = 53, 54, 55
vD0 = 84
vAt = vL16
vWF = 56
vACC = (124, 160)
vBB = 196
vT, vA, vG = 236, 240, 244
vOV = (54, 252, 254)
L_OVT = L_OVL + 264
GROUPS = [(0, (0, 1, 2)), (0, (3, 4)), (0, (5, 6)), (0, (7, 8)), (1, (0, 1, 2)), (1, (3, 4)), (1, (5, 6)), (1, (7, 8))]
GBUF = {0: 0, 1: 1, 2: 2, 3: 3, 4: 4, 5: 0, 6: 1, 7: 3, 8: 4}

def slot_luts():
    lt = ll = 0
    for p in range(16):
        r = p if p < 8 else 15 - p
        qb = 2 * (r >> 2) + (p >> 3)
        jj = r & 3
        lt |= (qb * 4 + jj) << (4 * p)
        ll |= (((jj // 2) * 2 + qb // 2) * 4 + (qb % 2) * 2 + jj % 2) << (4 * p)
    return lt, ll

def poll(o, v):
    if o["pf"] != "atom":
        return f"    buffer_load_dword v{v}, off, s[16:19], s96 {o['pf']}"
    return f"""    v_mov_b32 v{v}, 0
    s_mov_b64 exec, 1
    buffer_atomic_add v{v}, off, s[16:19], s96 sc0 sc1
    s_mov_b64 exec, -1"""

def kwait(o, first=""):
    return f"""    s_waitcnt lgkmcnt(0)
    s_mov_b64 s[4:5], s[74:75]
{first}
    s_mov_b64 s[16:17], s[82:83]
    s_mov_b64 s[8:9], s[72:73]
    s_mov_b64 s[84:85], s[76:77]
    s_mov_b64 s[68:69], s[80:81]
    ; what the arrival counter this wave will poll holds before this launch adds to it
{poll(o, vCI)}"""

def stail(o):
    c = o["stail"]
    if not c:
        return ""
    J = 9 * c
    mg = ((1 << 20) + J - 1) // J
    assert all((e * mg) >> 20 == e // J for e in range(700)) and 5 * J <= 700
    return f"""    s_mul_i32 s30, s20, {256 - NF}
    s_add_u32 s30, s30, s2
    s_sub_u32 s30, s30, {NF}
    s_min_u32 s30, s30, {5*J - 1}
    s_mul_i32 s31, s30, {mg}
    s_lshr_b32 s31, s31, 20                   ; row r holds line r-1 in its first c*r columns, then line 8-r
    s_mul_i32 s32, s31, {J}
    s_sub_u32 s30, s30, s32
    s_mul_i32 s32, s31, {c}
    s_sub_u32 s33, s30, s32
    s_sub_u32 s34, s31, 1
    s_sub_u32 s31, 8, s31
    s_cmp_lt_u32 s30, s32
    s_cselect_b32 s30, s30, s33
    s_cselect_b32 s31, s34, s31
    s_sub_u32 s30, {2047 - o["sfull"]}, s30
    s_mul_i32 s30, s30, {SLOT}
    s_lshl_b32 s31, s31, 7
    s_add_u32 s33, s30, s31"""

def biasloads():
    return "\n".join([f"    buffer_load_dwordx4 {vr(vBB+4*u,4)}, v25, s[84:87], s28 offen offset:{u*64}" for u in range(4)]
                     + [f"    buffer_load_dwordx2 {vr(vBB+16,2)}, v26, s[84:87], s29 offen offset:1024"])

def gen_ftask(o, bstride):
    L = []
    A = L.append
    l64, l32 = lut_tables()
    n1 = o["fx"]
    d = xdma(o, "s42", "s22")
    nb = o["fxb"]
    db = d[2 * n1:2 * (n1 + nb)]
    d2 = d[2 * (n1 + nb):]
    raw = f"""    buffer_load_dwordx4 v{vDma}, s[4:7], s54 offen lds
    s_add_u32 m0, m0, 4096
    s_mov_b32 s45, 0
    buffer_load_dwordx4 v{vDma}, s[4:7], s55 offen lds"""
    A(f"""    s_mul_i32 s32, s2, 57
    s_lshr_b32 s32, s32, 9                    ; k step
    s_mul_i32 s33, s32, 9
    s_sub_u32 s33, s2, s33
    s_mul_i32 s54, s32, {64*1152}
    s_lshl_b32 s35, s33, 7
    s_add_u32 s54, s54, s35
    s_add_u32 s55, s54, {32*1152}
    s_lshl_b32 s36, s20, 10
    s_add_u32 m0, s36, {RAW}
    s_lshr_b32 s30, s33, 1
    s_and_b32 s31, s33, 1
    s_lshl1_add_u32 s37, s32, s31
    s_mul_i32 s37, s37, {RA}
    s_mul_i32 s38, s32, {RB}
    s_add_u32 s38, s38, {18*RA}
    s_cmp_lt_u32 s33, 8
    s_cselect_b32 s30, s30, s20               ; w
    s_cselect_b32 s37, s37, s38
    s_cselect_b32 s44, {(1 << (RA//16)) - 1}, {(1 << (RB//16)) - 1}
    s_cselect_b32 s45, s20, 3
    s_cmp_eq_u32 s45, 3
    s_cselect_b32 s99, {WS_USED}, 0
    s_mul_i32 s48, s30, {WSTR}
    s_add_u32 s37, s37, s48
    v_mov_b32 v44, 2.0
    v_mov_b32 v45, 0
    v_mov_b32 v46, 2.0
    v_mov_b32 v47, 0
{kwait(o, raw)}
    s_mov_b64 exec, s[44:45]
    s_mov_b32 s18, s99
    buffer_store_dwordx4 v[44:47], v{vL16}, s[16:19], s37 offen sc1
    s_mov_b32 s18, {WS_USED}
    s_mov_b64 exec, -1
{biasloads()}
{text(finalize(d[:2*n1]))}
    s_lshl_b32 s34, s31, 2
    s_add_u32 s34, s34, s20
    s_lshr_b32 s35, s20, 1
    s_lshl_b32 s35, s35, 6
    s_and_b32 s36, s20, 1
    s_lshl_b32 s36, s36, 3
    s_add_u32 s35, s35, s36
    s_lshl_b32 s36, s20, 5
    s_mul_i32 s39, s32, 10240
    s_add_u32 s39, s39, {u_idx(0)*1024}
    s_lshl_b32 s40, s34, 1
    s_add_u32 s40, s40, s39
    s_lshl_b32 s38, s32, 1
    s_cmp_eq_u32 s32, 8
    s_cselect_b32 s38, 1024, s38
    s_add_u32 s38, s38, {U_I8*1024}
    s_cmp_lt_u32 s33, 8
    s_cselect_b32 s34, s34, 8                 ; t
    s_cselect_b32 s35, s35, s36
    s_cselect_b32 s36, 4, 3
    s_cselect_b32 s40, s40, s38
    s_cselect_b32 s46, 0, s20
    s_cselect_b32 s47, {RA//8}, {RB//8}
    s_add_u32 s40, s40, s48
    s_lshl_b32 s38, s34, 10
    s_add_u32 s39, s39, s38
    s_add_u32 s39, s39, s48
    s_add_u32 s39, s39, 1024                  ; fragment
    v_and_b32 v15, 3, v14
    v_lshlrev_b32 v15, s36, v15
    v_add_u32 v15, s35, v15
    v_lshrrev_b32 v16, 3, v14
    v_lshlrev_b32 v16, 4, v16
    v_xor_b32 v15, v15, v16
    v_lshrrev_b32 v16, 2, v14
    v_lshl_add_u32 v16, v13, 4, v16
    v_lshl_add_u32 v15, v16, 7, v15
    v_add_u32 v24, {RAW}, v15
    v_xor_b32 v27, 32, v24
    v_xor_b32 v28, 64, v24
    v_xor_b32 v29, 0x60, v24
    s_lshl_b32 s31, s46, 2
    s_add_u32 s31, s31, {R_CNT}
    v_mov_b32 v60, s31
    v_mov_b32 v61, 1
    ds_write_b32 v60, v61
    s_mul_i32 s49, s30, 81
    s_mul_i32 s31, s32, 9
    s_add_u32 s49, s49, s31
    s_add_u32 s49, s49, s34
    s_lshl_b32 s49, s49, 10
    s_add_u32 s49, s49, {EFB}
    s_lshl_b32 s31, s34, 24
    s_lshl_b32 s38, s32, 10
    s_add_u32 s31, s31, s38
    v_lshlrev_b32 v31, 18, v14
    v_lshl_add_u32 v31, v13, 5, v31
    v_add_u32 v31, s31, v31
    s_mov_b32 s50, {l64 & 0xffffffff}
    s_mov_b32 s51, {l64 >> 32}
    s_mov_b32 s52, 0x00010001
    s_mov_b32 s53, 0x00200010
    s_mov_b32 s38, 0x0202
    s_mul_i32 s57, s30, {o['R']*256}
    s_add_u32 s57, s57, {SIG}
    s_cmp_eq_u32 s33, 8
    s_cselect_b32 s56, 0, s20
    s_cmp_eq_u32 s20, 0
    s_cselect_b32 s98, 1, 0
    v_add_u32 v74, {R_CNT + 64}, v{vL8}
    v_lshl_add_u32 v73, s20, 1, v74
    v_mov_b32 v41, 0x01000100
    v_mov_b32 v40, 0
    v_mov_b32 v63, -2.0
{stamp(o) if o["diag"] == 2 else ""}
    s_waitcnt vmcnt({7 + n1}) lgkmcnt(0)
{stamp(o) if o["diag"] == 2 else ""}
    s_barrier
    ds_read_b64_tr_b16 v[16:17], v24
    ds_read_b64_tr_b16 v[18:19], v27 offset:512
    ds_read_b64_tr_b16 v[20:21], v28 offset:1024
    ds_read_b64_tr_b16 v[22:23], v29 offset:1536
{text(finalize(db))}""")
    for g in range(4):
        a = 16 + 2 * g
        A(f"""    s_waitcnt lgkmcnt({3-g})
    v_and_b32 v44, 0x7fff7fff, v{a}
    v_and_b32 v45, 0x7fff7fff, v{a+1}
    v_pk_max_u16 v46, v44, v45
    v_pk_min_u16 v47, v44, v45
    v_pk_min_u16 v46, v46, v46 op_sel:[0,1] op_sel_hi:[1,0]
    v_pk_max_u16 v47, v47, v47 op_sel:[0,1] op_sel_hi:[1,0]
    v_pk_max_u16 v46, v46, s52
    v_pk_max_u16 v46, v46, v47
    v_pk_sub_i16 v44, v44, v46
    v_pk_sub_i16 v45, v45, v46
    v_pk_ashrrev_i16 v44, 15, v44 op_sel_hi:[0,1]
    v_pk_ashrrev_i16 v45, 15, v45 op_sel_hi:[0,1]
    v_alignbit_b32 v47, -1, v44, 16
    v_alignbit_b32 v46, v45, v45, 16
    v_and_b32 v48, 0x00080004, v44
    v_bitop3_b32 v46, v45, v46, v47 bitop3:0xe8
    v_and_or_b32 v{64+g}, v45, s53, v48
    v_bitop3_b32 v{36+g}, v{a}, v44, v46 bitop3:0x10
    v_min_u32 v{68+g}, 1, v{36+g}""")
    A(f"""    v_add_u32 v72, v68, v69
    v_add3_u32 v72, v72, v70, v71
    buffer_store_dwordx4 v[36:39], v{vL16}, s[16:19], s49 offen sc1
    v_cmp_ne_u32 vcc, 0, v72
    s_and_saveexec_b64 s[44:45], vcc
    ds_add_rtn_u32 v62, v60, v72
    s_mov_b64 exec, -1""")
    for g in range(4):
        A(f"""    v_lshrrev_b32 v48, 16, v{64+g}
    v_or_b32 v48, v48, v{64+g}
    v_lshrrev_b64 v[52:53], v48, s[50:51]
    v_and_b32 v{64+g}, 15, v52
    v_lshl_or_b32 v40, v{64+g}, {4*g}, v40""")
    if o["align"]:
        A("""    v_lshrrev_b32 v44, 2, v40
    v_lshlrev_b32 v45, 2, v40
    s_movk_i32 s31, 0x3333
    v_not_b32 v47, v40
    v_bfi_b32 v44, s31, v44, v45
    s_movk_i32 s31, 0x1111
    s_nop 0
    v_mov_b32_dpp v47, v44 row_shr:4 row_mask:0xf bank_mask:0xf
    v_xor_b32 v47, v47, v40
    v_lshrrev_b32 v45, 1, v47
    v_or_b32 v47, v47, v45                    ; bit 0 / 2 of a nibble clear: shared element in the other slot
    v_lshrrev_b32 v45, 2, v47
    v_bitop3_b32 v47, v47, v45, s31 bitop3:0x2a
    s_nop 1
    v_xor_b32_dpp v47, v47, v47 row_shr:4 row_mask:0xf bank_mask:0xe
    s_nop 1
    v_xor_b32_dpp v47, v47, v47 row_shr:8 row_mask:0xf bank_mask:0xc
    v_mul_u32_u24 v47, 15, v47
    v_bfi_b32 v40, v47, v44, v40""")
    A(f"    ds_write_b16 v73, v40")
    for g in range(4):
        a = 16 + 2 * g
        if g == 2:
            A(f"""    s_waitcnt vmcnt({6 + n1 + nb}) lgkmcnt(0)
    s_barrier
    ds_read_b64 v[50:51], v74""")
        if o["align"]:
            A(f"    v_bfe_u32 v{64+g}, v40, {4*g}, 4")
        A(f"""    v_mul_u32_u24 v46, 0x4001, v{64+g}
    v_and_b32 v46, 0x30003, v46
    v_mad_u32_u24 v46, v46, s38, v41
    v_perm_b32 v{32+g}, v{a+1}, v{a}, v46""")
    A(f"""{stamp(o) if o["diag"] == 2 else ""}
    buffer_store_dwordx4 v[32:35], v{vL16}, s[16:19], s39 offen sc1
    s_cmp_eq_u32 s33, 8
    s_cbranch_scc0 F_i1
    buffer_store_short v40, v{vL16}, s[16:19], s40 offen sc1
    s_branch F_i2
F_i1:
    s_cmp_eq_u32 s20, 0
    s_cbranch_scc0 F_i2
    s_waitcnt lgkmcnt(0)
    buffer_store_dwordx2 v[50:51], v{vL16}, s[16:19], s40 offen sc1
F_i2:
    s_cbranch_vccz F_z""")
    for g in range(4):
        A(f"""    v_cmp_ne_u32 vcc, 0, v{36+g}
    s_and_saveexec_b64 s[44:45], vcc
    s_cbranch_execz F_e{g}
    v_cmp_gt_u32 vcc, s47, v62
    v_add_u32 v42, {8*g}, v31
    v_lshlrev_b32 v44, 3, v62
    v_add_u32 v62, 1, v62
    v_cndmask_b32 v42, v63, v42, vcc
    v_cndmask_b32 v43, 0, v{36+g}, vcc
    v_cndmask_b32 v44, 0, v44, vcc
{"" if o["exp"] & 2 else "    buffer_store_dwordx2 v[42:43], v44, s[16:19], s37 offen sc1"}
F_e{g}:
    s_mov_b64 exec, -1""")
    A(f"""F_z:
{stamp(o)}
    s_cmp_lg_u32 s2, 0
    s_cbranch_scc1 M_set
    v_mov_b32 v64, 0
    v_mov_b32 v65, 0
    v_mov_b32 v66, 0
    v_mov_b32 v67, 0
    s_mov_b32 s40, {CTR}
    buffer_store_dwordx4 v[64:67], v{vL16}, s[16:19], s40 offen sc1
    s_branch M_set
F_sig:
    ; all stores of this workgroup done -> add to the replicas the consumers poll
    v_lshlrev_b32 v30, 8, v12
    s_waitcnt vmcnt(0)
{stamp(o)}
    s_barrier
    s_cmp_lg_u32 s56, 0
    s_cbranch_scc1 F_end
    s_mov_b64 exec, {(1 << o['R']) - 1}
    buffer_atomic_add v61, v30, s[16:19], s57 offen sc1
    s_mov_b64 exec, -1
F_end:
{text(finalize(d[2 * (n1 + nb):2 * o["xa"]]))}
    s_branch M_x2""")
    return "\n".join(L)

def wfrag(p):
    return vr(4 * p, 4, "a") if p < 64 else vr(vWF + 4 * (p - 64), 4)

def smf(rb, s, t, buf):
    p = s * 9 + t
    ir, ih = (4 * s + t // 2, t & 1) if t < 8 else (36 + s // 2, s & 1)
    return smfmac(vr(vACC[rb] + 4 * t, 4), wfrag(p), vr(buf, 8), vr(vIDX + ir), ih)

def group_smf(gi, chain=True):
    rb, ks = GROUPS[gi]
    if chain:
        return [smf(rb, s, t, vBB + 8 * GBUF[s]) for t in range(9) for s in ks]
    return [smf(rb, s, t, vBB + 8 * GBUF[s]) for s in ks for t in range(9)]

def bread_to(rb, s, b):
    off = rb * 18432 + s * 1024
    return [ds_read("ds_read_b128", vr(b, 4), vr(vB0), f"offset:{off}"),
            ds_read("ds_read_b128", vr(b + 4, 4), vr(vB1), f"offset:{off}")]

def group_reads(gi):
    rb, ks = GROUPS[gi]
    return sum([bread_to(rb, s, vBB + 8 * GBUF[s]) for s in ks], [])

def bias_init(rb, t):
    return ds_read("ds_read_b128", vr(vACC[rb] + 4 * t, 4), vr(vTQ), f"offset:{L_BIAS + t*64}")

def tread(t, tok=None):
    i = ds_read("ds_read_b128", vr(vT, 4), vr(vTQ), f"offset:{L_T0 + t*64}")
    if tok:
        i.rd |= regs(tok)
    return i

def aread(t):
    return ds_read("ds_read_b128", vr(vA, 4), vr(vTA), f"offset:{t*1024}")

def xad(j):
    return valu(f"v_xad_u32 v{vT+j}, v{vT+j}, v{vXor}, v{vRow}", [vr(vT + j), vr(vXor), vr(vRow)], [vr(vT + j)])

def gather(j):
    return ds_read("ds_read2st64_b32", vr(vG + 2 * j, 2), vr(vT + j), "offset0:0 offset1:72")

H = vBB + 16
def ov_gather():
    return [ds_read("ds_read_b64", vr(H + 4, 2), vr(vTQ), f"offset:{L_OVT}"),
            valu(f"v_xad_u32 v{H}, v{H+4}, v{vXor}, v{vRow}", [vr(H + 4), vr(vXor), vr(vRow)], [vr(H)]),
            ds_read("ds_read2st64_b32", vr(H, 2), vr(H), "offset0:0 offset1:72"),
            valu(f"v_xad_u32 v{H+2}, v{H+5}, v{vXor}, v{vRow}", [vr(H + 5), vr(vXor), vr(vRow)], [vr(H + 2)]),
            ds_read("ds_read2st64_b32", vr(H + 2, 2), vr(H + 2), "offset0:0 offset1:72")]

def ov_call(tag):
    return I(f"s_cmp_lt_i32 s81, 0\n    s_cbranch_scc1 M_ovr{tag}\n    s_swappc_b64 s[78:79], s[72:73]\nM_ovr{tag}:", "other", rd=[vr(H, 4), vr(vACC[1], 36)] + [vr(r, 2) for r in vOV])

def csmf(rb, t):
    return smfmac(vr(vACC[rb] + 4 * t, 4), vr(vA, 4), vr(vG, 8), vr(vCI), rb)

def epilogue(rb, soff, o, init=True, xoff=0):
    gs = []
    for ln in range(2):
        g = []
        a = vACC[rb] + 16 * ln
        X, Y, Z = a, a + 8, a + 4
        for j in range(4):
            g.append(valu(f"v_cvt_pk_bf16_f32 v{X+j}, v{a+2*j}, v{a+2*j+1}", [vr(a + 2 * j, 2)], [vr(X + j)]))
        for j in range(4):
            g.append(valu(f"v_cvt_pk_bf16_f32 v{Y+j}, v{a+8+2*j}, v{a+8+2*j+1}", [vr(a + 8 + 2 * j, 2)], [vr(Y + j)]))
        if init:
            g.append(bias_init(rb, 4 * ln + 3))
        for j in range(4):
            g.append(valu(f"v_cndmask_b32_dpp v{Z+j}, v{X+j}, v{Y+j}, vcc row_ror:8 row_mask:0xf bank_mask:0xf", [vr(X + j), vr(Y + j)], [vr(Z + j)]))
        g.append(I(f"buffer_store_dwordx4 {vr(Z,4)}, v{vS4}, s[12:15], {soff[1]} offen offset:{ln*128} {o['stf']}".rstrip(), "store", rd=[vr(Z, 4), vr(vS4)]))
        for j in range(4):
            g.append(valu(f"v_mov_b32_dpp v{X+j}, v{Y+j} row_ror:8 row_mask:0xf bank_mask:0xc", [vr(X + j), vr(Y + j)], [vr(X + j)]))
        g.append(I(f"buffer_store_dwordx4 {vr(X,4)}, v{vS4}, s[12:15], {soff[0]} offen offset:{ln*128} {o['stf']}".rstrip(), "store", rd=[vr(X, 4), vr(vS4)]))
        if init:
            g += [bias_init(rb, 4 * ln + 1), bias_init(rb, 4 * ln + 2), bias_init(rb, 4 * ln)]
        gs.append(g)
    g = []
    a = vACC[rb] + 32
    for j in range(2):
        g.append(valu(f"v_cvt_pk_bf16_f32 v{a+j}, v{a+2*j}, v{a+2*j+1}", [vr(a + 2 * j, 2)], [vr(a + j)]))
    g.append(I(f"ds_write_b64 v{vXw}, {vr(a,2)} offset:{(1-rb)*2*LTABW + xoff}", "dsw", rd=[vr(a, 2), vr(vXw)], wr=["@x2" if xoff else f"@x{rb}"]))
    if init:
        g.append(bias_init(rb, 8))
    gs.append(g)
    if o["nostore"]:
        gs = [[i for i in g if i.kind != "store"] for g in gs]
    return gs

def xch(o, soff, r=vG, xoff=0):
    return [ds_read("ds_read_b128", vr(r, 4), vr(vTA), f"offset:{L_X + xoff}"),
            I(f"buffer_store_dwordx4 {vr(r,4)}, v{vS2}, s[12:15], {soff} offen {o['stf']}".rstrip(), "store", rd=[vr(r, 4), vr(vS2)])]

def xdma(o, m0base, soff):
    g = []
    for s in range(9):
        if s == 0:
            g.append(salu(f"s_mov_b32 m0, {m0base}"))
        else:
            g.append(salu("s_add_u32 m0, m0, 896"))
        g.append(I(f"buffer_load_dwordx4 v{vDma}, s[8:11], {soff} offen offset:{s*128} {o['xnt']} lds", "dma", rd=[vr(vDma), soff]))
    return g

def count_in(tag):
    return f"""s_cmp_eq_u32 s98, 0
    s_cbranch_scc1 {tag}
    s_mov_b32 s98, 0
    v_mov_b32 v{vG+6}, 1
    s_mov_b64 exec, 1
    buffer_atomic_add v{vG+6}, off, s[68:71], 0 offset:{CNT_F} sc1
    s_mov_b64 exec, -1
    s_nop 3
{tag}:"""

def spin(tag, base, target):
    return f"""    v_readfirstlane_b32 s30, v0
    s_mov_b32 s31, 0
    s_sub_u32 s30, s30, {base}
    s_cmp_eq_u32 s30, {target}
    s_cbranch_scc0 {tag}_spin
{tag}_ok:"""

def spin_out(o, tag, base, target, soff):
    return f"""{tag}_spin:
    s_sleep {o['slp']}
{poll(o, 0)}
    s_add_u32 s31, s31, 1
    s_waitcnt vmcnt(0)
    v_readfirstlane_b32 s30, v0
    s_nop 0
    s_sub_u32 s30, s30, {base}
    s_cmp_eq_u32 s30, {target}
    s_cbranch_scc1 {tag}_ok
    s_cmp_lt_u32 s31, {o['nfast']}
    s_cbranch_scc1 {tag}_spin
    {count_in(tag + "_spin2")}
    s_sleep 16
    buffer_load_dword v0, off, s[68:71], 0 offset:{CNT_F} sc1
    s_add_u32 s31, s31, 1
    s_cmp_ge_u32 s31, {SPIN}
    s_cbranch_scc1 M_end
    s_waitcnt vmcnt(0)
    v_readfirstlane_b32 s30, v0
    s_nop 0
    s_cmp_eq_u32 s30, {NF}
    s_cbranch_scc0 {tag}_spin2
    s_branch {tag}_ok"""

def ctouch(o):
    if not o["ctouch"]:
        return ""
    return f"""    s_getpc_b64 s[84:85]
    s_lshr_b32 s30, s2, 3
    s_and_b32 s30, s30, 15
    s_lshl_b32 s30, s30, 11
    s_and_b32 s84, s84, 0xffffff00
    s_cmp_ge_u32 s2, {88 if o["ctouch"] == 2 else 0}
    s_cselect_b32 s86, M_codeend-{NAME}_kernel, 0
    s_mov_b32 s87, 0x20000
    v_lshlrev_b32 v254, 3, v0
    s_mov_b32 exec_lo, 0x00010001
    s_mov_b32 exec_hi, 0x00010001
    buffer_load_dword v254, v254, s[84:87], s30 offen
    s_mov_b64 exec, -1"""

COST = {}
def gen_main(o):
    L = []
    A = L.append
    bstride = 256 * SLOT if o["inter"] else SLOT
    wgmul = SLOT if o["inter"] else 3 * SLOT
    tord = o["tord"]
    HB = (2048 - o["nh"] // 2) * SLOT
    A(f""".p2align 8
.type {NAME}_kernel,@function
{NAME}_kernel:
    s_cmp_ge_u32 s2, 256
    s_cbranch_scc1 M_end
{stamp(o, True)}
    s_load_dwordx8 s[72:79], s[0:1], 0        ; x w b out
    s_load_dwordx4 s[80:83], s[0:1], 32
{ctouch(o)}
    v_lshrrev_b32 v20, 6, v0
    v_and_b32 v12, 63, v0                     ; lane
    v_readfirstlane_b32 s20, v20              ; wave
    ; DMA lane offset: (tid/8)*1152 + ((tid%8) ^ ((tid/16)%8))*16
    v_lshrrev_b32 v22, 3, v0
    v_mul_u32_u24 v22, 1152, v22
    v_lshrrev_b32 v23, 4, v0
    v_xor_b32 v23, v23, v0
    v_and_b32 v23, 7, v23
    v_lshl_add_u32 v{vDma}, v23, 4, v22
    v_lshrrev_b32 v13, 4, v12                 ; q
    v_and_b32 v14, 15, v12                    ; m
    v_lshlrev_b32 v{vL16}, 4, v12
    v_lshlrev_b32 v{vL8}, 3, v12
    v_lshlrev_b32 v25, 4, v13
    v_lshlrev_b32 v26, 3, v13
    s_mov_b32 s6, {576*576*2}
    s_mov_b32 s7, 0x20000
    s_mov_b32 s10, {XB}
    s_mov_b32 s11, s7
    s_mov_b32 s18, {WS_USED}
    s_mov_b32 s19, s7
    s_movk_i32 s70, 256
    s_mov_b32 s71, s7
    s_movk_i32 s86, 1152
    s_mov_b32 s87, s7
    s_mov_b32 s98, 0
    s_mul_i32 s96, s20, {o['R']}
    s_and_b32 s97, s2, {o['R']-1}
    s_add_u32 s96, s96, s97
    s_lshl_b32 s96, s96, 8
    s_add_u32 s96, s96, {SIG}
    s_mul_i32 s22, s2, {wgmul}
    s_mul_i32 s26, s20, 9216
    s_mov_b32 s24, s22
    s_mov_b32 s42, s26
    s_lshl_b32 s28, s20, 8
    s_lshl_b32 s29, s20, 5
    s_cmp_lt_u32 s2, {NF}
    s_cbranch_scc0 M_x1
{gen_ftask(o, bstride)}
M_x1:
{kwait(o)}
{(stamp(o) + chr(10)) * 3 if o["diag"] == 2 else ""}
{stamp(o)}
{biasloads()}
{text(finalize(xdma(o, "s42", "s22")[:2 * o["xa"]]))}""")
    A(f"""M_set:                                        ; set-up while the first loads (or the prep stores) are under way
    s_mov_b32 s12, s78
    s_mov_b32 s13, s79
    s_mov_b32 s14, {XB}
    s_mov_b32 s15, 0x20000
    s_mul_i32 s29, s20, {LTABW}
    s_add_u32 s29, s29, {LTAB}
    v_lshrrev_b32 v24, 1, v14                 ; f(m)
    v_and_b32 v27, 7, v14
    v_lshlrev_b32 v22, 7, v27
    v_lshl_or_b32 v{vXor}, v24, 4, v22        ; (f<<4) | (m%8)<<7
    v_lshrrev_b32 v23, 3, v14
    v_mul_u32_u24 v{vRow}, 9216, v23
    v_xad_u32 v{vB0}, v25, v{vXor}, v{vRow}
    v_xor_b32 v{vB1}, 64, v{vB0}
    v_add_u32 v{vTQ}, s29, v25
    v_add_u32 v{vTA}, s29, v{vL16}
    v_mul_u32_u24 v24, 1152, v27
    v_lshl_add_u32 v24, v23, 6, v24
    v_add3_u32 v{vS4}, v24, v25, s28          ; (m%8)*1152 + (m/8)*64 + q*16 + w*256
    v_lshrrev_b32 v24, 3, v12
    v_xor_b32 v28, v24, v12
    v_and_b32 v28, 7, v28
    v_mul_u32_u24 v24, 1152, v24
    v_lshl_add_u32 v24, v28, 4, v24
    v_add_u32 v{vS2}, 1024, v24               ; (l/8)*1152 + 1024 + ((l%8)^(l/8))*16
    s_lshl_b32 s30, s20, 1
    v_lshrrev_b32 v24, 1, v13
    v_add_u32 v24, s30, v24
    v_xor_b32 v24, v24, v27
    v_lshl_add_u32 v24, v24, 4, v22
    v_and_b32 v28, 8, v26
    v_mul_u32_u24 v29, {LTABW}, v23
    v_add3_u32 v24, v24, v28, v29
    v_add_u32 v{vXw}, {LTAB+L_X}, v24
    s_lshr_b32 s30, s2, 3
    s_and_b32 s30, s30, {o['nsh']-1}          ; shard
    s_mul_i32 s92, s30, {1024//max(o['nsh'],4)}
    s_add_u32 s92, s92, {CTR - L_MB}
    s_add_u32 s30, s30, {768 + (256 * o['early'][-1][0] if o['estat'] else 0)}
    s_mul_i32 s93, s30, {SLOT}
    s_mov_b32 s94, {o['nsh']*SLOT}
    s_and_b32 s95, s20, 1
    s_mul_i32 s95, s95, 9216
    s_add_u32 s59, s24, 9216
    s_mul_i32 s43, s20, {WSTR}
    s_add_u32 s47, s29, {L_T0}
    s_add_u32 s48, s29, {L_OVL}
    s_add_u32 s49, s29, {L_CNT}
    s_add_u32 s54, s29, {L_OVL + 256 + MDUM}
    s_add_u32 s38, s26, {2*SLOT}
    s_add_u32 s35, s38, {128*8}
    s_add_u32 s39, s38, {192*8}
    s_mov_b32 s40, s48
    s_add_u32 s41, s48, 256
    s_mov_b32 s50, {slot_luts()[0] & 0xffffffff}
    s_mov_b32 s51, {slot_luts()[0] >> 32}
    s_mov_b32 s52, {slot_luts()[1] & 0xffffffff}
    s_mov_b32 s53, {slot_luts()[1] >> 32}
    v_mov_b32 v16, 0
    v_mov_b32 v17, 0
    v_mov_b32 v18, 0
    v_mov_b32 v19, 0
    v_cmp_gt_u32 s[44:45], 36, v12
    v_mov_b32 v20, {"2.0" if o["toob"] else "0"}
    s_nop 0
    v_cndmask_b32 v20, 0, v20, s[44:45]
    v_mov_b32 v21, v20
    v_mov_b32 v22, v20
    v_mov_b32 v23, v20
    v_mov_b32 v{vWF+12}, {MDUM}
    v_mov_b32 v{vWF+13}, 0
    v_mov_b32 v{vWF+14}, {MDUM}
    v_mov_b32 v{vWF+15}, 0
    v_lshl_add_u32 v{vD0}, v12, 2, s49
    v_add_u32 v{vD1}, s38, v{vL8}
    v_add_u32 v24, s38, v{vL16}""")
    for t in range(9):
        A(f"    ds_write_b128 v{vTA}, v[16:19] offset:{t*1024}")
    assert not o["x2pre"]
    A(f"""    ds_write_b128 v24, {vr(vWF+12,4)}
    ds_write_b128 v24, {vr(vWF+12,4)} offset:1024
    ds_write_b128 v{vTA}, v[20:23] offset:{L_T0}
    s_cmp_lt_u32 s2, {NF}
    s_cbranch_scc1 F_sig
{stamp(o)}
M_x2:
{text(finalize(xdma(o, "s42", "s22")[2 * o["xa"]:]))}
    s_add_u32 s22, s22, {bstride}
    s_add_u32 s42, s42, {SLOT}
{text(finalize(xdma(o, "s42", "s22")))}
    s_add_u32 s22, s22, {bstride}
    s_add_u32 s42, s42, {SLOT}
{stamp(o) if o["diag"] != 3 else ""}
    s_waitcnt vmcnt({o['pw']})
{stamp(o) if o["diag"] != 3 else ""}
{poll(o, 0)}
    v_readlane_b32 s100, v{vCI}, 0
    v_mov_b32 v{vCI}, 0xeeee4444
{"    s_add_u32 s100, s100, 5" if o["testfb"] else ""}""")
    for j in range(18):
        A(f"    v_lshlrev_b32 v{vACC[0]+2*j}, 16, v{vBB+j}\n    v_and_b32 v{vACC[0]+2*j+1}, 0xffff0000, v{vBB+j}")
    A("    s_mov_b32 exec_lo, 0x00010001\n    s_mov_b32 exec_hi, 0x00010001")
    for t in range(9):
        A(f"    ds_write_b128 v{vTQ}, {vr(vACC[0]+4*t,4)} offset:{L_BIAS+t*64}")
    A("    s_mov_b64 exec, -1")
    if o["xtail"]:
        wd = o["xw"] or [o["xfull"] + o["xtail"] * (q + 1) for q in range(9)]
        g0 = vG
        n0 = NF if o["xA"] else 0
        assert sum(wd) <= 8 * (256 - n0)
        A(f"""    s_mul_i32 s30, s20, {256 - n0}
    s_add_u32 s30, s30, s2
    s_sub_u32 s30, s30, {n0}
    s_cmp_lt_u32 s2, {n0}
    s_cselect_b32 s30, 1023, s30
    s_lshl_b32 s30, s30, 1
    v_lshrrev_b32 v{g0}, 5, v12
    v_add_u32 v{g0+4}, s30, v{g0}             ; e
    v_mov_b32 v{g0}, -1
    v_mov_b32 v{g0+1}, 0""")
        for q in range(9):
            if wd[q]:
                A(f"""    v_subrev_u32 v{g0+2}, {sum(wd[q+1:])}, v{g0+4}
    v_cmp_gt_u32 vcc, {wd[q]}, v{g0+2}
    v_mov_b32 v{g0+3}, {q}
    s_nop 0
    v_cndmask_b32 v{g0}, v{g0}, v{g0+2}, vcc
    v_cndmask_b32 v{g0+1}, v{g0+1}, v{g0+3}, vcc""")
        A(f"""    v_sub_u32 v{g0}, 2047, v{g0}
    v_mul_u32_u24 v{g0}, {SLOT}, v{g0}
    v_lshl_add_u32 v{g0}, v{g0+1}, 7, v{g0}
    v_and_b32 v{g0+1}, 31, v12
    v_mul_u32_u24 v{g0+1}, 1152, v{g0+1}
    v_add_u32 v{g0+5}, v{g0}, v{g0+1}""")
    A("    s_mov_b32 vcc_lo, 0xff00ff00\n    s_mov_b32 vcc_hi, 0xff00ff00")
    A("    s_waitcnt vmcnt(0)")
    A(stamp(o))
    A(spin("M_pf", "s100", NARR))
    A(stamp(o))

    lag, e_cor, cper = o["lag"], o["ecor"], o["cper"]
    def uload(u, dst, n):
        g = [salu("s_add_u32 s43, s43, 4096")] if u % 4 == 0 and u else []
        g.append(I(f"buffer_load_dword{'x4' if n == 4 else ''} {dst}, v{vL16}, s[16:19], s43 offen offset:{(u%4)*1024} {o['wsc']}", "load", rd=[vr(vL16)], wr=[dst]))
        return g
    def wload(p):
        s, t = divmod(p, 9)
        g = uload(u_idx(s), vr(vIDX + 4 * s, 4), 4) if t == 0 else []
        return g + uload(u_frag(s, t), wfrag(p), 4)
    def pbuf(rb, s):
        return vBB + 8 * ((0, 1)[s & 1] if rb == 0 else (4, 3)[s & 1])
    seq = []
    if o["touch"]:
        nl = o["touch"]
        t0 = WSTR - 21 * nl * 128
        A(f"""    s_lshr_b32 s30, s2, 3
    s_sub_u32 s31, s30, 11
    s_cselect_b32 s30, s30, s31
    s_mul_i32 s30, s30, {nl*128}
    s_add_u32 s30, s30, s43
    s_add_u32 s30, s30, {t0}
    v_lshlrev_b32 v0, 3, v{vL16}
    s_bfm_b64 exec, {nl}, 0
    buffer_load_dword v{vG}, v0, s[16:19], s30 offen sc1
    s_mov_b64 exec, -1""")
    SR5 = list(range(72, 88, 2)) + [66, 60, 64, 4, 6, 56, 88, 90, 96]
    if o["diag"] == 5:
        seq.append(I(f"s_memtime s[{SR5[0]}:{SR5[0]+1}]", "other"))
    seq.append(valu(f"v_mov_b32 v0, v{vG+5}", [], ["v0"]))
    R = vWF
    seq += uload(0, vr(R, 4), 4) + uload(1, vr(R + 4, 4), 4) + uload(2, vr(R + 8, 4), 4)
    seq += [salu(f"s_mov_b32 exec_hi, {(1 << ((18*RA + 9*RB)//16 - 224)) - 1}")] + uload(3, vr(R + 12, 4), 4) + [salu("s_mov_b32 exec_hi, -1")]
    seq += uload(4, vr(vIDX + 36, 4), 4) + uload(5, vr(vIDX + 40), 1)
    for p in range(lag):
        seq += wload(p)
    def V(txt, rd, wr):
        return valu(txt, [f"v{r}" if isinstance(r, int) else r for r in rd], [f"v{r}" if isinstance(r, int) else r for r in wr])
    OLD, X = R + 6, R + 18
    DUM = X + 8
    build = [V(f"v_mov_b32 v{DUM}, s54", [], [DUM]),
             V(f"v_or3_b32 v{X+4}, v{R}, v{R+4}, v{R+8}", [R, R + 4, R + 8], [X + 4]),
             V(f"v_or_b32 v{X+4}, v{X+4}, v{R+12}", [R + 12, X + 4], [X + 4]),
             V(f"v_cmp_gt_i32 s[32:33], 0, v{X+4}", [X + 4], ["s[32:33]"])]
    for j in range(8):
        M, Y, K = R + 2 * j, X + (j & 1), "s[44:45]" if j & 1 else "s[36:37]"
        k0 = 44 if j & 1 else 36
        build += [V(f"v_cmp_gt_u32 {K}, 2.0, v{M}", [M], [K]),
                  V(f"v_mbcnt_lo_u32_b32 v{Y}, s{k0}, 0", [K], [Y]),
                  V(f"v_mbcnt_hi_u32_b32 v{Y}, s{k0+1}, v{Y}", [K, Y], [Y]),
                  V(f"v_lshl_add_u32 v{Y}, v{Y}, 3, s38", [Y], [Y]),
                  V(f"v_min_u32 v{Y}, s39, v{Y}", [Y], [Y]),
                  V(f"v_cndmask_b32 v{Y}, v{DUM}, v{Y}, {K}", [DUM, Y, K], [Y]),
                  I(f"ds_write_b64 v{Y}, {vr(M,2)}", "dsw", rd=[vr(Y), vr(M, 2)]),
                  salu(f"s_bcnt1_i32_b64 s30, {K}"),
                  salu(f"s_lshl3_add_u32 s38, s30, s38")]
    build += [ds_read("ds_read_b64", vr(R + 2 * j, 2), vr(vD1), f"offset:{j*512}") for j in range(3)] + [None] * 10
    def rank(j):
        M, Y = R + 2 * j, X + 2 * (j & 1)
        return [V(f"v_bfe_u32 v{Y}, v{M}, 24, 4", [M], [Y]),
                V(f"v_lshlrev_b32 v{Y+1}, 1, v{M}", [M], [Y + 1]),
                V(f"v_lshl_add_u32 v{Y}, v{Y}, 2, s49", [Y], [Y]),
                V(f"v_and_b32 v{Y+1}, 16, v{Y+1}", [Y + 1], [Y + 1]),
                V(f"v_and_or_b32 v{Y}, v{M}, 2.0, v{Y}", [M, Y], [Y]),
                V(f"v_lshlrev_b32 v{Y+1}, v{Y+1}, 1", [Y + 1], [Y + 1]),
                I(f"ds_add_rtn_u32 v{OLD+j}, v{Y}, v{Y+1}", "ds", rd=[vr(Y, 2)], wr=[vr(OLD + j)])]
    def place(j):
        M, E, O = R + 2 * j, R + 2 * j + 1, OLD + j
        return [V(f"v_and_b32 v{X}, 8, v{M}", [M], [X]),
                V(f"v_lshrrev_b32 v{X+3}, 14, v{M}", [M], [X + 3]),
                V(f"v_cmp_ne_u32 s[44:45], 0, v{X}", [X], ["s[44:45]"]),
                V(f"v_and_b32 v{X+6}, 0x3cf0, v{X+3}", [X + 3], [X + 6]),
                V(f"v_lshrrev_b32 v{X+1}, 16, v{O}", [O], [X + 1]),
                V(f"v_and_b32 v{X+2}, 0xffff, v{O}", [O], [X + 2]),
                V(f"v_sub_u32 v{X}, 15, v{X+1}", [X + 1], [X]),
                V(f"v_and_b32 v{O}, 2.0, v{M}", [M], [O]),
                V(f"v_add3_u32 v{O}, v{X+2}, v{X+1}, v{O}", [X + 2, X + 1, O], [O]),
                V(f"v_cndmask_b32 v{X}, v{X+2}, v{X}, s[44:45]", [X + 2, X, "s[44:45]"], [X]),
                V(f"v_cmp_gt_u32 s[44:45], 16, v{O}", [O], ["s[44:45]"]),
                V(f"v_cmp_gt_u32 s[36:37], 2.0, v{O}", [O], ["s[36:37]"]),
                V(f"v_lshlrev_b32 v{X}, 2, v{X}", [X], [X]),
                V(f"v_lshrrev_b64 v[{X+2}:{X+3}], v{X}, s[50:51]", [X], [X + 2, X + 3]),
                salu("s_andn2_b64 s[36:37], s[36:37], s[44:45]"),
                V(f"v_lshrrev_b64 v[{X+4}:{X+5}], v{X}, s[52:53]", [X], [X + 4, X + 5]),
                V(f"v_bfe_u32 v{X}, v{M}, 24, 4", [M], [X]),
                V(f"v_mbcnt_lo_u32_b32 v{X+1}, s36, 0", [], [X + 1]),
                V(f"v_and_b32 v{X+2}, 15, v{X+2}", [X + 2], [X + 2]),
                V(f"v_mbcnt_hi_u32_b32 v{X+1}, s37, v{X+1}", [X + 1], [X + 1]),
                V(f"v_and_b32 v{X+4}, 15, v{X+4}", [X + 4], [X + 4]),
                V(f"v_lshl_add_u32 v{X+1}, v{X+1}, 3, s40", [X + 1], [X + 1]),
                V(f"v_lshl_add_u32 v{X+2}, v{X}, 4, v{X+2}", [X, X + 2], [X + 2]),
                V(f"v_min_u32 v{X+1}, s41, v{X+1}", [X + 1], [X + 1]),
                V(f"v_mul_u32_u24 v{X+4}, 68, v{X+4}", [X + 4], [X + 4]),
                V(f"v_cndmask_b32 v{X+1}, v{DUM}, v{X+1}, s[36:37]", [DUM, X + 1], [X + 1]),
                I(f"ds_write_b64 v{X+1}, {vr(M,2)}", "dsw", rd=[vr(X + 1), vr(M, 2)]),
                salu("s_bcnt1_i32_b64 s30, s[36:37]"),
                salu("s_lshl3_add_u32 s40, s30, s40"),
                V(f"v_lshl_add_u32 v{X+2}, v{X+2}, 2, s47", [X + 2], [X + 2]),
                V(f"v_and_b32 v{X+4}, 0x30c, v{X+4}", [X + 4], [X + 4]),
                V(f"v_cndmask_b32 v{X+2}, v{DUM}, v{X+2}, s[44:45]", [DUM, X + 2, "s[44:45]"], [X + 2]),
                V(f"v_add3_u32 v{X+3}, v{X+6}, v{X+4}, s29", [X + 6, X + 4], [X + 3]),
                V(f"v_and_b32 v{X+4}, 0x3fff, v{M}", [M], [X + 4]),
                V(f"v_cndmask_b32 v{X}, v{DUM}, v{X+3}, s[44:45]", [DUM, X + 3, "s[44:45]"], [X]),
                I(f"ds_write_b32 v{X+2}, v{X+4}", "dsw", rd=[vr(X + 2), vr(X + 4)]),
                I(f"ds_write_b32 v{X}, v{E}", "dsw", rd=[vr(X), vr(E)])]
    C = X + 7
    build += rank(0) + rank(1)
    build += [I("s_cmp_gt_u32 s38, s35\n    s_cbranch_scc1 M_r3\nM_r3r:", "other", rd=[vr(R + 4, 2)]),
              ds_read("ds_read_b32", vr(C), vr(vD0))]
    build += place(0) + place(1)
    build += [V(f"v_lshrrev_b32 v{X}, 16, v{C}", [C], [X]),
              V(f"v_and_b32 v{C}, 0xffff, v{C}", [C], [C]),
              V(f"v_add_u32 v{C}, v{C}, v{X}", [C, X], [C]),
              V(f"v_cmp_lt_u32 s[34:35], 16, v{C}", [C], ["s[34:35]"]),
              salu("s_sub_u32 s46, s40, s48"),
              salu("s_add_u32 s46, s46, 56"),
              salu("s_lshr_b32 s46, s46, 6"),
              salu("s_mov_b32 s21, 0"),
              salu("s_and_b32 s27, s34, " + ("0" if o["exp"] & 4 else "0x1ff")),
              I("""s_cmp_gt_u32 s46, 4
    s_cselect_b32 s32, 1, s32
    s_or_b32 s32, s32, s33
    s_cbranch_scc1 M_dn
M_dnr:""", "other")]
    nov = 2 if o["diag"] else 3
    build += [ds_read("ds_read_b128", vr(R, 4), vr(vTQ), f"offset:{L_OVL}"),
              I(f"""s_bcnt1_i32_b32 s30, s27
    s_cmp_gt_u32 s30, {nov}
    s_cselect_b32 s34, 0, s27
    s_cselect_b32 s80, 0, 1""", "other"),
              I("s_getpc_b64 s[36:37]\nM_pc:", "other"),
              V(f"v_bfe_u32 v{X}, v{vL16}, 4, 4", [], [X])]
    for j in range(nov):
        build += [I(f"""s_ff1_i32_b32 s{81+j}, s34
    s_bitset0_b32 s34, s{81+j}
    s_mul_i32 s30, s{81+j}, 20""", "other"),
                  I(f"""s_add_u32 s31, s30, M_ovc{min(j,1)}-M_pc
    s_add_u32 s30, s30, M_ovl{j}-M_pc""", "other"),
                  I(f"""s_cmp_lg_u32 s34, 0
    s_cselect_b32 s30, s31, s30
    s_cmp_lt_i32 s{81+j}, 0
    s_cselect_b32 s30, M_ovn-M_pc, s30""", "other"),
                  I(f"""s_add_u32 s{72+2*j}, s36, s30
    s_addc_u32 s{73+2*j}, s37, 0""", "other")]
    build += [V(f"v_lshrrev_b32 v{X+2}, 18, v{R}", [R], [X + 2]),
              V(f"v_lshrrev_b32 v{X+3}, 18, v{R+2}", [R + 2], [X + 3]),
              V(f"v_and_b32 v{X+4}, 0x3fff, v{R}", [R], [X + 4]),
              V(f"v_and_b32 v{X+5}, 0x3fff, v{R+2}", [R + 2], [X + 5]),
              I(f"ds_write_b64 v{vTQ}, {vr(X+4,2)} offset:{L_OVT}", "dsw", rd=[vr(X + 4, 2)])]
    for j in range(nov):
        build += [V(f"v_lshl_or_b32 v{X+1}, s{81+j}, 6, v{X}", [X], [X + 1]),
                  V(f"v_cmp_eq_u32 s[44:45], v{X+2}, v{X+1}", [X + 1, X + 2], ["s[44:45]"]),
                  V(f"v_cmp_eq_u32 s[36:37], v{X+3}, v{X+1}", [X + 1, X + 3], ["s[36:37]"]),
                  V(f"v_cndmask_b32 v{vOV[j]}, 0, v{R+1}, s[44:45]", [R + 1, "s[44:45]"], [vOV[j]]),
                  V(f"v_cndmask_b32 v{vOV[j]+1}, 0, v{R+3}, s[36:37]", [R + 3, "s[36:37]"], [vOV[j] + 1])]
    seq += [bias_init(1, t) for t in range(9)]
    seq.append(I(count_in("M_cnt"), "other"))
    bar = I("s_barrier", "other", rd=[wfrag(0)])
    seq.append(bar)
    seq += bread_to(0, 0, pbuf(0, 0)) + bread_to(1, 0, pbuf(1, 0))
    assert e_cor + 9 * cper <= 81 and e_cor <= 64 - lag, e_cor
    build.append(tread(tord[0]))
    queue = [(j * (e_cor - 2) // len(build), ins) for j, ins in enumerate(build) if ins]
    build = [i for i in build if i]
    for k in range(9):
        e = e_cor + k * cper
        queue += [(e - 1, xad(0)), (e - 1, xad(1)), (e, gather(0)), (e, gather(1)), (e, xad(2)), (e, xad(3)), (e, gather(2)), (e, gather(3)), (e, aread(tord[k]))]
        queue += [(e, tread(tord[k + 1]))] if k < 8 else []
        if k == 0:
            og = ov_gather()
            queue.insert(len(build), (e - 2, og[0]))
            queue += [(e + 1, i) for i in og[1:]]
        if k == 1:
            queue += [(e + 2, ov_call(0))]
        queue += [(e + cper - 1, csmf(0, tord[k])), (e + cper - 1, csmf(1, tord[k]))]
    def pop(e, nv):
        out = []
        while queue and queue[0][0] <= e and queue[0][1].kind != "valu":
            out.append(queue.pop(0)[1])
        while queue and queue[0][0] <= e and queue[0][1].kind == "valu" and nv:
            out.append(queue.pop(0)[1])
            nv -= 1
        return out
    n2 = o["n2"]
    assert o["nA"] == 2 and o["nF"] == 2
    x2 = xdma(o, "s42", "s22")[:2 * n2]
    for e in range(81):
        s, t = divmod(e, 9)
        seq.append(smf(0, s, t, pbuf(0, s)))
        if o["diag"] == 5 and e % 6 == 0:
            seq.append(I(f"s_memtime s[{SR5[1+e//6]}:{SR5[1+e//6]+1}]", "other"))
        if e + lag < 81:
            seq += wload(e + lag)
        if e + lag == o["xat"] and o["xtail"]:
            assert o["xat"] <= o["x2at"]
            seq += [salu(f"s_add_u32 m0, s29, {L_X + 1024}"), I("buffer_load_dword v0, s[8:11], 0 offen lds", "dma", rd=["v0"])]
        if e + lag >= o["x2at"] and x2 and not o["x2pre"]:
            seq += x2[:2]
            x2 = x2[2:]
        if e in o["tst"]:
            j = o["tst"].index(e)
            seq.append(I(f"buffer_store_dwordx4 v[12:15], v{vS4}, s[12:15], {('s24', 's59')[j % 2]} offen offset:{(j // 2) * 128} {o['stf']}", "store", rd=["v[12:15]"]))
        if s < 7:
            seq += pop(e, 1)
            seq.append(smf(1, s, t, pbuf(1, s)))
        if t == 0 and s < 8:
            seq += bread_to(0, s + 1, pbuf(0, s + 1))
        if t == 1 and s < 8:
            seq += bread_to(1, s + 1, pbuf(1, s + 1))
        seq += pop(e, 6)
        if e == 63 - lag:
            assert not any(i in build for _, i in queue)
    while queue:
        seq += pop(99, 9)
    if o["x2pre"] == 1:
        seq.append(I(f"s_cmp_lt_u32 s2, {NF}\n    s_cbranch_scc0 M_x4\n" + text(finalize(x2)) + "\nM_x4:", "other"))
    elif not o["x2pre"]:
        seq += x2
    if o["diag"] == 5:
        seq.append(I(f"s_memtime s[{SR5[15]}:{SR5[15]+1}]\n    s_waitcnt lgkmcnt(0)\n    s_mov_b32 s62, 16\n" + "\n".join(f"    v_writelane_b32 v255, s{SR5[q]}, {q}\n    v_writelane_b32 v255, s{SR5[q]}, {q+32}" for q in range(16)), "lgkm0"))
    elif o["diag"]:
        seq.append(I(stamp(o).strip(), "lgkm0"))
    seq.append(I(f"""s_cmp_gt_u32 s46, s80
    s_cbranch_scc1 M_slow
M_slowr0:""", "other"))
    seq.append(I(f"""s_cmp_eq_u32 s20, 0
    s_mov_b32 s31, {0x40000000 + L_MB + 8}
    s_cselect_b32 s30, {L_MB}, s31
    v_mov_b32 v{vAt}, s31
    v_writelane_b32 v{vAt}, s30, 0""", "other"))
    seq += sum(epilogue(0, ("s24", "s59"), o), [])
    seq += [salu("s_mov_b32 s89, 0"), salu(f"s_mov_b32 s101, {(768 + o['wth']) * SLOT}"), salu("s_mov_b32 s91, 0"), salu(f"s_mov_b32 s25, {SLOT}"),
            salu(f"s_add_u32 s90, s24, {bstride}"),
            salu(f"s_mov_b32 s28, s26"),
            salu("s_add_u32 s23, s24, 18432"),
            salu("s_cmp_lt_u32 s20, 2"),
            salu("s_cselect_b32 s66, s23, s24"),
            salu(f"s_cselect_b32 s99, s14, {HB}"),
            salu("s_add_u32 s66, s66, s95"),
            ]
    seq += [valu(f"v_add_u32 v{r}, {SLOT}, v{r}", [vr(r)], [vr(r)]) for r in (vRow, vB0, vB1)]
    A(text(finalize(seq, vm=True)))

    vers = [("L", o["win"], 0, False)] + [(f"E{j}", w_, 0, False) for j, (n_, w_) in enumerate(o["early"])]
    vers += ([("W", o["wwin"], 0, False)] if o["wwin"] else []) + ([("P", o["pwin"], 0, False)] if o["pn"] else []) + ([("Q", o["win"], 0, False)] if o["q"] else []) + [("F", o["fwin"], 0, True)]
    dispatch = f"s_cmp_lt_u32 s22, {XB}\n    s_cbranch_scc0 M_bF"
    if o["pn"]:
        dispatch += f"\n    s_cmp_ge_u32 s22, {(2048 - o['pn']) * SLOT}\n    s_cbranch_scc1 M_bP"
    if o["wwin"]:
        dispatch += "\n    s_cmp_eq_u32 s89, 0\n    s_cbranch_scc1 M_bE0\n    s_cmp_eq_u32 s89, 2\n    s_cbranch_scc1 M_bW"
    else:
        dispatch += "".join(f"\n    s_cmp_lt_u32 s91, {n_}\n    s_cbranch_scc1 M_bE{j}" for j, (n_, w_) in enumerate(o["early"]))
    def version(vid, nm, wn, wns, final, resv=()):
        KS = [(0, 1, 2), (3, 4), (5, 6), (7, 8)]
        T9 = list(range(9))
        glist = [(1, KS[3], T9)] + [(0, ks, T9) for ks in KS]
        if final:
            glist += [(1, ks, [8, 0, 1, 2, 3]) for ks in KS] + [(1, ks, [4, 5, 6, 7]) for ks in KS]
        else:
            glist += [(1, ks, T9) for ks in KS[:3]]
        P = {k: o["f" + k] if final and o.get("f" + k) else o[k] for k in ("b0", "per", "e0", "slowat", "e1", "ov", "bar2", "gstep", "rstep")}
        b0, per = P["b0"], P["per"]
        glist = [(rb, ks, list(ts)) for rb, ks, ts in glist]
        cat = {}
        k = nxt = 0
        for rb, ks, ts in glist:
            fixed = set()
            for c in range(len(ts)):
                k += len(ks)
                if nxt < 9 and k >= b0 + per * (nxt + 1):
                    cat[k - 1] = (nxt, rb)
                    if o["cchain"] and tord[nxt] in ts and ts.index(tord[nxt]) not in fixed:
                        j = ts.index(tord[nxt])
                        ts[j], ts[c] = ts[c], ts[j]
                        fixed.add(c)
                    nxt += 1
        mains = []
        gstart = []
        for rb, ks, ts in glist:
            gstart.append(len(mains))
            mains += [smf(rb, s_, t, vBB + 8 * GBUF[s_]) for t in ts for s_ in ks]
        stream = []
        pos = {}
        cpos = {}
        for k in range(len(mains)):
            pos[k] = len(stream)
            stream.append(mains[k])
            if k in cat:
                nxt, rb = cat[k]
                stream.append(csmf(rb, tord[nxt]))
                cpos[nxt] = len(stream)
                stream.append(csmf(1 - rb, tord[nxt]))
        gp = Gaps(len(stream) + 40)
        gp.exact = o["exact"]
        for k in set(resv) - {c - 2 for c in cpos.values()}:
            gp.reserve(k)
        x = xch(o, "s66")
        top_reads = [x[0]]
        bar2 = I("s_barrier", "other", rd=[vr(vG, 4)])
        def greads(j):
            rb, ks, _ = glist[j % len(glist)]
            return sum([bread_to(rb, s_, vBB + 8 * GBUF[s_]) for s_ in ks], [])
        gp.chain(greads(1), 0, step=1)
        gp.nv[1] += [I(dispatch, "other"), I(f"M_b{nm}:", "label")]
        if final and o["nh"]:
            gp.nv[1] += [I(f"s_cmp_ge_u32 s24, {HB}\n    s_cbranch_scc1 M_bH", "other")]
        gp.res[1] += 2
        k = cpos[P["slowat"]]
        gp.nv[k] += [salu("s_cmp_gt_u32 s46, s80"), I("s_cbranch_scc1 M_slow", "other"), I(f"M_slowr{nm}:", "label")]
        gp.put(tread(tord[0]), 7)
        for t in range(9):
            gp.reserve(cpos[t] - 2)
            k = pos[b0] - 2 if t == 0 else cpos[t - 1] - 2
            kg = k + 2
            for j in range(4):
                k = gp.put(xad(j), k) + 1
            for j in range(4):
                kg = gp.put(gather(j), max(kg, k - 3 + j), 3)
                if j == (2 if o["exact"] else 0):
                    gp.put(aread(tord[t]), kg, 3)
                kg += P["gstep"] if j < 3 else 0
            if t < 8:
                gp.put(tread(tord[t + 1]), kg, 3)
        for j in range(1, len(glist) - (1 if final else 0)):
            r = greads(j + 1)
            if j == 4:
                hrel = r[4:]
                r = r[:4]
            if j == 8:
                gp.chain(r[4:], pos[gstart[6] + 4], 2, step=1)
                r = r[:4]
            if o["theta"] >= 0 and (j < 5 or not final):
                nxt_ = pos[gstart[j + 1] - 1] if j + 1 < len(glist) else pos[o["lastrd"]] + o["rlead"]
                gp.lds_chain(r, pos[gstart[j] - 1], nxt_ - o["rlead"], o["theta"], 2)
            else:
                gp.chain(r, pos[gstart[j] - 1], 2 if j < 5 or not final else 3, step=P["rstep"] if j < 5 or not final else 1)
        def win(lst):
            out = []
            for i in lst:
                if i.kind in ("store", "dma") and wn:
                    out.append(I("WIN", "wait"))
                out.append(i)
            return out
        gp.chain(win(x[1:]), o['xst'], 3)
        gp.put(bar2, P["bar2"])
        ovl = ov_gather()
        k = gp.put(ovl[0], pos[P["ov"][0]], 3)
        k = gp.chain(ovl[1:], max(k + 5, pos[P["ov"][1]]), 3)
        for u, g in enumerate(epilogue(1, ("s23", "s58"), o)):
            k = max(k, gp.chain(win(g), pos[P["e1"][u]], 3))
        k = max(k + 6, pos[P["ov"][2]])
        while gp.load(k) > 0:
            k += 1
        ovchk = [ov_call(nm)]
        gp.nv[k].append(ovchk[0])
        gp.res[k] += 2
        gp.chain(hrel, max(k + 1, pos[P["ov"][3]]), 2, step=1)
        atom = I(f"buffer_atomic_add v0, v{vAt}, s[16:19], s92 offen sc0 sc1", "store", rd=["v0", vr(vAt)])
        dyn = not final and not (o["estat"] and nm[0] == "E")
        if not final and not dyn:
            krf = gp.put(salu(f"s_add_u32 s88, s22, {bstride}"), 9)
        if dyn:
            if o["nh"]:
                gp.nv[2] += [salu(f"s_cmp_lt_u32 s22, {HB}"), salu("s_cselect_b32 s30, 1, 0")]
            gp.put(valu("v_mov_b32 v0, " + ("s30" if o["nh"] else "1"), [], ["v0"]), 3)
            gp.chain(win([atom]), pos[o["claim"][0]], 2)
        awt = I("s_waitcnt vmcnt(0)", "wait")
        mbw = I(f"ds_write_b32 v{vAt}, v0", "dsw", rd=["v0", vr(vAt)], wr=["@mb"])
        bar3 = I("s_barrier", "other", rd=["@mb"])
        sel10 = salu(f"s_cselect_b32 s10, {XB}, 0")
        if dyn: gp.chain([awt, valu("v_mul_u32_u24 v0, s94, v0", ["v0"], ["v0"]), valu("v_add_u32 v0, s93, v0", ["v0"], ["v0"]),
                  ] + ([] if o["nh"] else [valu(f"v_min_u32 v0, {XB}, v0", ["v0"], ["v0"])]) + [
                  mbw, valu(f"v_mov_b32 v0, {L_MB}", [], ["v0"])], pos[o["claim"][1]], 3)
        if dyn:
            k = gp.chain([bar3, ds_read("ds_read_b32", "v0", "v0")], pos[o["claim"][2]], 3)
            k = gp.put(valu("v_readfirstlane_b32 s88, v0", ["v0"], ["s88"]), k + 5)
            if o["nh"]:
                k = gp.chain([salu(f"s_add_u32 s30, s88, {HB}"), salu("s_lshr_b32 s30, s30, 1"), salu("s_min_u32 s88, s88, s30"), salu("s_min_u32 s88, s88, s14")], k + 1, 3) + 1
                while gp.load(k, sel10) > 2:
                    k += 1
                gp.nv[k] += [salu(f"s_cmp_lt_u32 s22, {HB}"), salu("s_cselect_b32 s88, s88, s14")]
            krf = k
        for u, g in sorted(enumerate(epilogue(0, ("s24", "s59"), o, init=not final)), key=lambda z: z[0] != 2):
            gp.chain(win(g), pos[P["e0"][u]], 3)
        d = xdma(o, "s28", "s22")[2 * n2:] + xdma(o, "s28", "s88")[:2 * n2]
        gp.put(salu(f"s_mov_b32 s21, {vid}"), 8)
        kd = 0
        for j in range(0 if final else 9):
            if j == 9 - n2:
                kd = max(kd, krf) + 1
                while gp.load(kd, sel10) > 2:
                    kd += 1
                gp.nv[kd] += [salu("s_cmp_lt_u32 s88, s99"), sel10]
                if o["q"] and nm in "LQ":
                    kd += 1
                    while gp.load(kd) > 0:
                        kd += 1
                    gp.nv[kd] += [I("s_cmp_lt_u32 s88, s14\n    s_cbranch_scc0 M_q", "other"), I("M_q:" if nm == "Q" else "M_nq:", "label")]
                    gp.res[kd] += 2
            k = gp.put(d[2 * j], max(kd + 1, pos[o["pdma" if nm == "P" and o["pdma"] else "dma"][j]]), 2)
            kd = gp.chain(win([d[2 * j + 1]]), k if wn and o["exact"] else k + 1, 3)
        book = [salu(f"s_add_u32 s28, s28, {SLOT}"),
                salu(f"s_cmp_ge_u32 s28, {NSLOT*SLOT}"),
                salu(f"s_cselect_b32 s28, s26, s28"),
                salu(f"s_add_u32 s30, s25, {SLOT}"),
                salu(f"s_cmp_eq_u32 s30, {NSLOT*SLOT}"),
                salu(f"s_cselect_b32 s30, 0, s30"),
                salu(f"s_sub_u32 s31, s30, s25"),
                salu(f"s_mov_b32 s25, s30"),
                salu("s_mov_b32 s90, s22"),
                salu("s_mov_b32 s22, s88"),
                salu("s_add_u32 s91, s91, 1")] + ([
                salu(f"s_cmp_ge_u32 s91, {o['early'][0][0]}"),
                salu("s_cselect_b32 s89, 1, 0"),
                salu(f"s_cmp_ge_u32 s91, {o['wfrom']}"),
                salu("s_cselect_b32 s30, s101, -1"),
                salu("s_cmp_gt_u32 s88, s30"),
                salu("s_addc_u32 s89, s89, 0"),
                salu(f"s_add_u32 s101, s101, {256*SLOT}")] if o["wwin"] else []) + [
                salu("s_cmp_lt_u32 s20, 2"),
                salu("s_cselect_b32 s66, s23, s24"),
                salu("s_add_u32 s66, s66, s95")]
        if final:
            book = book[-3:] + [salu("s_add_u32 s23, s24, 18432"), salu("s_add_u32 s58, s24, 27648"), salu("s_add_u32 s67, s23, s95")]
            fl = o["fl"]
            xa, xb = xch(o, "s66", vT), xch(o, "s67", vT, 1024)
            barx = [I("s_barrier", "other", rd=["@x0"]), I("s_barrier", "other", rd=["@x2"])]
            k = gp.chain([barx[0], xa[0]], pos[fl[0]], 3)
            gp.put(xa[1], k + 6)
            ep = epilogue(1, ("s23", "s58"), o, init=False, xoff=1024)
            k = gp.chain(ep[2], pos[fl[1]], 3)
            k = gp.chain([barx[1], xb[0]], k + 4, 3)
            k += 6
            while gp.load(k) > 0:
                k += 1
            gp.nv[k] += [salu("s_cmp_lt_u32 s20, 2"), I("s_cbranch_scc0 M_fx", "other", rd=[vr(vT, 4)]), xb[1], I("M_fx:", "label")]
            gp.chain(ep[0], pos[fl[2]], 3)
            gp.chain(ep[1], pos[fl[3]], 3)
        kb = gp.chain(book, pos[o["fbook" if final else "book"]], 3)
        if not final: k = gp.chain([valu(f"v_add_u32 v{r}, s31, v{r}", [vr(r)], [vr(r)]) for r in (vRow, vB0, vB1)], max(kb + 1, pos[152]))
        body = []
        for k in range(len(stream) + 40):
            if k < len(stream):
                body.append(stream[k])
            else:
                assert final or not gp.gap(k)
            body += gp.gap(k)
        for j, i in enumerate([i for i in body if i.text == "WIN"]):
            i.text = f"s_waitcnt vmcnt({(wn * (j + 1)) // 10 - (wn * j) // 10 - 1})"
        if final:
            wr23 = body.index(book[3])
            assert all((j < wr23) == (i not in ep[0] + ep[1]) for j, i in enumerate(body) if i.kind == "store" and ("s23" in i.text or "s58" in i.text))
            assert body.index(book[2]) < body.index(xa[1]) and body.index(book[5]) < body.index(xb[1]) and body.index(x[1]) < body.index(book[1])
            assert max(j for j, i in enumerate(body) if "read2st64" in i.text) < body.index(xa[0]) and body.index(xa[1]) < body.index(xb[0])
            assert all(j < body.index(barx[0]) for j, i in enumerate(body) if i.kind == "dsw" and ("@", "@x2") not in i.wr)
        for r in (vRow, vB0, vB1) if not final else ():
            w = [j for j, i in enumerate(body) if ("v", r) in i.wr]
            u = [j for j, i in enumerate(body) if ("v", r) in i.rd]
            assert len(w) == 1 and max(u) == w[0], r
        for rb in range(2):
            for t in range(9):
                RR = regs(vr(vACC[rb] + 4 * t, 4))
                ev = "".join("I" if i.kind == "ds" else "M" if i.kind == "mfma" else "E" for i in body if (i.rd | i.wr) & RR and i.kind != "other")
                assert re.fullmatch("M{10}E+I?" if rb == 0 else "MME+IM{10}E+" if final else "MME+IM{8}", ev), (rb, t, ev)
        sl = [j for j, i in enumerate(body) if "M_slowr" in i.text][0]
        assert all(j < sl for j, i in enumerate(body) if i.kind == "ds" and i.wr & regs(vr(vACC[1], 36)))
        assert all(j > sl for j, i in enumerate(body) if i.kind == "valu" and i.rd & regs(vr(vACC[0], 36)))
        assert body[sl - 3] is stream[cpos[P["slowat"]]]
        dm = [j for j, i in enumerate(body) if i.kind == "dma"]
        lastdma = dm[8 - n2] if dm else 0
        if dm:
            assert [body[j] for j in dm] == d[1::2]
            assert lastdma < body.index(sel10) < dm[9 - n2] and body.index(d[2 * (9 - n2)]) < body.index(book[0])
            assert lastdma < body.index(book[8]) and body.index(sel10) < body.index(book[9])
            assert not dyn or body.index(mbw) < body.index(bar3)
            for j in range(9):
                assert body.index(d[2 * j]) < dm[j] and (j == 0 or body.index(d[2 * j]) > dm[j - 1])
        hw = [j for j, i in enumerate(body) if i.kind == "ds" and "read_b" in i.text and i.wr & regs(vr(H, 8))]
        hm = [j for j, i in enumerate(body) if i.kind == "mfma" and i.rd & regs(vr(H, 8))]
        assert hm[8] < hw[2] and body.index(ovchk[-1]) < hw[3]
        assert all(j < body.index(ovchk[0]) for j, i in enumerate(body) if i.kind == "ds" and i.wr & regs(vr(vACC[1], 36)))
        assert all(j > body.index(bar2) for j, i in enumerate(body) if i.kind == "dsw")
        assert body.index(x[1]) < min(j for j, i in enumerate(body) if "read2st64" in i.text)
        for j, i in enumerate(body):
            if ("cselect" in i.text or "s_cbranch_scc" in i.text or "s_addc" in i.text) and "\n" not in i.text:
                p = max(q for q in range(j) if (body[q].kind == "salu" and "s_mov" not in body[q].text) or "\n" in body[q].text)
                assert body[p].text.startswith("s_cmp") and "\n" not in body[p].text, (i.text, body[p].text)
        isvm = lambda i: i.kind in ("dma", "store")
        if dyn: awt.text = f"s_waitcnt vmcnt({sum(isvm(i) for i in body[body.index(atom) + 1:body.index(awt)])})"
        nstrict = sum(isvm(i) for i in body[lastdma + 1:])
        if nm == "Q":
            c = [j for j, i in enumerate(body) if i.text == "M_q:"][0]
            assert sl > c or True
            body = body[:c] + [i for i in body[c:] if i not in d and not (i.kind == "wait" and "vmcnt" in i.text)]
            nstrict -= n2
        seq = []
        seq.append(I("M_top:", "label"))
        if o["diag"] == 3:
            seq.append(I(stamp(o).strip(), "other"))
        seq.append(I("M_top1:", "label"))
        if o["diag"]:
            seq.append(I(stamp(o).strip(), "other"))
        seq.append(salu(f"s_add_u32 s23, s24, 18432"))
        seq.append(salu(f"s_add_u32 s58, s24, 27648"))
        seq.append(salu(f"s_mov_b32 s24, s90"))
        seq.append(salu(f"s_add_u32 s59, s90, 9216"))
        seq.append(I(f"s_waitcnt lgkmcnt(0)", "lgkm0"))
        seq.append(I("s_barrier", "other"))
        if o["diag"] == 3:
            seq.append(I(stamp(o).strip(), "other"))
        seq += top_reads
        seq += body
        if not final:
            seq.append(I(f"s_waitcnt vmcnt({nstrict})", "wait"))
            seq.append(I("s_branch M_top1", "other"))
        if o["diag"] == 4 and final:
            seq2, nm_, on = [], 0, False
            sr = list(range(32, 44, 2)) + [48, 50, 52, 60, 64, 98, 90, 88, 92, 96, 84, 86, 8, 10, 4, 6, 68, 70]
            st_ = o["dstep"]
            for i in seq:
                on = on or i.text == "M_bF:"
                if on and i.kind == "mfma":
                    if nm_ % st_ == 0:
                        seq2.append(i); seq2.append(I(f"s_memtime s[{sr[nm_//st_]}:{sr[nm_//st_]+1}]", "other")); nm_ += 1
                        continue
                    nm_ += 1
                seq2.append(i)
            j = (nm_ + st_ - 1) // st_
            seq2.append(I(f"s_memtime s[{sr[j]}:{sr[j]+1}]\n    s_waitcnt lgkmcnt(0)\n    v_mov_b32 v255, 0\n    s_mov_b32 s62, {j+1}\n" + "\n".join(f"    v_writelane_b32 v255, s{sr[q]}, {q}\n    v_writelane_b32 v255, s{sr[q]}, {q+32}" for q in range(j + 1)), "other"))
            seq = seq2
        out = finalize(seq, hoist=o["exact"])
        if o["exact"]:
            k, found = -1, set()
            for i in out:
                k += i.kind == "mfma"
                if i.kind == "wait" and "lgkm" in i.text and k >= 2:
                    found.add(k)
            if not found <= set(resv) and len(resv) < o["maxres"]:
                return version(vid, nm, wn, wns, final, tuple(found | set(resv)))
        COST[nm] = gap_cost(out)
        if o["cost"]:
            print(nm, "modelled loss", COST[nm], "reserved", len(resv), file=sys.stderr)
        cut = [j for j, i in enumerate(out) if i.text == f"M_b{nm}:"][0]
        if nm == "Q":
            c = [j for j, i in enumerate(out) if i.text == "M_q:"][0]
            return out[:cut], out[c:c + 1] + [salu(f"s_mov_b32 s21, {vid}")] + out[c + 1:], nstrict
        return out[:cut], out[cut:], nstrict
    def half(vid):
        TA, TB = [8, 0, 1, 2, 3], [4, 5, 6, 7]
        glist = [(1, {7: 3, 8: 4}, list(range(9))), (0, {0: 0, 1: 1, 2: 2}, TA), (0, {3: 3, 4: 4}, TA), (0, {5: 0, 6: 1}, TA), (0, {7: 3, 8: 4}, TA),
                 (0, {0: 0, 1: 1}, TB), (0, {2: 3, 3: 4}, TB), (0, {4: 0, 5: 1}, TB), (0, {6: 3, 7: 4, 8: 2}, TB)]
        b0, per, hp = o["hb0"], o["hper"], o["hp"]
        to = [8, 0, 1, 2, 3, 4, 5, 6, 7]
        stream, pos, cpos, gstart, nxt, k = [], {}, {}, [], 0, 0
        for rb, kb_, ts in glist:
            gstart.append(k)
            for t in ts:
                for s_, b_ in kb_.items():
                    pos[k] = len(stream)
                    stream.append(smf(rb, s_, t, vBB + 8 * b_))
                    k += 1
                if nxt < 9 and k >= b0 + per * (nxt + 1):
                    cpos[nxt] = len(stream)
                    stream.append(csmf(0, to[nxt]))
                    nxt += 1
        assert nxt == 9
        gp = Gaps(len(stream) + 60)
        greads = lambda j: sum([bread_to(glist[j][0], s_, vBB + 8 * b_) for s_, b_ in glist[j][1].items()], [])
        x = xch(o, "s66")
        gp.chain(greads(1), 0, step=1)
        gp.nv[1] += [I(dispatch, "other"), I("M_bH:", "label")]
        gp.res[1] += 2
        gp.put(tread(to[0]), 2)
        gp.put(x[1], 5)
        gp.put(salu(f"s_mov_b32 s21, {vid}"), 6)
        slow = I("s_cbranch_scc1 M_slow", "other")
        gp.nv[cpos[hp[0]]] += [salu("s_cmp_gt_u32 s46, s80"), slow, I("M_slowrH:", "label")]
        for t in range(9):
            gp.reserve(cpos[t] - 1)
            k = pos[b0] - 1 if t == 0 else cpos[t - 1] - 1
            kg = k + 1
            for j in range(4):
                k = gp.put(xad(j), k) + 1
                kg = gp.put(ds_read("ds_read_b32", vr(vG + 2 * j), vr(vT + j)), max(kg, k), 3)
                if j == 0:
                    gp.put(aread(to[t]), kg, 3)
            if t < 8:
                gp.put(tread(to[t + 1]), kg, 3)
        for j in range(1, len(glist) - 1):
            gp.chain(greads(j + 1)[:4], pos[gstart[j] - 1], 3, step=1)
        bar2 = I("s_barrier", "other", rd=[vr(vG, 4)])
        gp.put(bar2, 6)
        ovl = ov_gather()
        k = gp.put(ovl[0], pos[33], 3)
        k = gp.chain(ovl[1:], k + 5, 3) + 5
        e1 = epilogue(1, ("s23", "s58"), o, init=False)
        for u in (2, 0, 1):
            k = max(k, gp.chain(e1[u], pos[hp[1 + u]], 3) + 1)
        while gp.load(k) > 1 or gp.v[k] is not None:
            k += 1
        call = ov_call("H")
        gp.nv[k].append(call)
        gp.res[k] += 2
        gp.chain(greads(8)[4:], k + 1, 3, step=1)
        book = [salu("s_cmp_lt_u32 s20, 2"), salu("s_cselect_b32 s66, s23, s24"), salu("s_add_u32 s66, s66, s95")]
        gp.nv[7] = book + gp.nv[7]
        e0 = epilogue(0, ("s24", "s59"), o, init=False)
        k0 = max(k + 5, cpos[hp[0]] + 1, pos[hp[4]])
        k = gp.chain(e0[2], k0, 3)
        xa = xch(o, "s66", vACC[1])
        barx = I("s_barrier", "other", rd=["@x0"])
        k = gp.chain([barx, xa[0]], k + 4, 3)
        gp.put(xa[1], k + 6)
        k = gp.chain(e0[0], k0, 3)
        gp.chain(e0[1], max(k + 1, len(stream) - 3), 3)
        body = []
        for k in range(len(stream) + 60):
            body += ([stream[k]] if k < len(stream) else []) + gp.gap(k)
        for rb in range(2):
            for t in range(9):
                RR = regs(vr(vACC[rb] + 4 * t, 4))
                ev = "".join("I" if i.kind == "ds" else "M" if i.kind == "mfma" else "E" for i in body if (i.rd | i.wr) & RR and i.kind != "other")
                assert re.fullmatch("M{10}E+" if rb == 0 else "MME+(IE)?", ev), (rb, t, ev)
        ix = lambda l: [body.index(i) for i in l]
        for c in (slow, call):
            assert max(ix(sum(e1, []))) < body.index(c) < min(ix(sum(e0, []) + xa))
        hw = [j for j, i in enumerate(body) if i.kind == "ds" and "read_b" in i.text and i.wr & regs(vr(H, 8))]
        hm = [j for j, i in enumerate(body) if i.kind == "mfma" and i.rd & regs(vr(H, 8))]
        assert hm[4] < hw[2] and body.index(call) < hw[3] and hw[4] < hm[5]
        assert body.index(x[1]) < body.index(book[1]) and body.index(x[1]) < min(j for j, i in enumerate(body) if "read_b32" in i.text)
        assert all(body.index(bar2) < j < body.index(barx) for j, i in enumerate(body) if i.kind == "dsw")
        out = finalize([I("s_waitcnt lgkmcnt(0)", "lgkm0"), x[0]] + body + [I("s_branch M_done", "other")])
        COST["H"] = gap_cost(out)
        if o["cost"]:
            print("H modelled loss", COST["H"], file=sys.stderr)
        cut = [j for j, i in enumerate(out) if i.text == "M_bH:"][0]
        return out[:cut], out[cut:]
    built = [version(j + 1, *v) for j, v in enumerate(vers)]
    assert all(text(h[3:]) == text(built[0][0][3:]) for h, _, _ in built)
    A(text(built[0][0]))
    for _, bd, _ in built[:-1]:
        A(text(bd))
    if o["nh"]:
        vers.append(("H",))
        hh, hb = half(len(vers))
        assert text(built[0][0]).endswith(text(hh[1:]))
        A(text(hb))
    A(text(built[-1][1]))
    A("M_done:")
    A(stamp(o))
    A(stamp_out(o))
    A("M_end:\n    s_endpgm")
    A(spin_out(o, "M_pf", "s100", NARR, "s96"))
    A("M_r3:")
    A(text(finalize(rank(2) + place(2))))
    A("""    s_cmp_gt_u32 s38, s39
    s_cselect_b32 s32, 1, s32
    s_branch M_r3r""")
    A("M_dn:\n    s_mov_b32 s27, 0\n    s_mov_b32 s46, 0x80000000")
    for j in range(4):
        A(f"    v_mov_b32 v{vG+j}, 0")
    for t in range(9):
        A(f"    ds_write_b128 v{vTA}, {vr(vG,4)} offset:{t*1024}")
    A("    s_waitcnt lgkmcnt(0)\n    s_branch M_dnr")
    def ret(lab, lab0):
        return "".join(f"    s_cmp_eq_u32 s21, {j+1}\n    s_cbranch_scc1 {lab}{v[0]}\n" for j, v in enumerate(vers)) + f"    s_branch {lab0}"
    def ovtile(t, E, G, a):
        return f"""    v_lshrrev_b32 v{a}, 18, v{E}
    v_lshrrev_b32 v{a+1}, 18, v{E+2}
    v_or_b32 v{vA+1}, {t << 6}, v{vA}
    v_cmp_eq_u32 s[44:45], v{a}, v{vA+1}
    v_cmp_eq_u32 s[54:55], v{a+1}, v{vA+1}
    s_nop 0
    v_cndmask_b32 v{a}, 0, v{E+1}, s[44:45]
    v_cndmask_b32 v{a+1}, 0, v{E+3}, s[54:55]
    s_nop 1
    v_smfmac_f32_16x16x32_bf16 {vr(vACC[0]+4*t,4)}, {vr(a,2)}, {vr(G,4)}, v{vCI}
    v_smfmac_f32_16x16x32_bf16 {vr(vACC[1]+4*t,4)}, {vr(a,2)}, {vr(G,4)}, v{vCI} abid:2"""
    for kind, j in (("c", 0), ("l", 0), ("c", 1), ("l", 1), ("l", 2)):
        A(f"M_ov{kind}{j}:")
        for t in range(9):
            A(f"""    v_smfmac_f32_16x16x32_bf16 {vr(vACC[0]+4*t,4)}, {vr(vOV[j],2)}, {vr(H,4)}, v{vCI}
    v_smfmac_f32_16x16x32_bf16 {vr(vACC[1]+4*t,4)}, {vr(vOV[j],2)}, {vr(H,4)}, v{vCI} abid:2
    s_setpc_b64 {f"s[{74+2*j}:{75+2*j}]" if kind == "c" else "s[78:79]"}""")
    A("M_ovn:\n    s_setpc_b64 s[78:79]")
    G = vG
    A(f"""M_slow:
    s_bitcmp1_b32 s46, 31
    s_cbranch_scc1 M_dense
    s_mov_b32 s56, s80
M_sl:
    s_lshl_b32 s57, s56, 6
    v_add_u32 v{vA}, s57, v{vTQ}
    ds_read_b128 {vr(G+4,4)}, v{vA} offset:{L_OVL}
    s_waitcnt lgkmcnt(0)
    v_and_b32 v{vA}, 0x3fff, v{G+4}
    v_and_b32 v{vA+1}, 0x3fff, v{G+6}
    v_xad_u32 v{vA}, v{vA}, v{vXor}, v{vRow}
    v_xad_u32 v{vA+1}, v{vA+1}, v{vXor}, v{vRow}
    ds_read2st64_b32 {vr(G,2)}, v{vA} offset0:0 offset1:72
    ds_read2st64_b32 {vr(G+2,2)}, v{vA+1} offset0:0 offset1:72
    v_subrev_u32 v{vA}, s29, v{vTA}
    v_bfe_u32 v{vA}, v{vA}, 4, 4
    s_waitcnt lgkmcnt(0)""")
    for t in range(9):
        A(f"""    s_bitcmp1_b32 s27, {t}
    s_cbranch_scc0 M_sle{t}
{ovtile(t, G + 4, G, vA + 2)}
M_sle{t}:""")
    A(f"""    s_add_u32 s56, s56, 1
    s_cmp_lt_u32 s56, s46
    s_cbranch_scc1 M_sl
M_slx:
    s_nop 7
{ret("M_slowr", "M_slowr0")}
M_dense:""")
    for rb in range(2):
        A(f"""    s_mul_i32 s57, s20, {81*1024}
    s_add_u32 s57, s57, {EFB}
    s_mov_b32 s56, 0
    v_mov_b32 v54, v{vB0}
    v_mov_b32 v55, v{vB1}
    v_subrev_u32 v252, s29, v{vTA}
M_dn{rb}:
    ds_read_b128 {vr(G,4)}, v54 offset:{rb*18432}
    ds_read_b128 {vr(G+4,4)}, v55 offset:{rb*18432}
    v_add_u32 v54, 1024, v54
    v_add_u32 v55, 1024, v55""")
        for t in range(9):
            A(f"""    buffer_load_dwordx4 {vr(vA,4)}, v252, s[16:19], s57 offen sc1
    s_add_u32 s57, s57, 1024
    s_waitcnt vmcnt(0) lgkmcnt(0)
    v_smfmac_f32_16x16x64_bf16 {vr(vACC[rb]+4*t,4)}, {vr(vA,4)}, {vr(G,8)}, v{vCI}""")
        A(f"""    s_add_u32 s56, s56, 1
    s_cmp_lt_u32 s56, 9
    s_cbranch_scc1 M_dn{rb}""")
    A("    s_branch M_slx")
    A("M_codeend:")
    return "\n".join(L)

def gen(**kw):
    o = dict(DEF)
    o.update(kw)
    hdr = f"""; out = x @ prune_2of4(w) + b   (bf16, M=65536 K=576 N=576); generated by dev/gen6.py
; @launch grid=(256,1,1) block=(256,1,1) lds={LDS_BYTES}
.amdgcn_target "amdgcn-amd-amdhsa--gfx950"
.text
.globl {NAME}_kernel
"""
    kd = f"""
.section .rodata,"a"
.p2align 6
.amdhsa_kernel {NAME}_kernel
  .amdhsa_next_free_vgpr 512
  .amdhsa_next_free_sgpr 102
  .amdhsa_accum_offset 256
  .amdhsa_group_segment_fixed_size 0
  .amdhsa_kernarg_size 48
  .amdhsa_user_sgpr_count 2
  .amdhsa_user_sgpr_kernarg_segment_ptr 1
  .amdhsa_system_sgpr_workgroup_id_x 1
  .amdhsa_float_denorm_mode_32 3
.end_amdhsa_kernel
"""
    src = hdr + gen_main(o) + kd
    return "\n".join(l for l in src.split("\n") if l.strip()) + "\n"

if __name__ == "__main__":
    kw = {}
    out = f"/code/{NAME}.s"
    for a in sys.argv[1:]:
        if "=" in a:
            k, v = a.split("=", 1)
            assert k in DEF, k
            kw[k] = int(v) if v.lstrip("-").isdigit() else (eval(v) if v.startswith("[") else v.replace("+", " "))
        else:
            out = a
    open(out, "w").write(gen(**kw))
    print("wrote", out)
```

```python
import sys
from asmlib import *

NAME = "standalone__structured_sparse_n_m__ragged"
XB = 16 * 4096 * 576 * 2
WSB = 301989888
WSTR = 96 * 1024
U_REC, U_I8 = 0, 4
RA, RB = 176, 96
def u_idx(s): return 6 + 10 * s
def u_frag(s, t): return 7 + 10 * s + t
EFB = 4 * WSTR
CTR = EFB + 324 * 1024
SIG = CTR + 1024
WS_USED = SIG + 256 * 256
NF = 81
NARR = 27
CNT_F = 0
SLOT = 36864
NSLOT = 3
LTAB = NSLOT * SLOT
L_T0, L_OVL, L_CNT, L_BIAS, L_X = 9216, 9792, 10112, 10240, 10816
LTABW = L_X + 2048
L_MB = LTAB + 4 * LTABW
LDS_BYTES = L_MB + 16
RAW = 2 * SLOT
R_CNT = RAW + 8192
MDUM = 1 << 30
SPIN = 1 << 17

DEF = dict(xnt="nt", stf="sc1", inter=1, diag=0, nA=2, nF=2, lag=24, ecor=36, cper=5,
           gstep=1, book=132, b0=24, per=12, tord=[3, 1, 2, 0, 8, 7, 5, 6, 4], e1=[10, 44, 36], e0=[106, 137, 102],
           dma=[14, 38, 48, 74, 86, 102, 114, 138, 146], nostore=0, wsc="sc1", chain=1, win=70, rstep=1, slowat=5,
           bar2=21, claim=[8, 72, 84], touch=24, ctouch=2, xtail=16, pw=3, nfast=6, testfb=0, ov=[46, 58, 70, 91], pf="atom", slp=4, R=16, xwin=0, fx=3, fx2=0, fxb=0, dstep=9, e2=1, x2n=0, x2step=1, pp=0, blate=1, fpre=0, tpos=12, qplain=0, fplain=0, wb=[], ftouch=0, ftn=81, q=1, nh=0, hb0=8, hper=9, hp=[6, 10, 30, 22, 66], estat=0, fe1=0, fov=0, fbar2=0, fgstep=0, frstep=0, exact=0, maxres=30, cost=0, cchain=1, align=1, toob=1, pn=0, pwin=0, pdma=[], xw=[12, 26, 40, 56, 74, 92, 108, 126, 142], wwin=0, wth=160, wfrom=1, theta=16, rlead=9, lastrd=150, xa=5, tst=[], exp=0, xfull=0, xat=81, early=[(2, 60)], fwin=0, xA=0, n2=4, x2at=81, nsh=2, xst=6, x2pre=0, stail=0, sfull=0, sdist=[2, 2, 2, 2, 2, 2, 2, 1, 17], fb0=22, fper=11, fe0=[100, 124, 104], fslowat=5, fbook=84, fl=[116, 140, 147, 179])

DIAG = 1 << 20
def stamp(o, first=False, cond=False):
    if not o["diag"]:
        return ""
    if cond:
        return "    s_cmp_lg_u32 s21, 1\n    s_cbranch_scc1 D_c\n" + stamp(o) + "\n" + stamp(o) + "\nD_c:"
    L = []
    if first:
        L += ["    s_mov_b32 s62, 0", "    v_mov_b32 v255, 0"]
    L += ["    s_mov_b32 s63, m0", "    s_memrealtime s[60:61]", "    s_memtime s[64:65]", "    s_waitcnt lgkmcnt(0)", "    s_mov_b32 m0, s62", "    v_writelane_b32 v255, s60, m0",
          "    s_add_u32 m0, s62, 32", "    v_writelane_b32 v255, s64, m0", "    s_add_u32 s62, s62, 1", "    s_mov_b32 m0, s63"]
    return "\n".join(L)
def stamp_out(o):
    if not o["diag"]:
        return ""
    L = ["    s_mov_b64 exec, -1", "    s_waitcnt vmcnt(0)", stamp(o), f"    s_mov_b32 s18, {WSB}",
         "    s_lshl_b32 s60, s2, 2", "    s_add_u32 s60, s60, s20", "    s_lshl_b32 s60, s60, 8", f"    s_add_u32 s60, s60, {DIAG}",
         "    v_mbcnt_lo_u32_b32 v0, -1, 0", "    v_mbcnt_hi_u32_b32 v0, -1, v0", "    v_lshlrev_b32 v0, 2, v0",
         "    buffer_store_dword v255, v0, s[16:19], s60 offen"]
    return "\n".join(L)

def lut_tables():
    l64 = 0
    l32 = 0
    for nk in range(16):
        keep = [j for j in range(4) if not (nk >> j) & 1]
        e = 0
        if len(keep) >= 2:
            ia, ib = keep[-2], keep[-1]
            for j in keep[:-2]:
                assert j < 2
                e |= 1 << j
        elif len(keep) == 1:
            ib = keep[0]
            ia = (ib + 1) % 4
            if ia > ib:
                ia, ib = ib, ia
        else:
            ia, ib = 0, 1
        l64 |= (ia | ib << 2) << (4 * nk)
        l32 |= e << (2 * nk)
    return l64, l32

vB0, vB1, vXor, vRow, vDma, vS4, vS2, vTA, vTQ, vCI, vL16 = range(1, 12)
vIDX = 12
vXw, vL8, vD1 = 53, 54, 55
vD0 = 121
vR = 92
vAt = vL16
vWF = 56
vACC = (124, 160)
vBB = 196
vT, vA, vG = 236, 240, 244
vOV = (54, 252, 254)
L_OVT = L_OVL + 264
GROUPS = [(0, (0, 1, 2)), (0, (3, 4)), (0, (5, 6)), (0, (7, 8)), (1, (0, 1, 2)), (1, (3, 4)), (1, (5, 6)), (1, (7, 8))]
GBUF = {0: 0, 1: 1, 2: 2, 3: 3, 4: 4, 5: 0, 6: 1, 7: 3, 8: 4}

def slot_luts():
    lt = ll = 0
    for p in range(16):
        r = p if p < 8 else 15 - p
        qb = 2 * (r >> 2) + (p >> 3)
        jj = r & 3
        lt |= (qb * 4 + jj) << (4 * p)
        ll |= (((jj // 2) * 2 + qb // 2) * 4 + (qb % 2) * 2 + jj % 2) << (4 * p)
    return lt, ll

def poll(o, v):
    if o["pf"] != "atom":
        return f"    buffer_load_dword v{v}, off, s[16:19], s96 {o['pf']}"
    return f"""    v_mov_b32 v{v}, 0
    s_mov_b64 exec, 1
    buffer_atomic_add v{v}, off, s[16:19], s96 sc0 sc1
    s_mov_b64 exec, -1"""

def kwait(o, first=""):
    return f"""    s_waitcnt lgkmcnt(0)
    s_mov_b64 s[4:5], s[74:75]
{first}
    s_mov_b64 s[16:17], s[82:83]
    s_mov_b64 s[8:9], s[72:73]
    s_mov_b64 s[84:85], s[76:77]
    s_mov_b64 s[68:69], s[80:81]
    ; what the arrival counter this wave will poll holds before this launch adds to it
{poll(o, vCI)}"""

def stail(o):
    c = o["stail"]
    if not c:
        return ""
    J = 9 * c
    mg = ((1 << 20) + J - 1) // J
    assert all((e * mg) >> 20 == e // J for e in range(700)) and 5 * J <= 700
    return f"""    s_mul_i32 s30, s20, {256 - NF}
    s_add_u32 s30, s30, s2
    s_sub_u32 s30, s30, {NF}
    s_min_u32 s30, s30, {5*J - 1}
    s_mul_i32 s31, s30, {mg}
    s_lshr_b32 s31, s31, 20                   ; row r holds line r-1 in its first c*r columns, then line 8-r
    s_mul_i32 s32, s31, {J}
    s_sub_u32 s30, s30, s32
    s_mul_i32 s32, s31, {c}
    s_sub_u32 s33, s30, s32
    s_sub_u32 s34, s31, 1
    s_sub_u32 s31, 8, s31
    s_cmp_lt_u32 s30, s32
    s_cselect_b32 s30, s30, s33
    s_cselect_b32 s31, s34, s31
    s_sub_u32 s30, {2047 - o["sfull"]}, s30
    s_mul_i32 s30, s30, {SLOT}
    s_lshl_b32 s31, s31, 7
    s_add_u32 s33, s30, s31"""

def biasloads():
    return "\n".join([f"    buffer_load_dwordx4 {vr(vBB+4*u,4)}, v25, s[84:87], s28 offen offset:{u*64}" for u in range(4)]
                     + [f"    buffer_load_dwordx2 {vr(vBB+16,2)}, v26, s[84:87], s97 offen offset:1024"])

def fsetup(o, l64):
    l = f"""    s_lshl_b32 s34, s31, 2
    s_add_u32 s34, s34, s20
    s_lshr_b32 s35, s20, 1
    s_lshl_b32 s35, s35, 6
    s_and_b32 s36, s20, 1
    s_lshl_b32 s36, s36, 3
    s_add_u32 s35, s35, s36
    s_lshl_b32 s36, s20, 5
    s_mul_i32 s39, s32, 10240
    s_add_u32 s39, s39, {u_idx(0)*1024}
    s_lshl_b32 s40, s34, 1
    s_add_u32 s40, s40, s39
    s_lshl_b32 s38, s32, 1
    s_cmp_eq_u32 s32, 8
    s_cselect_b32 s38, 1024, s38
    s_add_u32 s38, s38, {U_I8*1024}
    s_cmp_lt_u32 s33, 8
    s_cselect_b32 s34, s34, 8                 ; t
    s_cselect_b32 s35, s35, s36               ; byte column of the tile
    s_cselect_b32 s36, 4, 3                   ; log2 distance of its 4-column runs
    s_cselect_b32 s40, s40, s38
    s_cselect_b32 s46, 0, s20                 ; list number
    s_cselect_b32 s47, {RA//8}, {RB//8}                  ; entries incl. the header
    s_add_u32 s40, s40, s48                   ; index word
    s_lshl_b32 s38, s34, 10
    s_add_u32 s39, s39, s38
    s_add_u32 s39, s39, s48
    s_add_u32 s39, s39, 1024                  ; fragment
    v_and_b32 v15, 3, v14
    v_lshlrev_b32 v15, s36, v15
    v_add_u32 v15, s35, v15
    v_lshrrev_b32 v16, 3, v14
    v_lshlrev_b32 v16, 4, v16
    v_xor_b32 v15, v15, v16
    v_lshrrev_b32 v16, 2, v14
    v_lshl_add_u32 v16, v13, 4, v16
    v_lshl_add_u32 v15, v16, 7, v15
    v_add_u32 v24, {RAW}, v15
    v_xor_b32 v27, 32, v24
    v_xor_b32 v28, 64, v24
    v_xor_b32 v29, 0x60, v24
    s_lshl_b32 s31, s46, 2
    s_add_u32 s31, s31, {R_CNT}
    v_mov_b32 v60, s31
    v_mov_b32 v61, 1
    ds_write_b32 v60, v61                     ; next free entry (0 is the header)
    s_mul_i32 s49, s30, 81
    s_mul_i32 s31, s32, 9
    s_add_u32 s49, s49, s31
    s_add_u32 s49, s49, s34
    s_lshl_b32 s49, s49, 10
    s_add_u32 s49, s49, {EFB}
    s_lshl_b32 s31, s34, 24
    s_lshl_b32 s38, s32, 10
    s_add_u32 s31, s31, s38
    v_lshlrev_b32 v31, 18, v14
    v_lshl_add_u32 v31, v13, 5, v31
    v_add_u32 v31, s31, v31                   ; record entry of group 0
    s_mov_b32 s50, {l64 & 0xffffffff}
    s_mov_b32 s51, {l64 >> 32}
    s_mov_b32 s52, 0x00010001
    s_mov_b32 s53, 0x00200010
    s_mov_b32 s38, 0x0202
    s_mul_i32 s57, s30, {o['R']*256}
    s_add_u32 s57, s57, {SIG}
    s_cmp_eq_u32 s33, 8
    s_cselect_b32 s56, 0, s20                 ; line 8: every wave signals its own group
    s_cmp_eq_u32 s20, 0
    s_cselect_b32 s98, 1, 0                   ; this wave still has to add to the zero-based fallback counter
    v_add_u32 v74, {R_CNT + 64}, v{vL8}
    v_lshl_add_u32 v73, s20, 1, v74
    v_mov_b32 v41, 0x01000100
    v_mov_b32 v40, 0
    v_mov_b32 v63, -2.0                       ; header of an overflowed record""".split("\n")
    n = o["fpre"]
    while n < len(l) and ("cselect" in l[n] or "s_bfm" in l[n]):
        n += 1
    return "\n".join(l[:n]), "\n".join(l[n:])

def gen_ftask(o, bstride):
    L = []
    A = L.append
    l64, l32 = lut_tables()
    n1 = o["fx"]
    d = xdma(o, "s42", "s22")
    nb = o["fxb"]
    db = d[2 * n1:2 * (n1 + nb)]
    d2 = d[2 * (n1 + nb):]
    raw = f"""    buffer_load_dwordx4 v{vDma}, s[4:7], s54 offen lds
    s_add_u32 m0, m0, 4096
    s_mov_b32 s45, 0
    buffer_load_dwordx4 v{vDma}, s[4:7], s55 offen lds"""
    A(f"""    s_mul_i32 s32, s2, 57
    s_lshr_b32 s32, s32, 9                    ; k step
    s_mul_i32 s33, s32, 9
    s_sub_u32 s33, s2, s33
    s_mul_i32 s54, s32, {64*1152}
    s_lshl_b32 s35, s33, 7
    s_add_u32 s54, s54, s35
    s_add_u32 s55, s54, {32*1152}
    s_lshl_b32 s36, s20, 10
    s_add_u32 m0, s36, {RAW}
    s_lshr_b32 s30, s33, 1
    s_and_b32 s31, s33, 1
    s_lshl1_add_u32 s37, s32, s31
    s_mul_i32 s37, s37, {RA}
    s_mul_i32 s38, s32, {RB}
    s_add_u32 s38, s38, {18*RA}
    s_cmp_lt_u32 s33, 8
    s_cselect_b32 s30, s30, s20               ; w
    s_cselect_b32 s37, s37, s38
    s_cselect_b32 s44, {(1 << (RA//16)) - 1}, {(1 << (RB//16)) - 1}
    s_cselect_b32 s45, s20, 3
    s_cmp_eq_u32 s45, 3
    s_cselect_b32 s99, {WS_USED}, 0
    s_mul_i32 s48, s30, {WSTR}
    s_add_u32 s37, s37, s48
    v_mov_b32 v44, 2.0
    v_mov_b32 v45, 0
    v_mov_b32 v46, 2.0
    v_mov_b32 v47, 0
{fsetup(o, l64)[0]}
{kwait(o, raw)}
    s_mov_b64 exec, s[44:45]
    s_mov_b32 s18, s99
    buffer_store_dwordx4 v[44:47], v{vL16}, s[16:19], s37 offen sc1
    s_mov_b32 s18, {WS_USED}
    s_mov_b64 exec, -1
{biasloads() if not o["blate"] else ""}
{text(finalize(d[:2*n1]))}
{fsetup(o, l64)[1]}
{stamp(o) if o["diag"] == 2 else ""}
    s_waitcnt vmcnt({7 + n1 - 5 * o['blate']}) lgkmcnt(0)
{stamp(o) if o["diag"] == 2 else ""}
    s_barrier
    ds_read_b64_tr_b16 v[16:17], v24
    ds_read_b64_tr_b16 v[18:19], v27 offset:512
    ds_read_b64_tr_b16 v[20:21], v28 offset:1024
    ds_read_b64_tr_b16 v[22:23], v29 offset:1536
{text(finalize(db))}""")
    for g in range(4):
        a = 16 + 2 * g
        A(f"""    s_waitcnt lgkmcnt({3-g})
    v_and_b32 v44, 0x7fff7fff, v{a}
    v_and_b32 v45, 0x7fff7fff, v{a+1}
    v_pk_max_u16 v46, v44, v45
    v_pk_min_u16 v47, v44, v45
    v_pk_min_u16 v46, v46, v46 op_sel:[0,1] op_sel_hi:[1,0]
    v_pk_max_u16 v47, v47, v47 op_sel:[0,1] op_sel_hi:[1,0]
    v_pk_max_u16 v46, v46, s52
    v_pk_max_u16 v46, v46, v47
    v_pk_sub_i16 v44, v44, v46
    v_pk_sub_i16 v45, v45, v46
    v_pk_ashrrev_i16 v44, 15, v44 op_sel_hi:[0,1]           ; all ones where dropped
    v_pk_ashrrev_i16 v45, 15, v45 op_sel_hi:[0,1]
    v_alignbit_b32 v47, -1, v44, 16
    v_alignbit_b32 v46, v45, v45, 16
    v_and_b32 v48, 0x00080004, v44
    v_bitop3_b32 v46, v45, v46, v47 bitop3:0xe8
    v_and_or_b32 v{64+g}, v45, s53, v48
    v_bitop3_b32 v{36+g}, v{a}, v44, v46 bitop3:0x10
    v_min_u32 v{68+g}, 1, v{36+g}""")
    A(f"""    v_add_u32 v72, v68, v69
    v_add3_u32 v72, v72, v70, v71
    buffer_store_dwordx4 v[36:39], v{vL16}, s[16:19], s49 offen sc1
    v_cmp_ne_u32 vcc, 0, v72
    s_and_saveexec_b64 s[44:45], vcc
    ds_add_rtn_u32 v62, v60, v72
    s_mov_b64 exec, -1""")
    for g in range(4):
        A(f"""    v_lshrrev_b32 v48, 16, v{64+g}
    v_or_b32 v48, v48, v{64+g}                ; 4 * mask of dropped elements
    v_lshrrev_b64 v[52:53], v48, s[50:51]
    v_and_b32 v{64+g}, 15, v52
    v_lshl_or_b32 v40, v{64+g}, {4*g}, v40""")
    if o["align"]:
        A("""    v_lshrrev_b32 v44, 2, v40
    v_lshlrev_b32 v45, 2, v40
    s_movk_i32 s31, 0x3333
    v_not_b32 v47, v40
    v_bfi_b32 v44, s31, v44, v45              ; both indices swapped
    s_movk_i32 s31, 0x1111
    s_nop 0
    v_mov_b32_dpp v47, v44 row_shr:4 row_mask:0xf bank_mask:0xf
    v_xor_b32 v47, v47, v40
    v_lshrrev_b32 v45, 1, v47
    v_or_b32 v47, v47, v45                    ; bit 0 / 2 of a nibble clear: shared element in the other slot
    v_lshrrev_b32 v45, 2, v47
    v_bitop3_b32 v47, v47, v45, s31 bitop3:0x2a
    s_nop 1
    v_xor_b32_dpp v47, v47, v47 row_shr:4 row_mask:0xf bank_mask:0xe
    s_nop 1
    v_xor_b32_dpp v47, v47, v47 row_shr:8 row_mask:0xf bank_mask:0xc
    v_mul_u32_u24 v47, 15, v47
    v_bfi_b32 v40, v47, v44, v40""")
    A(f"    ds_write_b16 v73, v40")
    for g in range(4):
        a = 16 + 2 * g
        if g == 2:
            A(f"""    s_waitcnt vmcnt({6 + n1 + nb - 5 * o['blate']}) lgkmcnt(0)
    s_barrier
    ds_read_b64 v[50:51], v74""")
        if o["align"]:
            A(f"    v_bfe_u32 v{64+g}, v40, {4*g}, 4")
        A(f"""    v_mul_u32_u24 v46, 0x4001, v{64+g}
    v_and_b32 v46, 0x30003, v46
    v_mad_u32_u24 v46, v46, s38, v41
    v_perm_b32 v{32+g}, v{a+1}, v{a}, v46""")
    A(f"""{stamp(o) if o["diag"] == 2 else ""}
    buffer_store_dwordx4 v[32:35], v{vL16}, s[16:19], s39 offen sc1
    s_cmp_eq_u32 s33, 8
    s_cbranch_scc0 F_i1
    buffer_store_short v40, v{vL16}, s[16:19], s40 offen sc1
    s_branch F_i2
F_i1:
    s_cmp_eq_u32 s20, 0
    s_cbranch_scc0 F_i2
    s_waitcnt lgkmcnt(0)
    buffer_store_dwordx2 v[50:51], v{vL16}, s[16:19], s40 offen sc1
F_i2:
    s_cbranch_vccz F_z""")
    for g in range(4):
        A(f"""    v_cmp_ne_u32 vcc, 0, v{36+g}
    s_and_saveexec_b64 s[44:45], vcc
    s_cbranch_execz F_e{g}
    v_cmp_gt_u32 vcc, s47, v62
    v_add_u32 v42, {8*g}, v31
    v_lshlrev_b32 v44, 3, v62
    v_add_u32 v62, 1, v62
    v_cndmask_b32 v42, v63, v42, vcc
    v_cndmask_b32 v43, 0, v{36+g}, vcc
    v_cndmask_b32 v44, 0, v44, vcc
{"" if o["exp"] & 2 else "    buffer_store_dwordx2 v[42:43], v44, s[16:19], s37 offen sc1"}
F_e{g}:
    s_mov_b64 exec, -1""")
    A(f"""F_z:
{stamp(o)}
    s_cmp_lg_u32 s2, 0
    s_cbranch_scc1 M_set
    v_mov_b32 v64, 0
    v_mov_b32 v65, 0
    v_mov_b32 v66, 0
    v_mov_b32 v67, 0
    s_mov_b32 s40, {CTR}
    buffer_store_dwordx4 v[64:67], v{vL16}, s[16:19], s40 offen sc1
    s_branch M_set
F_sig:
    ; all stores of this workgroup done -> add to the replicas the consumers poll
    v_lshlrev_b32 v30, 8, v12
    s_waitcnt vmcnt(0)
{stamp(o)}
    s_barrier
    s_cmp_lg_u32 s56, 0
    s_cbranch_scc1 F_end
{f"    s_bfm_b64 exec, {o['R']}, 0" if o['R'] < 64 else ""}
    buffer_atomic_add v61, v30, s[16:19], s57 offen sc1
    s_mov_b64 exec, -1
F_end:
{text(finalize(d[2 * (n1 + nb):2 * o["xa"]]))}
    s_branch M_x2""")
    return "\n".join(L)

def wfrag(p):
    return vr(4 * p, 4, "a") if p < 64 else vr(vWF + 4 * (p - 64), 4)

def smf(rb, s, t, buf):
    p = s * 9 + t
    ir, ih = (4 * s + t // 2, t & 1) if t < 8 else (36 + s // 2, s & 1)
    return smfmac(vr(vACC[rb] + 4 * t, 4), wfrag(p), vr(buf, 8), vr(vIDX + ir), ih)

def group_smf(gi, chain=True):
    rb, ks = GROUPS[gi]
    if chain:
        return [smf(rb, s, t, vBB + 8 * GBUF[s]) for t in range(9) for s in ks]
    return [smf(rb, s, t, vBB + 8 * GBUF[s]) for s in ks for t in range(9)]

def bread_to(rb, s, b):
    off = rb * 18432 + s * 1024
    return [ds_read("ds_read_b128", vr(b, 4), vr(vB0), f"offset:{off}"),
            ds_read("ds_read_b128", vr(b + 4, 4), vr(vB1), f"offset:{off}")]

def group_reads(gi):
    rb, ks = GROUPS[gi]
    return sum([bread_to(rb, s, vBB + 8 * GBUF[s]) for s in ks], [])

def bias_init(rb, t):
    return ds_read("ds_read_b128", vr(vACC[rb] + 4 * t, 4), vr(vTQ), f"offset:{L_BIAS + t*64}")

def tread(t, tok=None):
    i = ds_read("ds_read_b128", vr(vT, 4), vr(vTQ), f"offset:{L_T0 + t*64}")
    if tok:
        i.rd |= regs(tok)
    return i

def aread(t):
    return ds_read("ds_read_b128", vr(vA, 4), vr(vTA), f"offset:{t*1024}")

def xad(j):
    return valu(f"v_xad_u32 v{vT+j}, v{vT+j}, v{vXor}, v{vRow}", [vr(vT + j), vr(vXor), vr(vRow)], [vr(vT + j)])

def gather(j):
    return ds_read("ds_read2st64_b32", vr(vG + 2 * j, 2), vr(vT + j), "offset0:0 offset1:72")

H = vBB + 16
def ov_gather():
    return [ds_read("ds_read_b64", vr(H + 4, 2), vr(vTQ), f"offset:{L_OVT}"),
            valu(f"v_xad_u32 v{H}, v{H+4}, v{vXor}, v{vRow}", [vr(H + 4), vr(vXor), vr(vRow)], [vr(H)]),
            ds_read("ds_read2st64_b32", vr(H, 2), vr(H), "offset0:0 offset1:72"),
            valu(f"v_xad_u32 v{H+2}, v{H+5}, v{vXor}, v{vRow}", [vr(H + 5), vr(vXor), vr(vRow)], [vr(H + 2)]),
            ds_read("ds_read2st64_b32", vr(H + 2, 2), vr(H + 2), "offset0:0 offset1:72")]

def ov_call(tag):
    return I(f"s_cmp_lt_i32 s81, 0\n    s_cbranch_scc1 M_ovr{tag}\n    s_swappc_b64 s[78:79], s[72:73]\nM_ovr{tag}:", "other", rd=[vr(H, 4), vr(vACC[1], 36)] + [vr(r, 2) for r in vOV])

def csmf(rb, t):
    return smfmac(vr(vACC[rb] + 4 * t, 4), vr(vA, 4), vr(vG, 8), vr(vCI), rb)

def epilogue(rb, soff, o, init=True, xoff=0):
    gs = []
    for ln in range(2):
        g = []
        a = vACC[rb] + 16 * ln
        X, Y, Z = a, a + 8, a + 4
        for j in range(4):
            g.append(valu(f"v_cvt_pk_bf16_f32 v{X+j}, v{a+2*j}, v{a+2*j+1}", [vr(a + 2 * j, 2)], [vr(X + j)]))
        for j in range(4):
            g.append(valu(f"v_cvt_pk_bf16_f32 v{Y+j}, v{a+8+2*j}, v{a+8+2*j+1}", [vr(a + 8 + 2 * j, 2)], [vr(Y + j)]))
        if init:
            g.append(bias_init(rb, 4 * ln + 3))
        for j in range(4):
            g.append(valu(f"v_cndmask_b32_dpp v{Z+j}, v{X+j}, v{Y+j}, vcc row_ror:8 row_mask:0xf bank_mask:0xf", [vr(X + j), vr(Y + j)], [vr(Z + j)]))
        g.append(I(f"buffer_store_dwordx4 {vr(Z,4)}, v{vS4}, s[12:15], {soff[1]} offen offset:{ln*128} {o['stf']}".rstrip(), "store", rd=[vr(Z, 4), vr(vS4)]))
        for j in range(4):
            g.append(valu(f"v_mov_b32_dpp v{X+j}, v{Y+j} row_ror:8 row_mask:0xf bank_mask:0xc", [vr(X + j), vr(Y + j)], [vr(X + j)]))
        g.append(I(f"buffer_store_dwordx4 {vr(X,4)}, v{vS4}, s[12:15], {soff[0]} offen offset:{ln*128} {o['stf']}".rstrip(), "store", rd=[vr(X, 4), vr(vS4)]))
        if init:
            g += [bias_init(rb, 4 * ln + 1), bias_init(rb, 4 * ln + 2), bias_init(rb, 4 * ln)]
        gs.append(g)
    g = []
    a = vACC[rb] + 32
    for j in range(2):
        g.append(valu(f"v_cvt_pk_bf16_f32 v{a+j}, v{a+2*j}, v{a+2*j+1}", [vr(a + 2 * j, 2)], [vr(a + j)]))
    g.append(I(f"ds_write_b64 v{vXw}, {vr(a,2)} offset:{(1-rb)*2*LTABW + xoff}", "dsw", rd=[vr(a, 2), vr(vXw)], wr=["@x2" if xoff else f"@x{rb}"]))
    if init:
        g.append(bias_init(rb, 8))
    gs.append(g)
    if o["nostore"]:
        gs = [[i for i in g if i.kind != "store"] for g in gs]
    return gs

def xch(o, soff, r=vG, xoff=0):
    return [ds_read("ds_read_b128", vr(r, 4), vr(vTA), f"offset:{L_X + xoff}"),
            I(f"buffer_store_dwordx4 {vr(r,4)}, v{vS2}, s[12:15], {soff} offen {o['stf']}".rstrip(), "store", rd=[vr(r, 4), vr(vS2)])]

def xdma(o, m0base, soff):
    g = []
    for s in range(9):
        if s == 0:
            g.append(salu(f"s_mov_b32 m0, {m0base}"))
        else:
            g.append(salu("s_add_u32 m0, m0, 896"))
        g.append(I(f"buffer_load_dwordx4 v{vDma}, s[8:11], {soff} offen offset:{s*128} {o['xnt']} lds", "dma", rd=[vr(vDma), soff]))
    return g

def count_in(tag):
    return f"""s_cmp_eq_u32 s98, 0
    s_cbranch_scc1 {tag}
    s_mov_b32 s98, 0
    v_mov_b32 v{vG+6}, 1
    s_mov_b64 exec, 1
    buffer_atomic_add v{vG+6}, off, s[68:71], 0 offset:{CNT_F} sc1
    s_mov_b64 exec, -1
    s_nop 3
{tag}:"""

def spin(tag, base, target):
    return f"""    v_readfirstlane_b32 s30, v0
    s_mov_b32 s31, 0
    s_sub_u32 s30, s30, {base}
    s_cmp_eq_u32 s30, {target}
    s_cbranch_scc0 {tag}_spin
{tag}_ok:"""

def spin_out(o, tag, base, target, soff):
    return f"""{tag}_spin:
    s_sleep {o['slp']}
{poll(o, 0)}
    s_add_u32 s31, s31, 1
    s_waitcnt vmcnt(0)
    v_readfirstlane_b32 s30, v0
    s_nop 0
    s_sub_u32 s30, s30, {base}
    s_cmp_eq_u32 s30, {target}
    s_cbranch_scc1 {tag}_ok
    s_cmp_lt_u32 s31, {o['nfast']}
    s_cbranch_scc1 {tag}_spin
    {count_in(tag + "_spin2")}
    buffer_load_dword v0, off, s[68:71], 0 offset:{CNT_F} sc1
    s_cmp_ge_u32 s31, {SPIN}
    s_cbranch_scc1 M_end
    s_waitcnt vmcnt(0)
    v_readfirstlane_b32 s30, v0
    s_nop 0
    s_cmp_eq_u32 s30, {NF}
    s_cbranch_scc0 {tag}_spin
    s_branch {tag}_ok"""

def ctouch(o):
    if not o["ctouch"]:
        return ""
    return f"""    s_getpc_b64 s[84:85]
    s_lshr_b32 s30, s2, 3
    s_and_b32 s30, s30, 15
    s_lshl_b32 s30, s30, 11
    s_and_b32 s84, s84, 0xffffff00
    s_cmp_ge_u32 s2, {88 if o["ctouch"] == 2 else 0}
    s_cselect_b32 s86, M_codeend-{NAME}_kernel, 0
    s_mov_b32 s87, 0x20000
    v_lshlrev_b32 v254, 3, v0
    s_mov_b32 exec_lo, 0x00010001
    s_mov_b32 exec_hi, 0x00010001
    buffer_load_dword v254, v254, s[84:87], s30 offen
    s_mov_b64 exec, -1"""

COST = {}
def gen_main(o):
    L = []
    A = L.append
    bstride = 256 * SLOT if o["inter"] else SLOT
    wgmul = SLOT if o["inter"] else 3 * SLOT
    tord = o["tord"]
    if len(o["early"]) != 1 or o["estat"]:
        o["e2"] = 0
    HB = (2048 - o["nh"] // 2) * SLOT
    A(f""".p2align 8
.type {NAME}_kernel,@function
{NAME}_kernel:
    s_cmp_ge_u32 s2, 256
    s_cbranch_scc1 M_end
{stamp(o, True)}
    s_load_dwordx8 s[72:79], s[0:1], 0        ; x w b out
    s_load_dwordx4 s[80:83], s[0:1], 32
{ctouch(o)}
    v_lshrrev_b32 v20, 6, v0
    v_and_b32 v12, 63, v0                     ; lane
    v_readfirstlane_b32 s20, v20              ; wave
    ; DMA lane offset: (tid/8)*1152 + ((tid%8) ^ ((tid/16)%8))*16
    v_lshrrev_b32 v22, 3, v0
    v_mul_u32_u24 v22, 1152, v22
    v_lshrrev_b32 v23, 4, v0
    v_xor_b32 v23, v23, v0
    v_and_b32 v23, 7, v23
    v_lshl_add_u32 v{vDma}, v23, 4, v22
    v_lshrrev_b32 v13, 4, v12                 ; q
    v_and_b32 v14, 15, v12                    ; m
    v_lshlrev_b32 v{vL16}, 4, v12
    v_lshlrev_b32 v{vL8}, 3, v12
    v_lshlrev_b32 v25, 4, v13
    v_lshlrev_b32 v26, 3, v13
    s_mov_b32 s6, {576*576*2}
    s_mov_b32 s7, 0x20000
    s_mov_b32 s10, {XB}
    s_mov_b32 s11, s7
    s_mov_b32 s18, {WS_USED}
    s_mov_b32 s19, s7
    s_movk_i32 s70, 256
    s_mov_b32 s71, s7
    s_movk_i32 s86, 1152
    s_mov_b32 s87, s7
    s_mov_b32 s98, 0
    s_mul_i32 s96, s20, {o['R']}
    s_and_b32 s97, s2, {o['R']-1}
    s_add_u32 s96, s96, s97
    s_lshl_b32 s96, s96, 8
    s_add_u32 s96, s96, {SIG}
    s_mul_i32 s22, s2, {wgmul}
    s_mul_i32 s26, s20, 9216
    s_mov_b32 s24, s22
    s_mov_b32 s42, s26
    s_lshl_b32 s28, s20, 8
    s_lshl_b32 s97, s20, 5
    s_cmp_lt_u32 s2, {NF}
    s_cbranch_scc0 M_x1
{gen_ftask(o, bstride)}
M_x1:
{kwait(o)}
{(stamp(o) + chr(10)) * 3 if o["diag"] == 2 else ""}
{stamp(o)}
{biasloads() if not o["blate"] else ""}
{text(finalize(xdma(o, "s42", "s22")[:2 * o["xa"]]))}""")
    A(f"""M_set:                                        ; set-up while the first loads (or the prep stores) are under way
    s_mov_b32 s12, s78
    s_mov_b32 s13, s79
    s_mov_b32 s14, {XB}
    s_mov_b32 s15, 0x20000
    s_mul_i32 s29, s20, {LTABW}
    s_add_u32 s29, s29, {LTAB}
    v_lshrrev_b32 v24, 1, v14                 ; f(m)
    v_and_b32 v27, 7, v14
    v_lshlrev_b32 v22, 7, v27
    v_lshl_or_b32 v{vXor}, v24, 4, v22        ; (f<<4) | (m%8)<<7
    v_lshrrev_b32 v23, 3, v14
    v_mul_u32_u24 v{vRow}, 9216, v23
    v_xad_u32 v{vB0}, v25, v{vXor}, v{vRow}
    v_xor_b32 v{vB1}, 64, v{vB0}
    v_add_u32 v{vTQ}, s29, v25
    v_add_u32 v{vTA}, s29, v{vL16}
    v_mul_u32_u24 v24, 1152, v27
    v_lshl_add_u32 v24, v23, 6, v24
    v_add3_u32 v{vS4}, v24, v25, s28          ; (m%8)*1152 + (m/8)*64 + q*16 + w*256
    v_lshrrev_b32 v24, 3, v12
    v_xor_b32 v28, v24, v12
    v_and_b32 v28, 7, v28
    v_mul_u32_u24 v24, 1152, v24
    v_lshl_add_u32 v24, v28, 4, v24
    v_add_u32 v{vS2}, 1024, v24               ; (l/8)*1152 + 1024 + ((l%8)^(l/8))*16
    s_lshl_b32 s30, s20, 1
    v_lshrrev_b32 v24, 1, v13
    v_add_u32 v24, s30, v24
    v_xor_b32 v24, v24, v27
    v_lshl_add_u32 v24, v24, 4, v22
    v_and_b32 v28, 8, v26
    v_mul_u32_u24 v29, {LTABW}, v23
    v_add3_u32 v24, v24, v28, v29
    v_add_u32 v{vXw}, {LTAB+L_X}, v24
    s_lshr_b32 s30, s2, 3
    s_and_b32 s30, s30, {o['nsh']-1}          ; shard
    s_mul_i32 s92, s30, {1024//max(o['nsh'],4)}
    s_add_u32 s92, s92, {CTR - L_MB}
    s_add_u32 s30, s30, {768 + (256 * o['early'][-1][0] if o['estat'] else 0)}
    s_mul_i32 s93, s30, {SLOT}
    s_mov_b32 s94, {o['nsh']*SLOT}
    s_and_b32 s95, s20, 1
    s_mul_i32 s95, s95, 9216
    s_add_u32 s59, s24, 9216
    s_mul_i32 s43, s20, {WSTR}
    s_add_u32 s47, s29, {L_T0}
    s_add_u32 s48, s29, {L_OVL}
    s_add_u32 s49, s29, {L_CNT}
    s_add_u32 s54, s29, {L_OVL + 256 + MDUM}  ; outside the LDS allocation: writes are dropped
    s_add_u32 s38, s26, {2*SLOT}
    s_add_u32 s35, s38, {128*8}
    s_add_u32 s39, s38, {192*8}
    s_mov_b32 s40, s48
    s_add_u32 s41, s48, 256
    s_mov_b32 s50, {slot_luts()[0] & 0xffffffff}
    s_mov_b32 s51, {slot_luts()[0] >> 32}
    s_mov_b32 s52, {slot_luts()[1] & 0xffffffff}
    s_mov_b32 s53, {slot_luts()[1] >> 32}
    v_mov_b32 v16, 0
    v_mov_b32 v17, 0
    v_mov_b32 v18, 0
    v_mov_b32 v19, 0
    v_cmp_gt_u32 s[44:45], 36, v12
    v_mov_b32 v20, {"2.0" if o["toob"] else "0"}
    s_nop 0
    v_cndmask_b32 v20, 0, v20, s[44:45]
    v_mov_b32 v21, v20
    v_mov_b32 v22, v20
    v_mov_b32 v23, v20
    v_mov_b32 v{vR+12}, {MDUM}
    v_mov_b32 v{vR+13}, 0
    v_mov_b32 v{vR+14}, {MDUM}
    v_mov_b32 v{vR+15}, 0
    v_lshl_add_u32 v{vD0}, v12, 2, s49
    v_add_u32 v{vD1}, s38, v{vL8}
    v_add_u32 v24, s38, v{vL16}""")
    for t in range(9):
        A(f"    ds_write_b128 v{vTA}, v[16:19] offset:{t*1024}")
    assert not o["x2pre"]
    A(f"""    ds_write_b128 v24, {vr(vR+12,4)}
    ds_write_b128 v24, {vr(vR+12,4)} offset:1024
    ds_write_b128 v{vTA}, v[20:23] offset:{L_T0}
    s_cmp_lt_u32 s2, {NF}
    s_cbranch_scc1 F_sig
{stamp(o)}
{text(finalize(xdma(o, "s42", "s22")[2 * o["xa"]:2 * max(o["xa"], o["fx"] + o["fxb"])]))}
M_x2:
{text(finalize(xdma(o, "s42", "s22")[2 * max(o["xa"], o["fx"] + o["fxb"]):]))}
    s_add_u32 s22, s22, {bstride}
    s_add_u32 s42, s42, {SLOT}
{biasloads() if o["blate"] else ""}
{text(finalize(xdma(o, "s42", "s22")))}
    s_add_u32 s22, s22, {bstride}
    s_add_u32 s42, s42, {SLOT}
{stamp(o) if o["diag"] != 3 else ""}
    s_waitcnt vmcnt({o['pw']})
{stamp(o) if o["diag"] != 3 else ""}
{poll(o, 0)}
    v_readlane_b32 s100, v{vCI}, 0
    v_mov_b32 v{vCI}, 0xeeee4444
{"    s_add_u32 s100, s100, 5" if o["testfb"] else ""}""")
    for j in range(18):
        A(f"    v_lshlrev_b32 v{vACC[0]+2*j}, 16, v{vBB+j}\n    v_and_b32 v{vACC[0]+2*j+1}, 0xffff0000, v{vBB+j}")
    A("    s_mov_b32 exec_lo, 0x00010001\n    s_mov_b32 exec_hi, 0x00010001")
    for t in range(9):
        A(f"    ds_write_b128 v{vTQ}, {vr(vACC[0]+4*t,4)} offset:{L_BIAS+t*64}")
    A("    s_mov_b64 exec, -1")
    if o["xtail"]:
        wd = o["xw"] or [o["xfull"] + o["xtail"] * (q + 1) for q in range(9)]
        g0 = vG
        n0 = NF if o["xA"] else 0
        ft, fn = o["ftouch"], o["ftn"]
        assert sum(wd) <= (8 * fn * ft if ft else 8 * (256 - n0))
        if ft:
            A(f"""    s_cmp_lt_u32 s2, {fn}
    s_cbranch_scc0 M_ft2
    s_lshl2_add_u32 s30, s2, s20
    s_lshl_b32 s30, s30, 1
    s_add_u32 m0, s29, {L_X + 1024}
M_ft:""")
        else:
            A(f"""    s_mul_i32 s30, s20, {256 - n0}
    s_add_u32 s30, s30, s2
    s_sub_u32 s30, s30, {n0}
    s_cmp_lt_u32 s2, {n0}
    s_cselect_b32 s30, 1023, s30
    s_lshl_b32 s30, s30, 1""")
        A(f"""    v_lshrrev_b32 v{g0}, 5, v12
    v_add_u32 v{g0+4}, s30, v{g0}             ; e
    v_mov_b32 v{g0}, -1
    v_mov_b32 v{g0+1}, 0""")
        for q in range(9):
            if wd[q]:
                A(f"""    v_subrev_u32 v{g0+2}, {sum(wd[q+1:])}, v{g0+4}
    v_cmp_gt_u32 vcc, {wd[q]}, v{g0+2}
    v_mov_b32 v{g0+3}, {q}
    s_nop 0
    v_cndmask_b32 v{g0}, v{g0}, v{g0+2}, vcc
    v_cndmask_b32 v{g0+1}, v{g0+1}, v{g0+3}, vcc""")
        A(f"""    v_sub_u32 v{g0}, 2047, v{g0}
    v_mul_u32_u24 v{g0}, {SLOT}, v{g0}
    v_lshl_add_u32 v{g0}, v{g0+1}, 7, v{g0}
    v_and_b32 v{g0+1}, 31, v12
    v_mul_u32_u24 v{g0+1}, 1152, v{g0+1}
    v_add_u32 v{g0+5}, v{g0}, v{g0+1}""")
        if ft:
            A(f"""    buffer_load_dword v{g0+5}, s[8:11], 0 offen lds
    s_add_u32 s30, s30, {8*fn}
    s_cmp_lt_u32 s30, {8*fn*ft}
    s_cbranch_scc1 M_ft
M_ft2:""")
    A("    s_mov_b32 vcc_lo, 0xff00ff00\n    s_mov_b32 vcc_hi, 0xff00ff00")
    if o["pp"]:
        A(poll(o, vG + 7) + "\n    s_waitcnt vmcnt(1)")
    else:
        A("    s_waitcnt vmcnt(0)")
    A(stamp(o))
    A(spin("M_pf", "s100", NARR).replace("M_pf_spin", "M_pf_pp" if o["pp"] else "M_pf_spin"))
    A(stamp(o))

    lag, e_cor, cper = o["lag"], o["ecor"], o["cper"]
    def uload(u, dst, n):
        g = [salu("s_add_u32 s43, s43, 4096")] if u % 4 == 0 and u else []
        g.append(I(f"buffer_load_dword{'x4' if n == 4 else ''} {dst}, v{vL16}, s[16:19], s43 offen offset:{(u%4)*1024} {o['wsc']}", "load", rd=[vr(vL16)], wr=[dst]))
        return g
    def wload(p):
        s, t = divmod(p, 9)
        g = uload(u_idx(s), vr(vIDX + 4 * s, 4), 4) if t == 0 else []
        return g + uload(u_frag(s, t), wfrag(p), 4)
    def pbuf(rb, s):
        return vBB + 8 * ((0, 1)[s & 1] if rb == 0 else (4, 3)[s & 1])
    seq = []
    if o["touch"]:
        nl = o["touch"]
        t0 = WSTR - 21 * nl * 128
        A(f"""    s_lshr_b32 s30, s2, 3
    s_sub_u32 s31, s30, 11
    s_cselect_b32 s30, s30, s31
    s_mul_i32 s30, s30, {nl*128}
    s_add_u32 s30, s30, s43
    s_add_u32 s30, s30, {t0}
    v_lshlrev_b32 v{vG}, 3, v{vL16}""")
    SR5 = [66, 60, 64, 56, 88, 90, 96, 100, 58, 84, 86, 4, 6, 68, 70, 0]
    if o["diag"] == 5:
        seq.append(I(f"s_memtime s[{SR5[0]}:{SR5[0]+1}]", "other"))
    seq.append(valu(f"v_mov_b32 v0, v{vG+5}", [], ["v0"]))
    R = vR
    seq += uload(0, vr(R, 4), 4) + uload(1, vr(R + 4, 4), 4) + uload(2, vr(R + 8, 4), 4)
    seq += [salu(f"s_mov_b32 exec_hi, {(1 << ((18*RA + 9*RB)//16 - 224)) - 1}")] + uload(3, vr(R + 12, 4), 4) + [salu("s_mov_b32 exec_hi, -1")]
    seq += uload(4, vr(vIDX + 36, 4), 4) + uload(5, vr(vIDX + 40), 1)
    for p in range(lag):
        seq += wload(p)
    if o["touch"]:
        j = [q for q, i in enumerate(seq) if i.kind == "load"][o["tpos"]]
        assert o["tpos"] != 3
        seq[j:j] = [salu(f"s_bfm_b64 exec, {o['touch']}, 0"), I(f"buffer_load_dword v{vG}, v{vG}, s[16:19], s30 offen sc1", "load", wr=[vr(vG)]), salu("s_mov_b64 exec, -1")]
    def V(txt, rd, wr):
        return valu(txt, [f"v{r}" if isinstance(r, int) else r for r in rd], [f"v{r}" if isinstance(r, int) else r for r in wr])
    OLD, X = R + 6, R + 18
    DUM = X + 8
    build = [V(f"v_mov_b32 v{DUM}, s54", [], [DUM]),
             V(f"v_or3_b32 v{X+4}, v{R}, v{R+4}, v{R+8}", [R, R + 4, R + 8], [X + 4]),
             V(f"v_or_b32 v{X+4}, v{X+4}, v{R+12}", [R + 12, X + 4], [X + 4]),
             V(f"v_cmp_gt_i32 s[32:33], 0, v{X+4}", [X + 4], ["s[32:33]"])]
    for j in range(8):
        M, Y, K = R + 2 * j, X + (j & 1), "s[44:45]" if j & 1 else "s[36:37]"
        k0 = 44 if j & 1 else 36
        build += [V(f"v_cmp_gt_u32 {K}, 2.0, v{M}", [M], [K]),
                  V(f"v_mbcnt_lo_u32_b32 v{Y}, s{k0}, 0", [K], [Y]),
                  V(f"v_mbcnt_hi_u32_b32 v{Y}, s{k0+1}, v{Y}", [K, Y], [Y]),
                  V(f"v_lshl_add_u32 v{Y}, v{Y}, 3, s38", [Y], [Y]),
                  V(f"v_min_u32 v{Y}, s39, v{Y}", [Y], [Y]),
                  V(f"v_cndmask_b32 v{Y}, v{DUM}, v{Y}, {K}", [DUM, Y, K], [Y]),
                  I(f"ds_write_b64 v{Y}, {vr(M,2)}", "dsw", rd=[vr(Y), vr(M, 2)]),
                  salu(f"s_bcnt1_i32_b64 s30, {K}"),
                  salu(f"s_lshl3_add_u32 s38, s30, s38")]
    build += [ds_read("ds_read_b64", vr(R + 2 * j, 2), vr(vD1), f"offset:{j*512}") for j in range(3)] + [None] * 10
    def rank(j):
        M, Y = R + 2 * j, X + 2 * (j & 1)
        return [V(f"v_bfe_u32 v{Y}, v{M}, 24, 4", [M], [Y]),
                V(f"v_lshlrev_b32 v{Y+1}, 1, v{M}", [M], [Y + 1]),
                V(f"v_lshl_add_u32 v{Y}, v{Y}, 2, s49", [Y], [Y]),
                V(f"v_and_b32 v{Y+1}, 16, v{Y+1}", [Y + 1], [Y + 1]),
                V(f"v_and_or_b32 v{Y}, v{M}, 2.0, v{Y}", [M, Y], [Y]),
                V(f"v_lshlrev_b32 v{Y+1}, v{Y+1}, 1", [Y + 1], [Y + 1]),
                I(f"ds_add_rtn_u32 v{OLD+j}, v{Y}, v{Y+1}", "ds", rd=[vr(Y, 2)], wr=[vr(OLD + j)])]
    def place(j):
        M, E, O = R + 2 * j, R + 2 * j + 1, OLD + j
        return [V(f"v_and_b32 v{X}, 8, v{M}", [M], [X]),
                V(f"v_lshrrev_b32 v{X+3}, 14, v{M}", [M], [X + 3]),
                V(f"v_cmp_ne_u32 s[44:45], 0, v{X}", [X], ["s[44:45]"]),
                V(f"v_and_b32 v{X+6}, 0x3cf0, v{X+3}", [X + 3], [X + 6]),
                V(f"v_lshrrev_b32 v{X+1}, 16, v{O}", [O], [X + 1]),
                V(f"v_and_b32 v{X+2}, 0xffff, v{O}", [O], [X + 2]),
                V(f"v_sub_u32 v{X}, 15, v{X+1}", [X + 1], [X]),
                V(f"v_and_b32 v{O}, 2.0, v{M}", [M], [O]),
                V(f"v_add3_u32 v{O}, v{X+2}, v{X+1}, v{O}", [X + 2, X + 1, O], [O]),
                V(f"v_cndmask_b32 v{X}, v{X+2}, v{X}, s[44:45]", [X + 2, X, "s[44:45]"], [X]),
                V(f"v_cmp_gt_u32 s[44:45], 16, v{O}", [O], ["s[44:45]"]),
                V(f"v_cmp_gt_u32 s[36:37], 2.0, v{O}", [O], ["s[36:37]"]),
                V(f"v_lshlrev_b32 v{X}, 2, v{X}", [X], [X]),
                V(f"v_lshrrev_b64 v[{X+2}:{X+3}], v{X}, s[50:51]", [X], [X + 2, X + 3]),
                salu("s_andn2_b64 s[36:37], s[36:37], s[44:45]"),
                V(f"v_lshrrev_b64 v[{X+4}:{X+5}], v{X}, s[52:53]", [X], [X + 4, X + 5]),
                V(f"v_bfe_u32 v{X}, v{M}, 24, 4", [M], [X]),
                V(f"v_mbcnt_lo_u32_b32 v{X+1}, s36, 0", [], [X + 1]),
                V(f"v_and_b32 v{X+2}, 15, v{X+2}", [X + 2], [X + 2]),
                V(f"v_mbcnt_hi_u32_b32 v{X+1}, s37, v{X+1}", [X + 1], [X + 1]),
                V(f"v_and_b32 v{X+4}, 15, v{X+4}", [X + 4], [X + 4]),
                V(f"v_lshl_add_u32 v{X+1}, v{X+1}, 3, s40", [X + 1], [X + 1]),
                V(f"v_lshl_add_u32 v{X+2}, v{X}, 4, v{X+2}", [X, X + 2], [X + 2]),
                V(f"v_min_u32 v{X+1}, s41, v{X+1}", [X + 1], [X + 1]),
                V(f"v_mul_u32_u24 v{X+4}, 68, v{X+4}", [X + 4], [X + 4]),
                V(f"v_cndmask_b32 v{X+1}, v{DUM}, v{X+1}, s[36:37]", [DUM, X + 1], [X + 1]),
                I(f"ds_write_b64 v{X+1}, {vr(M,2)}", "dsw", rd=[vr(X + 1), vr(M, 2)]),
                salu("s_bcnt1_i32_b64 s30, s[36:37]"),
                salu("s_lshl3_add_u32 s40, s30, s40"),
                V(f"v_lshl_add_u32 v{X+2}, v{X+2}, 2, s47", [X + 2], [X + 2]),
                V(f"v_and_b32 v{X+4}, 0x30c, v{X+4}", [X + 4], [X + 4]),
                V(f"v_cndmask_b32 v{X+2}, v{DUM}, v{X+2}, s[44:45]", [DUM, X + 2, "s[44:45]"], [X + 2]),
                V(f"v_add3_u32 v{X+3}, v{X+6}, v{X+4}, s29", [X + 6, X + 4], [X + 3]),
                V(f"v_and_b32 v{X+4}, 0x3fff, v{M}", [M], [X + 4]),
                V(f"v_cndmask_b32 v{X}, v{DUM}, v{X+3}, s[44:45]", [DUM, X + 3, "s[44:45]"], [X]),
                I(f"ds_write_b32 v{X+2}, v{X+4}", "dsw", rd=[vr(X + 2), vr(X + 4)]),
                I(f"ds_write_b32 v{X}, v{E}", "dsw", rd=[vr(X), vr(E)])]
    C = X + 7
    build += rank(0) + rank(1)
    build += [I("s_cmp_gt_u32 s38, s35\n    s_cbranch_scc1 M_r3\nM_r3r:", "other", rd=[vr(R + 4, 2)]),
              ds_read("ds_read_b32", vr(C), vr(vD0))]
    build += place(0) + place(1)
    build += [V(f"v_lshrrev_b32 v{X}, 16, v{C}", [C], [X]),
              V(f"v_and_b32 v{C}, 0xffff, v{C}", [C], [C]),
              V(f"v_add_u32 v{C}, v{C}, v{X}", [C, X], [C]),
              V(f"v_cmp_lt_u32 s[34:35], 16, v{C}", [C], ["s[34:35]"]),
              salu("s_sub_u32 s46, s40, s48"),
              salu("s_add_u32 s46, s46, 56"),
              salu("s_lshr_b32 s46, s46, 6"),
              salu("s_mov_b32 s21, 0"),
              salu("s_and_b32 s27, s34, " + ("0" if o["exp"] & 4 else "0x1ff")),
              I("""s_cmp_gt_u32 s46, 4
    s_cselect_b32 s32, 1, s32
    s_or_b32 s32, s32, s33
    s_cbranch_scc1 M_dn
M_dnr:""", "other")]
    nov = 2 if o["diag"] else 3
    build += [ds_read("ds_read_b128", vr(R, 4), vr(vTQ), f"offset:{L_OVL}"),
              I(f"""s_bcnt1_i32_b32 s30, s27
    s_cmp_gt_u32 s30, {nov}
    s_cselect_b32 s34, 0, s27
    s_cselect_b32 s80, 0, 1""", "other"),
              I("s_getpc_b64 s[36:37]\nM_pc:", "other"),
              V(f"v_bfe_u32 v{X}, v{vL16}, 4, 4", [], [X])]
    for j in range(nov):
        build += [I(f"""s_ff1_i32_b32 s{81+j}, s34
    s_bitset0_b32 s34, s{81+j}
    s_mul_i32 s30, s{81+j}, 20""", "other"),
                  I(f"""s_add_u32 s31, s30, M_ovc{min(j,1)}-M_pc
    s_add_u32 s30, s30, M_ovl{j}-M_pc""", "other"),
                  I(f"""s_cmp_lg_u32 s34, 0
    s_cselect_b32 s30, s31, s30
    s_cmp_lt_i32 s{81+j}, 0
    s_cselect_b32 s30, M_ovn-M_pc, s30""", "other"),
                  I(f"""s_add_u32 s{72+2*j}, s36, s30
    s_addc_u32 s{73+2*j}, s37, 0""", "other")]
    build += [V(f"v_lshrrev_b32 v{X+2}, 18, v{R}", [R], [X + 2]),
              V(f"v_lshrrev_b32 v{X+3}, 18, v{R+2}", [R + 2], [X + 3]),
              V(f"v_and_b32 v{X+4}, 0x3fff, v{R}", [R], [X + 4]),
              V(f"v_and_b32 v{X+5}, 0x3fff, v{R+2}", [R + 2], [X + 5]),
              I(f"ds_write_b64 v{vTQ}, {vr(X+4,2)} offset:{L_OVT}", "dsw", rd=[vr(X + 4, 2)])]
    for j in range(nov):
        build += [V(f"v_lshl_or_b32 v{X+1}, s{81+j}, 6, v{X}", [X], [X + 1]),
                  V(f"v_cmp_eq_u32 s[44:45], v{X+2}, v{X+1}", [X + 1, X + 2], ["s[44:45]"]),
                  V(f"v_cmp_eq_u32 s[36:37], v{X+3}, v{X+1}", [X + 1, X + 3], ["s[36:37]"]),
                  V(f"v_cndmask_b32 v{vOV[j]}, 0, v{R+1}, s[44:45]", [R + 1, "s[44:45]"], [vOV[j]]),
                  V(f"v_cndmask_b32 v{vOV[j]+1}, 0, v{R+3}, s[36:37]", [R + 3, "s[36:37]"], [vOV[j] + 1])]
    seq += [bias_init(1, t) for t in range(9)]
    seq.append(I(count_in("M_cnt"), "other"))
    bar = I("s_barrier", "other", rd=[wfrag(0)])
    seq.append(bar)
    seq += bread_to(0, 0, pbuf(0, 0)) + bread_to(1, 0, pbuf(1, 0))
    assert e_cor + 9 * cper <= 81 and e_cor <= 73 - lag, e_cor
    build.append(tread(tord[0]))
    queue = [(j * (e_cor - 2) // len(build), ins) for j, ins in enumerate(build) if ins]
    build = [i for i in build if i]
    for k in range(9):
        e = e_cor + k * cper
        queue += [(e - 1, xad(0)), (e - 1, xad(1)), (e, gather(0)), (e, gather(1)), (e, xad(2)), (e, xad(3)), (e, gather(2)), (e, gather(3)), (e, aread(tord[k]))]
        queue += [(e, tread(tord[k + 1]))] if k < 8 else []
        if k == 0:
            og = ov_gather()
            queue.insert(len(build), (e - 2, og[0]))
            queue += [(e + 1, i) for i in og[1:]]
        if k == 1:
            queue += [(e + 2, ov_call(0))]
        queue += [(e + cper - 1, csmf(0, tord[k])), (e + cper - 1, csmf(1, tord[k]))]
    def pop(e, nv):
        out = []
        while queue and queue[0][0] <= e and queue[0][1].kind != "valu":
            out.append(queue.pop(0)[1])
        while queue and queue[0][0] <= e and queue[0][1].kind == "valu" and nv:
            out.append(queue.pop(0)[1])
            nv -= 1
        return out
    n2 = o["n2"]
    assert o["nA"] == 2 and o["nF"] == 2
    x2n = o["x2n"] or n2
    assert x2n == n2 or o["early"][0][0] == 1
    x2 = xdma(o, "s42", "s22")[:2 * x2n]
    for e in range(81):
        s, t = divmod(e, 9)
        seq.append(smf(0, s, t, pbuf(0, s)))
        if o["diag"] == 5 and e % 6 == 0:
            seq.append(I(f"s_memtime s[{SR5[1+e//6]}:{SR5[1+e//6]+1}]", "other"))
        if e + lag < 81:
            seq += wload(e + lag)
        if e + lag == o["xat"] and o["xtail"] and not o["ftouch"]:
            assert o["xat"] <= o["x2at"]
            seq += [salu(f"s_add_u32 m0, s29, {L_X + 1024}"), I("buffer_load_dword v0, s[8:11], 0 offen lds", "dma", rd=["v0"])]
        if e + lag >= o["x2at"] and (e + lag - o["x2at"]) % o["x2step"] == 0 and x2:
            seq += x2[:2]
            x2 = x2[2:]
        if e in o["tst"]:
            j = o["tst"].index(e)
            seq.append(I(f"buffer_store_dwordx4 v[12:15], v{vS4}, s[12:15], {('s24', 's59')[j % 2]} offen offset:{(j // 2) * 128} {o['stf']}", "store", rd=["v[12:15]"]))
        if s < 7:
            seq += pop(e, 1)
            seq.append(smf(1, s, t, pbuf(1, s)))
        if t == 0 and s < 8:
            seq += bread_to(0, s + 1, pbuf(0, s + 1))
        if t == 1 and s < 8:
            seq += bread_to(1, s + 1, pbuf(1, s + 1))
        seq += pop(e, 6)
        if e == 72 - lag:
            assert not any(i in build for _, i in queue)
    while queue:
        seq += pop(99, 9)
    if o["x2pre"] == 1:
        seq.append(I(f"s_cmp_lt_u32 s2, {NF}\n    s_cbranch_scc0 M_x4\n" + text(finalize(x2)) + "\nM_x4:", "other"))
    elif not o["x2pre"]:
        seq += x2
    if o["diag"] == 5:
        seq.append(I(f"s_memtime s[{SR5[15]}:{SR5[15]+1}]\n    s_waitcnt lgkmcnt(0)\n    s_mov_b32 s62, 16\n" + "\n".join(f"    v_writelane_b32 v255, s{SR5[q]}, {q}\n    v_writelane_b32 v255, s{SR5[q]}, {q+32}" for q in range(16)), "lgkm0"))
    elif o["diag"]:
        seq.append(I(stamp(o).strip(), "lgkm0"))
    seq.append(I(f"""s_cmp_gt_u32 s46, s80
    s_cbranch_scc1 M_slow
M_slowr0:""", "other"))
    seq.append(I(f"""s_cmp_eq_u32 s20, 0
    s_mov_b32 s31, {0x40000000 + L_MB + 8}
    s_cselect_b32 s30, {L_MB}, s31
    v_mov_b32 v{vAt}, s31
    v_writelane_b32 v{vAt}, s30, 0""", "other"))
    seq += sum(epilogue(0, ("s24", "s59"), o), [])
    seq += [salu("s_mov_b32 s89, 0"), salu(f"s_mov_b32 s101, {(768 + o['wth']) * SLOT}"), salu("s_mov_b32 s91, 0"), salu(f"s_mov_b32 s25, {SLOT}"),
            salu(f"s_add_u32 s90, s24, {bstride}"),
            salu(f"s_mov_b32 s28, s26"),
            salu("s_add_u32 s23, s24, 18432"),
            salu("s_cmp_lt_u32 s20, 2"),
            salu("s_cselect_b32 s66, s23, s24"),
            salu(f"s_cselect_b32 s99, s14, {HB}"),
            salu("s_add_u32 s66, s66, s95"),
            ]
    seq += [valu(f"v_add_u32 v{r}, {SLOT}, v{r}", [vr(r)], [vr(r)]) for r in (vRow, vB0, vB1)]
    A(text(finalize(seq, vm=True)))

    vers = [("L", o["win"], 0, False)] + [(f"E{j}", w_, 0, False) for j, (n_, w_) in enumerate(o["early"])]
    vers += ([("W", o["wwin"], 0, False)] if o["wwin"] else []) + ([("P", o["pwin"], 0, False)] if o["pn"] else []) + ([("Q", o["win"], 0, False)] if o["q"] else []) + [("F", o["fwin"], 0, True)]
    dispatch = f"s_cmp_lt_u32 s22, {XB}\n    s_cbranch_scc0 M_bF"
    if o["pn"]:
        dispatch += f"\n    s_cmp_ge_u32 s22, {(2048 - o['pn']) * SLOT}\n    s_cbranch_scc1 M_bP"
    if o["wwin"]:
        dispatch += "\n    s_cmp_eq_u32 s89, 0\n    s_cbranch_scc1 M_bE0\n    s_cmp_eq_u32 s89, 2\n    s_cbranch_scc1 M_bW"
    else:
        dispatch += "\n    s_cmp_eq_u32 s91, 1\n    s_cbranch_scc1 M_bE0" if o["e2"] else "".join(f"\n    s_cmp_lt_u32 s91, {n_}\n    s_cbranch_scc1 M_bE{j}" for j, (n_, w_) in enumerate(o["early"]))
    LPRE = []
    def version(vid, nm, wn, wns, final, resv=()):
        KS = [(0, 1, 2), (3, 4), (5, 6), (7, 8)]
        T9 = list(range(9))
        glist = [(1, KS[3], T9)] + [(0, ks, T9) for ks in KS]
        if final:
            glist += [(1, ks, [8, 0, 1, 2, 3]) for ks in KS] + [(1, ks, [4, 5, 6, 7]) for ks in KS]
        else:
            glist += [(1, ks, T9) for ks in KS[:3]]
        P = {k: o["f" + k] if final and o.get("f" + k) else o[k] for k in ("b0", "per", "e0", "slowat", "e1", "ov", "bar2", "gstep", "rstep")}
        b0, per = P["b0"], P["per"]
        glist = [(rb, ks, list(ts)) for rb, ks, ts in glist]
        cat = {}
        k = nxt = 0
        for rb, ks, ts in glist:
            fixed = set()
            for c in range(len(ts)):
                k += len(ks)
                if nxt < 9 and k >= b0 + per * (nxt + 1):
                    cat[k - 1] = (nxt, rb)
                    if o["cchain"] and tord[nxt] in ts and ts.index(tord[nxt]) not in fixed:
                        j = ts.index(tord[nxt])
                        ts[j], ts[c] = ts[c], ts[j]
                        fixed.add(c)
                    nxt += 1
        mains = []
        gstart = []
        for rb, ks, ts in glist:
            gstart.append(len(mains))
            mains += [smf(rb, s_, t, vBB + 8 * GBUF[s_]) for t in ts for s_ in ks]
        stream = []
        pos = {}
        cpos = {}
        for k in range(len(mains)):
            pos[k] = len(stream)
            stream.append(mains[k])
            if k in cat:
                nxt, rb = cat[k]
                stream.append(csmf(rb, tord[nxt]))
                cpos[nxt] = len(stream)
                stream.append(csmf(1 - rb, tord[nxt]))
        gp = Gaps(len(stream) + 40)
        gp.exact = o["exact"]
        for k in set(resv) - {c - 2 for c in cpos.values()}:
            gp.reserve(k)
        x = xch(o, "s66")
        top_reads = [x[0]]
        bar2 = I("s_barrier", "other", rd=[vr(vG, 4)])
        def greads(j):
            rb, ks, _ = glist[j % len(glist)]
            return sum([bread_to(rb, s_, vBB + 8 * GBUF[s_]) for s_ in ks], [])
        gp.chain(greads(1), 0, step=1)
        gp.nv[1] += [I(dispatch, "other"), I(f"M_b{nm}:", "label")]
        if final and o["nh"]:
            gp.nv[1] += [I(f"s_cmp_ge_u32 s24, {HB}\n    s_cbranch_scc1 M_bH", "other")]
        gp.res[1] += 2
        k = cpos[P["slowat"]]
        gp.nv[k] += [salu("s_cmp_gt_u32 s46, s80"), I("s_cbranch_scc1 M_slow", "other"), I(f"M_slowr{nm}:", "label")]
        gp.put(tread(tord[0]), 7)
        for t in range(9):
            gp.reserve(cpos[t] - 2)
            k = pos[b0] - 2 if t == 0 else cpos[t - 1] - 2
            kg = k + 2
            for j in range(4):
                k = gp.put(xad(j), k) + 1
            for j in range(4):
                kg = gp.put(gather(j), max(kg, k - 3 + j), 3)
                if j == (2 if o["exact"] else 0):
                    gp.put(aread(tord[t]), kg, 3)
                kg += P["gstep"] if j < 3 else 0
            if t < 8:
                gp.put(tread(tord[t + 1]), kg, 3)
        for j in range(1, len(glist) - (1 if final else 0)):
            r = greads(j + 1)
            if j == 4:
                hrel = r[4:]
                r = r[:4]
            if j == 8:
                gp.chain(r[4:], pos[gstart[6] + 4], 2, step=1)
                r = r[:4]
            if o["theta"] >= 0 and (j < 5 or not final):
                nxt_ = pos[gstart[j + 1] - 1] if j + 1 < len(glist) else pos[o["lastrd"]] + o["rlead"]
                gp.lds_chain(r, pos[gstart[j] - 1], nxt_ - o["rlead"], o["theta"], 2)
            else:
                gp.chain(r, pos[gstart[j] - 1], 2 if j < 5 or not final else 3, step=P["rstep"] if j < 5 or not final else 1)
        def win(lst):
            out = []
            for i in lst:
                if i.kind in ("store", "dma") and wn:
                    out.append(I("WIN", "wait"))
                out.append(i)
            return out
        gp.chain(win(x[1:]), o['xst'], 3)
        gp.put(bar2, P["bar2"])
        ovl = ov_gather()
        k = gp.put(ovl[0], pos[P["ov"][0]], 3)
        k = gp.chain(ovl[1:], max(k + 5, pos[P["ov"][1]]), 3)
        for u, g in enumerate(epilogue(1, ("s23", "s58"), o)):
            k = max(k, gp.chain(win(g), pos[P["e1"][u]], 3))
        k = max(k + 6, pos[P["ov"][2]])
        while gp.load(k) > 0:
            k += 1
        ovchk = [ov_call(nm)]
        gp.nv[k].append(ovchk[0])
        gp.res[k] += 2
        gp.chain(hrel, max(k + 1, pos[P["ov"][3]]), 2, step=1)
        atom = I(f"buffer_atomic_add v0, v{vAt}, s[16:19], s92 offen sc0 sc1", "store", rd=["v0", vr(vAt)])
        dyn = not final and not (o["estat"] and nm[0] == "E")
        if not final and not dyn:
            krf = gp.put(salu(f"s_add_u32 s88, s22, {bstride}"), 9)
        if dyn:
            if o["nh"]:
                gp.nv[2] += [salu(f"s_cmp_lt_u32 s22, {HB}"), salu("s_cselect_b32 s30, 1, 0")]
            gp.put(valu("v_mov_b32 v0, " + ("s30" if o["nh"] else "1"), [], ["v0"]), 3)
            gp.chain(win([atom]), pos[o["claim"][0]], 2)
        awt = I("s_waitcnt vmcnt(0)", "wait")
        mbw = I(f"ds_write_b32 v{vAt}, v0", "dsw", rd=["v0", vr(vAt)], wr=["@mb"])
        bar3 = I("s_barrier", "other", rd=["@mb"])
        sel10 = salu(f"s_cselect_b32 s10, {XB}, 0")
        if dyn: gp.chain([awt, valu("v_mul_u32_u24 v0, s94, v0", ["v0"], ["v0"]), valu("v_add_u32 v0, s93, v0", ["v0"], ["v0"]),
                  ] + ([] if o["nh"] else [valu(f"v_min_u32 v0, {XB}, v0", ["v0"], ["v0"])]) + [
                  mbw, valu(f"v_mov_b32 v0, {L_MB}", [], ["v0"])], pos[o["claim"][1]], 3)
        if dyn:
            k = gp.chain([bar3, ds_read("ds_read_b32", "v0", "v0")], pos[o["claim"][2]], 3)
            k = gp.put(valu("v_readfirstlane_b32 s88, v0", ["v0"], ["s88"]), k + 5)
            if o["nh"]:
                k = gp.chain([salu(f"s_add_u32 s30, s88, {HB}"), salu("s_lshr_b32 s30, s30, 1"), salu("s_min_u32 s88, s88, s30"), salu("s_min_u32 s88, s88, s14")], k + 1, 3) + 1
                while gp.load(k, sel10) > 2:
                    k += 1
                gp.nv[k] += [salu(f"s_cmp_lt_u32 s22, {HB}"), salu("s_cselect_b32 s88, s88, s14")]
            krf = k
        for u, g in sorted(enumerate(epilogue(0, ("s24", "s59"), o, init=not final)), key=lambda z: z[0] != 2):
            gp.chain(win(g), pos[P["e0"][u]], 3)
        d = xdma(o, "s28", "s22")[2 * n2:] + xdma(o, "s28", "s88")[:2 * n2]
        gp.put(salu(f"s_mov_b32 s21, {vid}"), 8)
        kd = 0
        for j in range(0 if final else 9):
            if j == 9 - n2:
                kd = max(kd, krf) + 1
                while gp.load(kd, sel10) > 2:
                    kd += 1
                gp.nv[kd] += [salu("s_cmp_lt_u32 s88, s99"), sel10]
                if o["q"] and nm in "LQ":
                    kd += 1
                    while gp.load(kd) > 0:
                        kd += 1
                    gp.nv[kd] += [I("s_cmp_lt_u32 s88, s14\n    s_cbranch_scc0 M_q", "other"), I("M_q:" if nm == "Q" else "M_nq:", "label")]
                    gp.res[kd] += 2
            k = gp.put(d[2 * j], max(kd + 1, pos[o["pdma" if nm == "P" and o["pdma"] else "dma"][j]]), 2)
            kd = gp.chain(win([d[2 * j + 1]]), k if wn and o["exact"] else k + 1, 3)
        book = [salu(f"s_add_u32 s28, s28, {SLOT}"),
                salu(f"s_cmp_ge_u32 s28, {NSLOT*SLOT}"),
                salu(f"s_cselect_b32 s28, s26, s28"),
                salu(f"s_add_u32 s30, s25, {SLOT}"),
                salu(f"s_cmp_eq_u32 s30, {NSLOT*SLOT}"),
                salu(f"s_cselect_b32 s30, 0, s30"),
                salu(f"s_sub_u32 s31, s30, s25"),
                salu(f"s_mov_b32 s25, s30"),
                salu("s_mov_b32 s90, s22"),
                salu("s_mov_b32 s22, s88"),
                salu("s_add_u32 s91, s91, 1")] + ([
                salu(f"s_cmp_ge_u32 s91, {o['early'][0][0]}"),
                salu("s_cselect_b32 s89, 1, 0"),
                salu(f"s_cmp_ge_u32 s91, {o['wfrom']}"),
                salu("s_cselect_b32 s30, s101, -1"),
                salu("s_cmp_gt_u32 s88, s30"),
                salu("s_addc_u32 s89, s89, 0"),
                salu(f"s_add_u32 s101, s101, {256*SLOT}")] if o["wwin"] else []) + [
                salu("s_cmp_lt_u32 s20, 2"),
                salu("s_cselect_b32 s66, s23, s24"),
                salu("s_add_u32 s66, s66, s95")]
        if final:
            book = book[-3:] + [salu("s_add_u32 s23, s24, 18432"), salu("s_add_u32 s58, s24, 27648"), salu("s_add_u32 s67, s23, s95")]
            fl = o["fl"]
            xa, xb = xch(o, "s66", vT), xch(o, "s67", vT, 1024)
            barx = [I("s_barrier", "other", rd=["@x0"]), I("s_barrier", "other", rd=["@x2"])]
            k = gp.chain([barx[0], xa[0]], pos[fl[0]], 3)
            gp.put(xa[1], k + 6)
            ep = epilogue(1, ("s23", "s58"), o, init=False, xoff=1024)
            k = gp.chain(ep[2], pos[fl[1]], 3)
            k = gp.chain([barx[1], xb[0]], k + 4, 3)
            k += 6
            while gp.load(k) > 0:
                k += 1
            gp.nv[k] += [salu("s_cmp_lt_u32 s20, 2"), I("s_cbranch_scc0 M_fx", "other", rd=[vr(vT, 4)]), xb[1], I("M_fx:", "label")]
            gp.chain(ep[0], pos[fl[2]], 3)
            gp.chain(ep[1], pos[fl[3]], 3)
        kb = gp.chain(book, pos[o["fbook" if final else "book"]], 3)
        if not final: k = gp.chain([valu(f"v_add_u32 v{r}, s31, v{r}", [vr(r)], [vr(r)]) for r in (vRow, vB0, vB1)], max(kb + 1, pos[152]))
        body = []
        for k in range(len(stream) + 40):
            if k < len(stream):
                body.append(stream[k])
            else:
                assert final or not gp.gap(k)
            body += gp.gap(k)
        for j, i in enumerate([i for i in body if i.text == "WIN"]):
            i.text = f"s_waitcnt vmcnt({(wn * (j + 1)) // 10 - (wn * j) // 10 - 1})"
        if final:
            wr23 = body.index(book[3])
            assert all((j < wr23) == (i not in ep[0] + ep[1]) for j, i in enumerate(body) if i.kind == "store" and ("s23" in i.text or "s58" in i.text))
            assert body.index(book[2]) < body.index(xa[1]) and body.index(book[5]) < body.index(xb[1]) and body.index(x[1]) < body.index(book[1])
            assert max(j for j, i in enumerate(body) if "read2st64" in i.text) < body.index(xa[0]) and body.index(xa[1]) < body.index(xb[0])
            assert all(j < body.index(barx[0]) for j, i in enumerate(body) if i.kind == "dsw" and ("@", "@x2") not in i.wr)
        for r in (vRow, vB0, vB1) if not final else ():
            w = [j for j, i in enumerate(body) if ("v", r) in i.wr]
            u = [j for j, i in enumerate(body) if ("v", r) in i.rd]
            assert len(w) == 1 and max(u) == w[0], r
        for rb in range(2):
            for t in range(9):
                RR = regs(vr(vACC[rb] + 4 * t, 4))
                ev = "".join("I" if i.kind == "ds" else "M" if i.kind == "mfma" else "E" for i in body if (i.rd | i.wr) & RR and i.kind != "other")
                assert re.fullmatch("M{10}E+I?" if rb == 0 else "MME+IM{10}E+" if final else "MME+IM{8}", ev), (rb, t, ev)
        sl = [j for j, i in enumerate(body) if "M_slowr" in i.text][0]
        assert all(j < sl for j, i in enumerate(body) if i.kind == "ds" and i.wr & regs(vr(vACC[1], 36)))
        assert all(j > sl for j, i in enumerate(body) if i.kind == "valu" and i.rd & regs(vr(vACC[0], 36)))
        assert body[sl - 3] is stream[cpos[P["slowat"]]]
        dm = [j for j, i in enumerate(body) if i.kind == "dma"]
        lastdma = dm[8 - n2] if dm else 0
        if dm:
            assert [body[j] for j in dm] == d[1::2]
            assert lastdma < body.index(sel10) < dm[9 - n2] and body.index(d[2 * (9 - n2)]) < body.index(book[0])
            assert lastdma < body.index(book[8]) and body.index(sel10) < body.index(book[9])
            assert not dyn or body.index(mbw) < body.index(bar3)
            if dyn:
                ev = [i.text.split()[0] for i in body if ("v", 0) in i.rd | i.wr or i is awt]
                assert ev[:4] == ["v_mov_b32", "buffer_atomic_add", "s_waitcnt", "v_mul_u32_u24"] and ev[-4:] == ["ds_write_b32", "v_mov_b32", "ds_read_b32", "v_readfirstlane_b32"], ev
            for j in range(9):
                assert body.index(d[2 * j]) < dm[j] and (j == 0 or body.index(d[2 * j]) > dm[j - 1])
        hw = [j for j, i in enumerate(body) if i.kind == "ds" and "read_b" in i.text and i.wr & regs(vr(H, 8))]
        hm = [j for j, i in enumerate(body) if i.kind == "mfma" and i.rd & regs(vr(H, 8))]
        assert hm[8] < hw[2] and body.index(ovchk[-1]) < hw[3]
        assert all(j < body.index(ovchk[0]) for j, i in enumerate(body) if i.kind == "ds" and i.wr & regs(vr(vACC[1], 36)))
        assert all(j > body.index(bar2) for j, i in enumerate(body) if i.kind == "dsw")
        assert body.index(x[1]) < min(j for j, i in enumerate(body) if "read2st64" in i.text)
        for j, i in enumerate(body):
            if ("cselect" in i.text or "s_cbranch_scc" in i.text or "s_addc" in i.text) and "\n" not in i.text:
                p = max(q for q in range(j) if (body[q].kind == "salu" and "s_mov" not in body[q].text) or "\n" in body[q].text)
                assert body[p].text.startswith("s_cmp") and "\n" not in body[p].text, (i.text, body[p].text)
        isvm = lambda i: i.kind in ("dma", "store")
        if dyn: awt.text = f"s_waitcnt vmcnt({sum(isvm(i) for i in body[body.index(atom) + 1:body.index(awt)])})"
        nstrict = sum(isvm(i) for i in body[lastdma + 1:])
        if nm == "Q":
            c = [j for j, i in enumerate(body) if i.text == "M_q:"][0]
            assert sl > c or True
            body = body[:c] + [i for i in body[c:] if i not in d and not (i.kind == "wait" and "vmcnt" in i.text)]
            nstrict -= n2
            if o["qplain"]:
                for i in body[c:]:
                    if i.kind == "store":
                        i.text = i.text.replace(" sc1", "")
        if final and o["fplain"]:
            st = [i for i in body if i.kind == "store"]
            for i in st[:o["fplain"]]:
                i.text = i.text.replace(" sc1", "")
            if o["wb"]:
                j = body.index(st[o["wb"][0]])
                body.insert(j + 1, I(f"s_add_u32 s30, s24, s28\n    s_sub_u32 s30, s30, {(2048 - o['wb'][1]) * SLOT}\n    s_cmp_lt_u32 s30, {o['wb'][2] * SLOT}\n    s_cbranch_scc0 M_nwb\n    buffer_wbl2 sc1\nM_nwb:", "other"))
                body.insert(body.index(st[0]) + 1, salu("s_lshl_b32 s28, s20, 28"))
        if nm == "E0" and x2n > n2:
            for j in range(x2n - n2):
                q_ = body.index(d[2 * j + 1])
                w_ = max(z for z in range(q_) if body[z].kind == "wait" and "vmcnt" in body[z].text and body[z] is not awt)
                body = [i for z, i in enumerate(body) if z not in (q_, w_) and i is not d[2 * j]]
            if dyn:
                awt.text = f"s_waitcnt vmcnt({sum(isvm(i) for i in body[body.index(atom) + 1:body.index(awt)])})"
        seq = []
        seq.append(I("M_top:", "label"))
        if o["diag"] == 3:
            seq.append(I(stamp(o).strip(), "other"))
        seq.append(I("M_top1:", "label"))
        if o["diag"]:
            seq.append(I(stamp(o).strip(), "other"))
        seq.append(salu(f"s_add_u32 s23, s24, 18432"))
        seq.append(salu(f"s_add_u32 s58, s24, 27648"))
        seq.append(salu(f"s_mov_b32 s24, s90"))
        seq.append(salu(f"s_add_u32 s59, s90, 9216"))
        seq.append(I(f"s_waitcnt lgkmcnt(0)", "lgkm0"))
        seq.append(I("s_barrier", "other"))
        if o["diag"] == 3:
            seq.append(I(stamp(o).strip(), "other"))
        seq += top_reads
        seq += body
        if not final:
            seq.append(I(f"s_waitcnt vmcnt({nstrict})", "wait"))
            seq.append(I("s_branch M_top1", "other"))
        if o["diag"] == 4 and final:
            seq2, nm_, on = [], 0, False
            sr = list(range(32, 44, 2)) + [48, 50, 52, 60, 64, 98, 90, 88, 92, 96, 84, 86, 8, 10, 4, 6, 68, 70]
            st_ = o["dstep"]
            for i in seq:
                on = on or i.text == "M_bF:"
                if on and i.kind == "mfma":
                    if nm_ % st_ == 0:
                        seq2.append(i); seq2.append(I(f"s_memtime s[{sr[nm_//st_]}:{sr[nm_//st_]+1}]", "other")); nm_ += 1
                        continue
                    nm_ += 1
                seq2.append(i)
            j = (nm_ + st_ - 1) // st_
            seq2.append(I(f"s_memtime s[{sr[j]}:{sr[j]+1}]\n    s_waitcnt lgkmcnt(0)\n    v_mov_b32 v255, 0\n    s_mov_b32 s62, {j+1}\n" + "\n".join(f"    v_writelane_b32 v255, s{sr[q]}, {q}\n    v_writelane_b32 v255, s{sr[q]}, {q+32}" for q in range(j + 1)), "other"))
            seq = seq2
        out = finalize(seq, hoist=o["exact"])
        if o["exact"]:
            k, found = -1, set()
            for i in out:
                k += i.kind == "mfma"
                if i.kind == "wait" and "lgkm" in i.text and k >= 2:
                    found.add(k)
            if not found <= set(resv) and len(resv) < o["maxres"]:
                return version(vid, nm, wn, wns, final, tuple(found | set(resv)))
        COST[nm] = gap_cost(out)
        if o["cost"]:
            print(nm, "modelled loss", COST[nm], "reserved", len(resv), file=sys.stderr)
        cut = [j for j, i in enumerate(out) if i.text == f"M_b{nm}:"][0]
        if nm == "Q":
            c = [j for j, i in enumerate(out) if i.text == "M_q:"][0]
            norm = lambda l: re.sub(r"s_mov_b32 s21, \d+|(?<=M_ovr)[LQ]|(?<=M_slowr)[LQ]", "", text(l))
            assert norm(out[cut + 1:c]) == norm(LPRE[0])
            return out[:cut], out[c:c + 1] + [salu(f"s_mov_b32 s21, {vid}")] + out[c + 1:], nstrict
        if nm == "L" and o["q"]:
            LPRE.append(out[cut + 1:[j for j, i in enumerate(out) if i.text == "M_nq:"][0]])
        return out[:cut], out[cut:], nstrict
    def half(vid):
        TA, TB = [8, 0, 1, 2, 3], [4, 5, 6, 7]
        glist = [(1, {7: 3, 8: 4}, list(range(9))), (0, {0: 0, 1: 1, 2: 2}, TA), (0, {3: 3, 4: 4}, TA), (0, {5: 0, 6: 1}, TA), (0, {7: 3, 8: 4}, TA),
                 (0, {0: 0, 1: 1}, TB), (0, {2: 3, 3: 4}, TB), (0, {4: 0, 5: 1}, TB), (0, {6: 3, 7: 4, 8: 2}, TB)]
        b0, per, hp = o["hb0"], o["hper"], o["hp"]
        to = [8, 0, 1, 2, 3, 4, 5, 6, 7]
        stream, pos, cpos, gstart, nxt, k = [], {}, {}, [], 0, 0
        for rb, kb_, ts in glist:
            gstart.append(k)
            for t in ts:
                for s_, b_ in kb_.items():
                    pos[k] = len(stream)
                    stream.append(smf(rb, s_, t, vBB + 8 * b_))
                    k += 1
                if nxt < 9 and k >= b0 + per * (nxt + 1):
                    cpos[nxt] = len(stream)
                    stream.append(csmf(0, to[nxt]))
                    nxt += 1
        assert nxt == 9
        gp = Gaps(len(stream) + 60)
        greads = lambda j: sum([bread_to(glist[j][0], s_, vBB + 8 * b_) for s_, b_ in glist[j][1].items()], [])
        x = xch(o, "s66")
        gp.chain(greads(1), 0, step=1)
        gp.nv[1] += [I(dispatch, "other"), I("M_bH:", "label")]
        gp.res[1] += 2
        gp.put(tread(to[0]), 2)
        gp.put(x[1], 5)
        gp.put(salu(f"s_mov_b32 s21, {vid}"), 6)
        slow = I("s_cbranch_scc1 M_slow", "other")
        gp.nv[cpos[hp[0]]] += [salu("s_cmp_gt_u32 s46, s80"), slow, I("M_slowrH:", "label")]
        for t in range(9):
            gp.reserve(cpos[t] - 1)
            k = pos[b0] - 1 if t == 0 else cpos[t - 1] - 1
            kg = k + 1
            for j in range(4):
                k = gp.put(xad(j), k) + 1
                kg = gp.put(ds_read("ds_read_b32", vr(vG + 2 * j), vr(vT + j)), max(kg, k), 3)
                if j == 0:
                    gp.put(aread(to[t]), kg, 3)
            if t < 8:
                gp.put(tread(to[t + 1]), kg, 3)
        for j in range(1, len(glist) - 1):
            gp.chain(greads(j + 1)[:4], pos[gstart[j] - 1], 3, step=1)
        bar2 = I("s_barrier", "other", rd=[vr(vG, 4)])
        gp.put(bar2, 6)
        ovl = ov_gather()
        k = gp.put(ovl[0], pos[33], 3)
        k = gp.chain(ovl[1:], k + 5, 3) + 5
        e1 = epilogue(1, ("s23", "s58"), o, init=False)
        for u in (2, 0, 1):
            k = max(k, gp.chain(e1[u], pos[hp[1 + u]], 3) + 1)
        while gp.load(k) > 1 or gp.v[k] is not None:
            k += 1
        call = ov_call("H")
        gp.nv[k].append(call)
        gp.res[k] += 2
        gp.chain(greads(8)[4:], k + 1, 3, step=1)
        book = [salu("s_cmp_lt_u32 s20, 2"), salu("s_cselect_b32 s66, s23, s24"), salu("s_add_u32 s66, s66, s95")]
        gp.nv[7] = book + gp.nv[7]
        e0 = epilogue(0, ("s24", "s59"), o, init=False)
        k0 = max(k + 5, cpos[hp[0]] + 1, pos[hp[4]])
        k = gp.chain(e0[2], k0, 3)
        xa = xch(o, "s66", vACC[1])
        barx = I("s_barrier", "other", rd=["@x0"])
        k = gp.chain([barx, xa[0]], k + 4, 3)
        gp.put(xa[1], k + 6)
        k = gp.chain(e0[0], k0, 3)
        gp.chain(e0[1], max(k + 1, len(stream) - 3), 3)
        body = []
        for k in range(len(stream) + 60):
            body += ([stream[k]] if k < len(stream) else []) + gp.gap(k)
        for rb in range(2):
            for t in range(9):
                RR = regs(vr(vACC[rb] + 4 * t, 4))
                ev = "".join("I" if i.kind == "ds" else "M" if i.kind == "mfma" else "E" for i in body if (i.rd | i.wr) & RR and i.kind != "other")
                assert re.fullmatch("M{10}E+" if rb == 0 else "MME+(IE)?", ev), (rb, t, ev)
        ix = lambda l: [body.index(i) for i in l]
        for c in (slow, call):
            assert max(ix(sum(e1, []))) < body.index(c) < min(ix(sum(e0, []) + xa))
        hw = [j for j, i in enumerate(body) if i.kind == "ds" and "read_b" in i.text and i.wr & regs(vr(H, 8))]
        hm = [j for j, i in enumerate(body) if i.kind == "mfma" and i.rd & regs(vr(H, 8))]
        assert hm[4] < hw[2] and body.index(call) < hw[3] and hw[4] < hm[5]
        assert body.index(x[1]) < body.index(book[1]) and body.index(x[1]) < min(j for j, i in enumerate(body) if "read_b32" in i.text)
        assert all(body.index(bar2) < j < body.index(barx) for j, i in enumerate(body) if i.kind == "dsw")
        out = finalize([I("s_waitcnt lgkmcnt(0)", "lgkm0"), x[0]] + body + [I("s_branch M_done", "other")])
        COST["H"] = gap_cost(out)
        if o["cost"]:
            print("H modelled loss", COST["H"], file=sys.stderr)
        cut = [j for j, i in enumerate(out) if i.text == "M_bH:"][0]
        return out[:cut], out[cut:]
    built = [version(j + 1, *v) for j, v in enumerate(vers)]
    assert all(text(h[3:]) == text(built[0][0][3:]) for h, _, _ in built)
    A(text(built[0][0]))
    for _, bd, _ in built[:-1]:
        A(text(bd))
    if o["nh"]:
        vers.append(("H",))
        hh, hb = half(len(vers))
        assert text(built[0][0]).endswith(text(hh[1:]))
        A(text(hb))
    A(text(built[-1][1]))
    A("M_done:")
    A(stamp(o))
    A(stamp_out(o))
    A("M_end:\n    s_endpgm")
    if o["pp"]:
        A("M_pf_pp:")
        for a_, b_ in [(vG + 4, vG + 7), (vG + 7, vG + 4)] * o["pp"]:
            A(f"""{poll(o, a_)}
    s_waitcnt vmcnt(1)
    v_readfirstlane_b32 s30, v{b_}
    s_nop 0
    s_sub_u32 s30, s30, s100
    s_cmp_eq_u32 s30, {NARR}
    s_cbranch_scc1 M_pf_ok""")
    A(spin_out(o, "M_pf", "s100", NARR, "s96"))
    A("M_r3:")
    A(text(finalize(rank(2) + place(2))))
    A("""    s_cmp_gt_u32 s38, s39
    s_cselect_b32 s32, 1, s32
    s_branch M_r3r""")
    A("M_dn:\n    s_mov_b32 s27, 0\n    s_mov_b32 s46, 0x80000000")
    for j in range(4):
        A(f"    v_mov_b32 v{vG+j}, 0")
    for t in range(9):
        A(f"    ds_write_b128 v{vTA}, {vr(vG,4)} offset:{t*1024}")
    A("    s_waitcnt lgkmcnt(0)\n    s_branch M_dnr")
    def ret(lab, lab0):
        return "".join(f"    s_cmp_eq_u32 s21, {j+1}\n    s_cbranch_scc1 {lab}{v[0]}\n" for j, v in enumerate(vers) if any(f"{lab}{v[0]}:" in x for x in L)) + f"    s_branch {lab0}"
    def ovtile(t, E, G, a):
        return f"""    v_lshrrev_b32 v{a}, 18, v{E}
    v_lshrrev_b32 v{a+1}, 18, v{E+2}
    v_or_b32 v{vA+1}, {t << 6}, v{vA}
    v_cmp_eq_u32 s[44:45], v{a}, v{vA+1}
    v_cmp_eq_u32 s[54:55], v{a+1}, v{vA+1}
    s_nop 0
    v_cndmask_b32 v{a}, 0, v{E+1}, s[44:45]
    v_cndmask_b32 v{a+1}, 0, v{E+3}, s[54:55]
    s_nop 1
    v_smfmac_f32_16x16x32_bf16 {vr(vACC[0]+4*t,4)}, {vr(a,2)}, {vr(G,4)}, v{vCI}
    v_smfmac_f32_16x16x32_bf16 {vr(vACC[1]+4*t,4)}, {vr(a,2)}, {vr(G,4)}, v{vCI} abid:2"""
    for kind, j in (("c", 0), ("l", 0), ("c", 1), ("l", 1), ("l", 2)):
        A(f"M_ov{kind}{j}:")
        for t in range(9):
            A(f"""    v_smfmac_f32_16x16x32_bf16 {vr(vACC[0]+4*t,4)}, {vr(vOV[j],2)}, {vr(H,4)}, v{vCI}
    v_smfmac_f32_16x16x32_bf16 {vr(vACC[1]+4*t,4)}, {vr(vOV[j],2)}, {vr(H,4)}, v{vCI} abid:2
    s_setpc_b64 {f"s[{74+2*j}:{75+2*j}]" if kind == "c" else "s[78:79]"}""")
    A("M_ovn:\n    s_setpc_b64 s[78:79]")
    G = vG
    A(f"""M_slow:
    s_bitcmp1_b32 s46, 31
    s_cbranch_scc1 M_dense
    s_mov_b32 s56, s80
M_sl:
    s_lshl_b32 s57, s56, 6
    v_add_u32 v{vA}, s57, v{vTQ}
    ds_read_b128 {vr(G+4,4)}, v{vA} offset:{L_OVL}
    s_waitcnt lgkmcnt(0)
    v_and_b32 v{vA}, 0x3fff, v{G+4}
    v_and_b32 v{vA+1}, 0x3fff, v{G+6}
    v_xad_u32 v{vA}, v{vA}, v{vXor}, v{vRow}
    v_xad_u32 v{vA+1}, v{vA+1}, v{vXor}, v{vRow}
    ds_read2st64_b32 {vr(G,2)}, v{vA} offset0:0 offset1:72
    ds_read2st64_b32 {vr(G+2,2)}, v{vA+1} offset0:0 offset1:72
    v_subrev_u32 v{vA}, s29, v{vTA}
    v_bfe_u32 v{vA}, v{vA}, 4, 4
    s_waitcnt lgkmcnt(0)""")
    for t in range(9):
        A(f"""    s_bitcmp1_b32 s27, {t}
    s_cbranch_scc0 M_sle{t}
{ovtile(t, G + 4, G, vA + 2)}
M_sle{t}:""")
    A(f"""    s_add_u32 s56, s56, 1
    s_cmp_lt_u32 s56, s46
    s_cbranch_scc1 M_sl
M_slx:
    s_nop 7
{ret("M_slowr", "M_slowr0")}
M_dense:""")
    for rb in range(2):
        A(f"""    s_mul_i32 s57, s20, {81*1024}
    s_add_u32 s57, s57, {EFB}
    s_mov_b32 s56, 0
    v_mov_b32 v54, v{vB0}
    v_mov_b32 v55, v{vB1}
    v_subrev_u32 v252, s29, v{vTA}
M_dn{rb}:
    ds_read_b128 {vr(G,4)}, v54 offset:{rb*18432}
    ds_read_b128 {vr(G+4,4)}, v55 offset:{rb*18432}
    v_add_u32 v54, 1024, v54
    v_add_u32 v55, 1024, v55""")
        for t in range(9):
            A(f"""    buffer_load_dwordx4 {vr(vA,4)}, v252, s[16:19], s57 offen sc1
    s_add_u32 s57, s57, 1024
    s_waitcnt vmcnt(0) lgkmcnt(0)
    v_smfmac_f32_16x16x64_bf16 {vr(vACC[rb]+4*t,4)}, {vr(vA,4)}, {vr(G,8)}, v{vCI}""")
        A(f"""    s_add_u32 s56, s56, 1
    s_cmp_lt_u32 s56, 9
    s_cbranch_scc1 M_dn{rb}""")
    A("    s_branch M_slx")
    A("M_codeend:")
    return "\n".join(L)

def gen(**kw):
    o = dict(DEF)
    o.update(kw)
    hdr = f"""; out = x @ prune_2of4(w) + b   (bf16, M=65536 K=576 N=576); generated by dev/gen6.py
; @launch grid=(256,1,1) block=(256,1,1) lds={LDS_BYTES}
.amdgcn_target "amdgcn-amd-amdhsa--gfx950"
.text
.globl {NAME}_kernel
"""
    kd = f"""
.section .rodata,"a"
.p2align 6
.amdhsa_kernel {NAME}_kernel
  .amdhsa_next_free_vgpr 512
  .amdhsa_next_free_sgpr 102
  .amdhsa_accum_offset 256
  .amdhsa_group_segment_fixed_size 0
  .amdhsa_kernarg_size 48
  .amdhsa_user_sgpr_count 2
  .amdhsa_user_sgpr_kernarg_segment_ptr 1
  .amdhsa_system_sgpr_workgroup_id_x 1
  .amdhsa_float_denorm_mode_32 3
.end_amdhsa_kernel
"""
    src = hdr + gen_main(o) + kd
    return "\n".join(l for l in src.split("\n") if l.strip()) + "\n"

if __name__ == "__main__":
    kw = {}
    out = f"/code/{NAME}.s"
    for a in sys.argv[1:]:
        if "=" in a:
            k, v = a.split("=", 1)
            assert k in DEF, k
            kw[k] = int(v) if v.lstrip("-").isdigit() else (eval(v) if v.startswith("[") else v.replace("+", " "))
        else:
            out = a
    open(out, "w").write(gen(**kw))
    print("wrote", out)
```

```python
import sys
from asmlib import *

NAME = "standalone__structured_sparse_n_m__ragged"
XB = 16 * 4096 * 576 * 2
WSB = 301989888
WSTR = 96 * 1024
U_REC, U_I8 = 0, 4
RA, RB = 176, 96
def u_idx(s): return 6 + 10 * s
def u_frag(s, t): return 7 + 10 * s + t
EFB = 4 * WSTR
CTR = EFB + 324 * 1024
SIG = CTR + 1024
WS_USED = SIG + 256 * 256
NF = 81
NARR = 27
CNT_F = 0
SLOT = 36864
NSLOT = 3
LTAB = NSLOT * SLOT
L_T0, L_OVL, L_CNT, L_BIAS, L_X = 9216, 9792, 10112, 10240, 10816
LTABW = L_X + 2048
L_MB = LTAB + 4 * LTABW
LDS_BYTES = L_MB + 16
RAW = 2 * SLOT
R_CNT = RAW + 8192
MDUM = 1 << 30
SPIN = 1 << 17

DEF = dict(xnt="nt", stf="sc1", inter=1, diag=0, nA=2, nF=2, lag=28, ecor=36, cper=5,
           gstep=1, book=132, b0=24, per=12, tord=[3, 1, 2, 0, 8, 7, 5, 6, 4], e1=[10, 44, 36], e0=[106, 137, 102],
           dma=[14, 38, 48, 74, 86, 102, 114, 138, 146], nostore=0, wsc="sc1", chain=1, win=70, rstep=1, slowat=5,
           bar2=21, claim=[8, 72, 84], touch=24, ctouch=2, xtail=16, pw=3, nfast=6, testfb=0, ov=[46, 58, 70, 91], pf="atom", slp=4, R=16, xwin=0, fx=3, fx2=0, fxb=0, dstep=9, e2=1, x2n=0, x2step=2, pp=0, blate=1, fpre=0, tpos=12, qplain=0, fplain=0, wb=[], ftouch=0, ftn=81, q=1, nh=48, hb0=8, hper=9, hp=[6, 10, 30, 22, 66], estat=0, fe1=0, fov=0, fbar2=0, fgstep=0, frstep=0, exact=0, maxres=30, cost=0, cchain=1, align=1, toob=1, pn=0, pwin=0, pdma=[], xw=[12, 26, 40, 56, 74, 92, 108, 126, 142], wwin=0, wth=160, wfrom=1, theta=16, rlead=9, lastrd=150, xa=5, tst=[], exp=0, xfull=0, xat=81, early=[(2, 65)], fwin=0, xA=0, n2=4, x2at=88, nsh=2, xst=6, x2pre=0, stail=0, sfull=0, sdist=[2, 2, 2, 2, 2, 2, 2, 1, 17], fb0=22, fper=11, fe0=[100, 124, 104], fslowat=5, fbook=84, fl=[116, 140, 147, 179])

DIAG = 1 << 20
def stamp(o, first=False, cond=False):
    if not o["diag"]:
        return ""
    if cond:
        return "    s_cmp_lg_u32 s21, 1\n    s_cbranch_scc1 D_c\n" + stamp(o) + "\n" + stamp(o) + "\nD_c:"
    L = []
    if first:
        L += ["    s_mov_b32 s62, 0", "    v_mov_b32 v255, 0"]
    L += ["    s_mov_b32 s63, m0", "    s_memrealtime s[60:61]", "    s_memtime s[64:65]", "    s_waitcnt lgkmcnt(0)", "    s_mov_b32 m0, s62", "    v_writelane_b32 v255, s60, m0",
          "    s_add_u32 m0, s62, 32", "    v_writelane_b32 v255, s64, m0", "    s_add_u32 s62, s62, 1", "    s_mov_b32 m0, s63"]
    return "\n".join(L)
def stamp_out(o):
    if not o["diag"]:
        return ""
    L = ["    s_mov_b64 exec, -1", "    s_waitcnt vmcnt(0)", stamp(o), f"    s_mov_b32 s18, {WSB}",
         "    s_lshl_b32 s60, s2, 2", "    s_add_u32 s60, s60, s20", "    s_lshl_b32 s60, s60, 8", f"    s_add_u32 s60, s60, {DIAG}",
         "    v_mbcnt_lo_u32_b32 v0, -1, 0", "    v_mbcnt_hi_u32_b32 v0, -1, v0", "    v_lshlrev_b32 v0, 2, v0",
         "    buffer_store_dword v255, v0, s[16:19], s60 offen"]
    return "\n".join(L)

def lut_tables():
    l64 = 0
    l32 = 0
    for nk in range(16):
        keep = [j for j in range(4) if not (nk >> j) & 1]
        e = 0
        if len(keep) >= 2:
            ia, ib = keep[-2], keep[-1]
            for j in keep[:-2]:
                assert j < 2
                e |= 1 << j
        elif len(keep) == 1:
            ib = keep[0]
            ia = (ib + 1) % 4
            if ia > ib:
                ia, ib = ib, ia
        else:
            ia, ib = 0, 1
        l64 |= (ia | ib << 2) << (4 * nk)
        l32 |= e << (2 * nk)
    return l64, l32

vB0, vB1, vXor, vRow, vDma, vS4, vS2, vTA, vTQ, vCI, vL16 = range(1, 12)
vIDX = 12
vXw, vL8, vD1 = 53, 54, 55
vD0 = 121
vR = 92
vAt = vL16
vWF = 56
vACC = (124, 160)
vBB = 196
vT, vA, vG = 236, 240, 244
vOV = (54, 252, 254)
L_OVT = L_OVL + 264
GROUPS = [(0, (0, 1, 2)), (0, (3, 4)), (0, (5, 6)), (0, (7, 8)), (1, (0, 1, 2)), (1, (3, 4)), (1, (5, 6)), (1, (7, 8))]
GBUF = {0: 0, 1: 1, 2: 2, 3: 3, 4: 4, 5: 0, 6: 1, 7: 3, 8: 4}

def slot_luts():
    lt = ll = 0
    for p in range(16):
        r = p if p < 8 else 15 - p
        qb = 2 * (r >> 2) + (p >> 3)
        jj = r & 3
        lt |= (qb * 4 + jj) << (4 * p)
        ll |= (((jj // 2) * 2 + qb // 2) * 4 + (qb % 2) * 2 + jj % 2) << (4 * p)
    return lt, ll

def poll(o, v):
    if o["pf"] != "atom":
        return f"    buffer_load_dword v{v}, off, s[16:19], s96 {o['pf']}"
    return f"""    v_mov_b32 v{v}, 0
    s_mov_b64 exec, 1
    buffer_atomic_add v{v}, off, s[16:19], s96 sc0 sc1
    s_mov_b64 exec, -1"""

def kwait(o, first=""):
    return f"""    s_waitcnt lgkmcnt(0)
    s_mov_b64 s[4:5], s[74:75]
{first}
    s_mov_b64 s[16:17], s[82:83]
    s_mov_b64 s[8:9], s[72:73]
    s_mov_b64 s[84:85], s[76:77]
    s_mov_b64 s[68:69], s[80:81]
    ; what the arrival counter this wave will poll holds before this launch adds to it
{poll(o, vCI)}"""

def stail(o):
    c = o["stail"]
    if not c:
        return ""
    J = 9 * c
    mg = ((1 << 20) + J - 1) // J
    assert all((e * mg) >> 20 == e // J for e in range(700)) and 5 * J <= 700
    return f"""    s_mul_i32 s30, s20, {256 - NF}
    s_add_u32 s30, s30, s2
    s_sub_u32 s30, s30, {NF}
    s_min_u32 s30, s30, {5*J - 1}
    s_mul_i32 s31, s30, {mg}
    s_lshr_b32 s31, s31, 20                   ; row r holds line r-1 in its first c*r columns, then line 8-r
    s_mul_i32 s32, s31, {J}
    s_sub_u32 s30, s30, s32
    s_mul_i32 s32, s31, {c}
    s_sub_u32 s33, s30, s32
    s_sub_u32 s34, s31, 1
    s_sub_u32 s31, 8, s31
    s_cmp_lt_u32 s30, s32
    s_cselect_b32 s30, s30, s33
    s_cselect_b32 s31, s34, s31
    s_sub_u32 s30, {2047 - o["sfull"]}, s30
    s_mul_i32 s30, s30, {SLOT}
    s_lshl_b32 s31, s31, 7
    s_add_u32 s33, s30, s31"""

def biasloads():
    return "\n".join([f"    buffer_load_dwordx4 {vr(vBB+4*u,4)}, v25, s[84:87], s28 offen offset:{u*64}" for u in range(4)]
                     + [f"    buffer_load_dwordx2 {vr(vBB+16,2)}, v26, s[84:87], s97 offen offset:1024"])

def fsetup(o, l64):
    l = f"""    s_lshl_b32 s34, s31, 2
    s_add_u32 s34, s34, s20
    s_lshr_b32 s35, s20, 1
    s_lshl_b32 s35, s35, 6
    s_and_b32 s36, s20, 1
    s_lshl_b32 s36, s36, 3
    s_add_u32 s35, s35, s36
    s_lshl_b32 s36, s20, 5
    s_mul_i32 s39, s32, 10240
    s_add_u32 s39, s39, {u_idx(0)*1024}
    s_lshl_b32 s40, s34, 1
    s_add_u32 s40, s40, s39
    s_lshl_b32 s38, s32, 1
    s_cmp_eq_u32 s32, 8
    s_cselect_b32 s38, 1024, s38
    s_add_u32 s38, s38, {U_I8*1024}
    s_cmp_lt_u32 s33, 8
    s_cselect_b32 s34, s34, 8                 ; t
    s_cselect_b32 s35, s35, s36               ; byte column of the tile
    s_cselect_b32 s36, 4, 3                   ; log2 distance of its 4-column runs
    s_cselect_b32 s40, s40, s38
    s_cselect_b32 s46, 0, s20                 ; list number
    s_cselect_b32 s47, {RA//8}, {RB//8}                  ; entries incl. the header
    s_add_u32 s40, s40, s48                   ; index word
    s_lshl_b32 s38, s34, 10
    s_add_u32 s39, s39, s38
    s_add_u32 s39, s39, s48
    s_add_u32 s39, s39, 1024                  ; fragment
    v_and_b32 v15, 3, v14
    v_lshlrev_b32 v15, s36, v15
    v_add_u32 v15, s35, v15
    v_lshrrev_b32 v16, 3, v14
    v_lshlrev_b32 v16, 4, v16
    v_xor_b32 v15, v15, v16
    v_lshrrev_b32 v16, 2, v14
    v_lshl_add_u32 v16, v13, 4, v16
    v_lshl_add_u32 v15, v16, 7, v15
    v_add_u32 v24, {RAW}, v15
    v_xor_b32 v27, 32, v24
    v_xor_b32 v28, 64, v24
    v_xor_b32 v29, 0x60, v24
    s_lshl_b32 s31, s46, 2
    s_add_u32 s31, s31, {R_CNT}
    v_mov_b32 v60, s31
    v_mov_b32 v61, 1
    ds_write_b32 v60, v61                     ; next free entry (0 is the header)
    s_mul_i32 s49, s30, 81
    s_mul_i32 s31, s32, 9
    s_add_u32 s49, s49, s31
    s_add_u32 s49, s49, s34
    s_lshl_b32 s49, s49, 10
    s_add_u32 s49, s49, {EFB}
    s_lshl_b32 s31, s34, 24
    s_lshl_b32 s38, s32, 10
    s_add_u32 s31, s31, s38
    v_lshlrev_b32 v31, 18, v14
    v_lshl_add_u32 v31, v13, 5, v31
    v_add_u32 v31, s31, v31                   ; record entry of group 0
    s_mov_b32 s50, {l64 & 0xffffffff}
    s_mov_b32 s51, {l64 >> 32}
    s_mov_b32 s52, 0x00010001
    s_mov_b32 s53, 0x00200010
    s_mov_b32 s38, 0x0202
    s_mul_i32 s57, s30, {o['R']*256}
    s_add_u32 s57, s57, {SIG}
    s_cmp_eq_u32 s33, 8
    s_cselect_b32 s56, 0, s20                 ; line 8: every wave signals its own group
    s_cmp_eq_u32 s20, 0
    s_cselect_b32 s98, 1, 0                   ; this wave still has to add to the zero-based fallback counter
    v_add_u32 v74, {R_CNT + 64}, v{vL8}
    v_lshl_add_u32 v73, s20, 1, v74
    v_mov_b32 v41, 0x01000100
    v_mov_b32 v40, 0
    v_mov_b32 v63, -2.0                       ; header of an overflowed record""".split("\n")
    n = o["fpre"]
    while n < len(l) and ("cselect" in l[n] or "s_bfm" in l[n]):
        n += 1
    return "\n".join(l[:n]), "\n".join(l[n:])

def gen_ftask(o, bstride):
    L = []
    A = L.append
    l64, l32 = lut_tables()
    n1 = o["fx"]
    d = xdma(o, "s42", "s22")
    nb = o["fxb"]
    db = d[2 * n1:2 * (n1 + nb)]
    d2 = d[2 * (n1 + nb):]
    raw = f"""    buffer_load_dwordx4 v{vDma}, s[4:7], s54 offen lds
    s_add_u32 m0, m0, 4096
    s_mov_b32 s45, 0
    buffer_load_dwordx4 v{vDma}, s[4:7], s55 offen lds"""
    A(f"""    s_mul_i32 s32, s2, 57
    s_lshr_b32 s32, s32, 9                    ; k step
    s_mul_i32 s33, s32, 9
    s_sub_u32 s33, s2, s33
    s_mul_i32 s54, s32, {64*1152}
    s_lshl_b32 s35, s33, 7
    s_add_u32 s54, s54, s35
    s_add_u32 s55, s54, {32*1152}
    s_lshl_b32 s36, s20, 10
    s_add_u32 m0, s36, {RAW}
    s_lshr_b32 s30, s33, 1
    s_and_b32 s31, s33, 1
    s_lshl1_add_u32 s37, s32, s31
    s_mul_i32 s37, s37, {RA}
    s_mul_i32 s38, s32, {RB}
    s_add_u32 s38, s38, {18*RA}
    s_cmp_lt_u32 s33, 8
    s_cselect_b32 s30, s30, s20               ; w
    s_cselect_b32 s37, s37, s38
    s_cselect_b32 s44, {(1 << (RA//16)) - 1}, {(1 << (RB//16)) - 1}
    s_cselect_b32 s45, s20, 3
    s_cmp_eq_u32 s45, 3
    s_cselect_b32 s99, {WS_USED}, 0
    s_mul_i32 s48, s30, {WSTR}
    s_add_u32 s37, s37, s48
    v_mov_b32 v44, 2.0
    v_mov_b32 v45, 0
    v_mov_b32 v46, 2.0
    v_mov_b32 v47, 0
{fsetup(o, l64)[0]}
{kwait(o, raw)}
    s_mov_b64 exec, s[44:45]
    s_mov_b32 s18, s99
    buffer_store_dwordx4 v[44:47], v{vL16}, s[16:19], s37 offen sc1
    s_mov_b32 s18, {WS_USED}
    s_mov_b64 exec, -1
{biasloads() if not o["blate"] else ""}
{text(finalize(d[:2*n1]))}
{fsetup(o, l64)[1]}
{stamp(o) if o["diag"] == 2 else ""}
    s_waitcnt vmcnt({7 + n1 - 5 * o['blate']}) lgkmcnt(0)
{stamp(o) if o["diag"] == 2 else ""}
    s_barrier
    ds_read_b64_tr_b16 v[16:17], v24
    ds_read_b64_tr_b16 v[18:19], v27 offset:512
    ds_read_b64_tr_b16 v[20:21], v28 offset:1024
    ds_read_b64_tr_b16 v[22:23], v29 offset:1536
{text(finalize(db))}""")
    for g in range(4):
        a = 16 + 2 * g
        A(f"""    s_waitcnt lgkmcnt({3-g})
    v_and_b32 v44, 0x7fff7fff, v{a}
    v_and_b32 v45, 0x7fff7fff, v{a+1}
    v_pk_max_u16 v46, v44, v45
    v_pk_min_u16 v47, v44, v45
    v_pk_min_u16 v46, v46, v46 op_sel:[0,1] op_sel_hi:[1,0]
    v_pk_max_u16 v47, v47, v47 op_sel:[0,1] op_sel_hi:[1,0]
    v_pk_max_u16 v46, v46, s52
    v_pk_max_u16 v46, v46, v47
    v_pk_sub_i16 v44, v44, v46
    v_pk_sub_i16 v45, v45, v46
    v_pk_ashrrev_i16 v44, 15, v44 op_sel_hi:[0,1]           ; all ones where dropped
    v_pk_ashrrev_i16 v45, 15, v45 op_sel_hi:[0,1]
    v_alignbit_b32 v47, -1, v44, 16
    v_alignbit_b32 v46, v45, v45, 16
    v_and_b32 v48, 0x00080004, v44
    v_bitop3_b32 v46, v45, v46, v47 bitop3:0xe8
    v_and_or_b32 v{64+g}, v45, s53, v48
    v_bitop3_b32 v{36+g}, v{a}, v44, v46 bitop3:0x10
    v_min_u32 v{68+g}, 1, v{36+g}""")
    A(f"""    v_add_u32 v72, v68, v69
    v_add3_u32 v72, v72, v70, v71
    buffer_store_dwordx4 v[36:39], v{vL16}, s[16:19], s49 offen sc1
    v_cmp_ne_u32 vcc, 0, v72
    s_and_saveexec_b64 s[44:45], vcc
    ds_add_rtn_u32 v62, v60, v72
    s_mov_b64 exec, -1""")
    for g in range(4):
        A(f"""    v_lshrrev_b32 v48, 16, v{64+g}
    v_or_b32 v48, v48, v{64+g}                ; 4 * mask of dropped elements
    v_lshrrev_b64 v[52:53], v48, s[50:51]
    v_and_b32 v{64+g}, 15, v52
    v_lshl_or_b32 v40, v{64+g}, {4*g}, v40""")
    if o["align"]:
        A("""    v_lshrrev_b32 v44, 2, v40
    v_lshlrev_b32 v45, 2, v40
    s_movk_i32 s31, 0x3333
    v_not_b32 v47, v40
    v_bfi_b32 v44, s31, v44, v45              ; both indices swapped
    s_movk_i32 s31, 0x1111
    s_nop 0
    v_mov_b32_dpp v47, v44 row_shr:4 row_mask:0xf bank_mask:0xf
    v_xor_b32 v47, v47, v40
    v_lshrrev_b32 v45, 1, v47
    v_or_b32 v47, v47, v45                    ; bit 0 / 2 of a nibble clear: shared element in the other slot
    v_lshrrev_b32 v45, 2, v47
    v_bitop3_b32 v47, v47, v45, s31 bitop3:0x2a
    s_nop 1
    v_xor_b32_dpp v47, v47, v47 row_shr:4 row_mask:0xf bank_mask:0xe
    s_nop 1
    v_xor_b32_dpp v47, v47, v47 row_shr:8 row_mask:0xf bank_mask:0xc
    v_mul_u32_u24 v47, 15, v47
    v_bfi_b32 v40, v47, v44, v40""")
    A(f"    ds_write_b16 v73, v40")
    for g in range(4):
        a = 16 + 2 * g
        if g == 2:
            A(f"""    s_waitcnt vmcnt({6 + n1 + nb - 5 * o['blate']}) lgkmcnt(0)
    s_barrier
    ds_read_b64 v[50:51], v74""")
        if o["align"]:
            A(f"    v_bfe_u32 v{64+g}, v40, {4*g}, 4")
        A(f"""    v_mul_u32_u24 v46, 0x4001, v{64+g}
    v_and_b32 v46, 0x30003, v46
    v_mad_u32_u24 v46, v46, s38, v41
    v_perm_b32 v{32+g}, v{a+1}, v{a}, v46""")
    A(f"""{stamp(o) if o["diag"] == 2 else ""}
    buffer_store_dwordx4 v[32:35], v{vL16}, s[16:19], s39 offen sc1
    s_cmp_eq_u32 s33, 8
    s_cbranch_scc0 F_i1
    buffer_store_short v40, v{vL16}, s[16:19], s40 offen sc1
    s_branch F_i2
F_i1:
    s_cmp_eq_u32 s20, 0
    s_cbranch_scc0 F_i2
    s_waitcnt lgkmcnt(0)
    buffer_store_dwordx2 v[50:51], v{vL16}, s[16:19], s40 offen sc1
F_i2:
    s_cbranch_vccz F_z""")
    for g in range(4):
        A(f"""    v_cmp_ne_u32 vcc, 0, v{36+g}
    s_and_saveexec_b64 s[44:45], vcc
    s_cbranch_execz F_e{g}
    v_cmp_gt_u32 vcc, s47, v62
    v_add_u32 v42, {8*g}, v31
    v_lshlrev_b32 v44, 3, v62
    v_add_u32 v62, 1, v62
    v_cndmask_b32 v42, v63, v42, vcc
    v_cndmask_b32 v43, 0, v{36+g}, vcc
    v_cndmask_b32 v44, 0, v44, vcc
{"" if o["exp"] & 2 else "    buffer_store_dwordx2 v[42:43], v44, s[16:19], s37 offen sc1"}
F_e{g}:
    s_mov_b64 exec, -1""")
    A(f"""F_z:
{stamp(o)}
    s_cmp_lg_u32 s2, 0
    s_cbranch_scc1 M_set
    v_mov_b32 v64, 0
    v_mov_b32 v65, 0
    v_mov_b32 v66, 0
    v_mov_b32 v67, 0
    s_mov_b32 s40, {CTR}
    buffer_store_dwordx4 v[64:67], v{vL16}, s[16:19], s40 offen sc1
    s_branch M_set
F_sig:
    ; all stores of this workgroup done -> add to the replicas the consumers poll
    v_lshlrev_b32 v30, 8, v12
    s_waitcnt vmcnt(0)
{stamp(o)}
    s_barrier
    s_cmp_lg_u32 s56, 0
    s_cbranch_scc1 F_end
{f"    s_bfm_b64 exec, {o['R']}, 0" if o['R'] < 64 else ""}
    buffer_atomic_add v61, v30, s[16:19], s57 offen sc1
    s_mov_b64 exec, -1
F_end:
{text(finalize(d[2 * (n1 + nb):2 * o["xa"]]))}
    s_branch M_x2""")
    return "\n".join(L)

def wfrag(p):
    return vr(4 * p, 4, "a") if p < 64 else vr(vWF + 4 * (p - 64), 4)

def smf(rb, s, t, buf):
    p = s * 9 + t
    ir, ih = (4 * s + t // 2, t & 1) if t < 8 else (36 + s // 2, s & 1)
    return smfmac(vr(vACC[rb] + 4 * t, 4), wfrag(p), vr(buf, 8), vr(vIDX + ir), ih)

def group_smf(gi, chain=True):
    rb, ks = GROUPS[gi]
    if chain:
        return [smf(rb, s, t, vBB + 8 * GBUF[s]) for t in range(9) for s in ks]
    return [smf(rb, s, t, vBB + 8 * GBUF[s]) for s in ks for t in range(9)]

def bread_to(rb, s, b):
    off = rb * 18432 + s * 1024
    return [ds_read("ds_read_b128", vr(b, 4), vr(vB0), f"offset:{off}"),
            ds_read("ds_read_b128", vr(b + 4, 4), vr(vB1), f"offset:{off}")]

def group_reads(gi):
    rb, ks = GROUPS[gi]
    return sum([bread_to(rb, s, vBB + 8 * GBUF[s]) for s in ks], [])

def bias_init(rb, t):
    return ds_read("ds_read_b128", vr(vACC[rb] + 4 * t, 4), vr(vTQ), f"offset:{L_BIAS + t*64}")

def tread(t, tok=None):
    i = ds_read("ds_read_b128", vr(vT, 4), vr(vTQ), f"offset:{L_T0 + t*64}")
    if tok:
        i.rd |= regs(tok)
    return i

def aread(t):
    return ds_read("ds_read_b128", vr(vA, 4), vr(vTA), f"offset:{t*1024}")

def xad(j):
    return valu(f"v_xad_u32 v{vT+j}, v{vT+j}, v{vXor}, v{vRow}", [vr(vT + j), vr(vXor), vr(vRow)], [vr(vT + j)])

def gather(j):
    return ds_read("ds_read2st64_b32", vr(vG + 2 * j, 2), vr(vT + j), "offset0:0 offset1:72")

H = vBB + 16
def ov_gather():
    return [ds_read("ds_read_b64", vr(H + 4, 2), vr(vTQ), f"offset:{L_OVT}"),
            valu(f"v_xad_u32 v{H}, v{H+4}, v{vXor}, v{vRow}", [vr(H + 4), vr(vXor), vr(vRow)], [vr(H)]),
            ds_read("ds_read2st64_b32", vr(H, 2), vr(H), "offset0:0 offset1:72"),
            valu(f"v_xad_u32 v{H+2}, v{H+5}, v{vXor}, v{vRow}", [vr(H + 5), vr(vXor), vr(vRow)], [vr(H + 2)]),
            ds_read("ds_read2st64_b32", vr(H + 2, 2), vr(H + 2), "offset0:0 offset1:72")]

def ov_call(tag):
    return I(f"s_cmp_lt_i32 s81, 0\n    s_cbranch_scc1 M_ovr{tag}\n    s_swappc_b64 s[78:79], s[72:73]\nM_ovr{tag}:", "other", rd=[vr(H, 4), vr(vACC[1], 36)] + [vr(r, 2) for r in vOV])

def csmf(rb, t):
    return smfmac(vr(vACC[rb] + 4 * t, 4), vr(vA, 4), vr(vG, 8), vr(vCI), rb)

def epilogue(rb, soff, o, init=True, xoff=0):
    gs = []
    for ln in range(2):
        g = []
        a = vACC[rb] + 16 * ln
        X, Y, Z = a, a + 8, a + 4
        for j in range(4):
            g.append(valu(f"v_cvt_pk_bf16_f32 v{X+j}, v{a+2*j}, v{a+2*j+1}", [vr(a + 2 * j, 2)], [vr(X + j)]))
        for j in range(4):
            g.append(valu(f"v_cvt_pk_bf16_f32 v{Y+j}, v{a+8+2*j}, v{a+8+2*j+1}", [vr(a + 8 + 2 * j, 2)], [vr(Y + j)]))
        if init:
            g.append(bias_init(rb, 4 * ln + 3))
        for j in range(4):
            g.append(valu(f"v_cndmask_b32_dpp v{Z+j}, v{X+j}, v{Y+j}, vcc row_ror:8 row_mask:0xf bank_mask:0xf", [vr(X + j), vr(Y + j)], [vr(Z + j)]))
        g.append(I(f"buffer_store_dwordx4 {vr(Z,4)}, v{vS4}, s[12:15], {soff[1]} offen offset:{ln*128} {o['stf']}".rstrip(), "store", rd=[vr(Z, 4), vr(vS4)]))
        for j in range(4):
            g.append(valu(f"v_mov_b32_dpp v{X+j}, v{Y+j} row_ror:8 row_mask:0xf bank_mask:0xc", [vr(X + j), vr(Y + j)], [vr(X + j)]))
        g.append(I(f"buffer_store_dwordx4 {vr(X,4)}, v{vS4}, s[12:15], {soff[0]} offen offset:{ln*128} {o['stf']}".rstrip(), "store", rd=[vr(X, 4), vr(vS4)]))
        if init:
            g += [bias_init(rb, 4 * ln + 1), bias_init(rb, 4 * ln + 2), bias_init(rb, 4 * ln)]
        gs.append(g)
    g = []
    a = vACC[rb] + 32
    for j in range(2):
        g.append(valu(f"v_cvt_pk_bf16_f32 v{a+j}, v{a+2*j}, v{a+2*j+1}", [vr(a + 2 * j, 2)], [vr(a + j)]))
    g.append(I(f"ds_write_b64 v{vXw}, {vr(a,2)} offset:{(1-rb)*2*LTABW + xoff}", "dsw", rd=[vr(a, 2), vr(vXw)], wr=["@x2" if xoff else f"@x{rb}"]))
    if init:
        g.append(bias_init(rb, 8))
    gs.append(g)
    if o["nostore"]:
        gs = [[i for i in g if i.kind != "store"] for g in gs]
    return gs

def xch(o, soff, r=vG, xoff=0):
    return [ds_read("ds_read_b128", vr(r, 4), vr(vTA), f"offset:{L_X + xoff}"),
            I(f"buffer_store_dwordx4 {vr(r,4)}, v{vS2}, s[12:15], {soff} offen {o['stf']}".rstrip(), "store", rd=[vr(r, 4), vr(vS2)])]

def xdma(o, m0base, soff):
    g = []
    for s in range(9):
        if s == 0:
            g.append(salu(f"s_mov_b32 m0, {m0base}"))
        else:
            g.append(salu("s_add_u32 m0, m0, 896"))
        g.append(I(f"buffer_load_dwordx4 v{vDma}, s[8:11], {soff} offen offset:{s*128} {o['xnt']} lds", "dma", rd=[vr(vDma), soff]))
    return g

def count_in(tag):
    return f"""s_cmp_eq_u32 s98, 0
    s_cbranch_scc1 {tag}
    s_mov_b32 s98, 0
    v_mov_b32 v{vG+6}, 1
    s_mov_b64 exec, 1
    buffer_atomic_add v{vG+6}, off, s[68:71], 0 offset:{CNT_F} sc1
    s_mov_b64 exec, -1
    s_nop 3
{tag}:"""

def spin(tag, base, target):
    return f"""    v_readfirstlane_b32 s30, v0
    s_mov_b32 s31, 0
    s_sub_u32 s30, s30, {base}
    s_cmp_eq_u32 s30, {target}
    s_cbranch_scc0 {tag}_spin
{tag}_ok:"""

def spin_out(o, tag, base, target, soff):
    return f"""{tag}_spin:
    s_sleep {o['slp']}
{poll(o, 0)}
    s_add_u32 s31, s31, 1
    s_waitcnt vmcnt(0)
    v_readfirstlane_b32 s30, v0
    s_nop 0
    s_sub_u32 s30, s30, {base}
    s_cmp_eq_u32 s30, {target}
    s_cbranch_scc1 {tag}_ok
    s_cmp_lt_u32 s31, {o['nfast']}
    s_cbranch_scc1 {tag}_spin
    {count_in(tag + "_spin2")}
    buffer_load_dword v0, off, s[68:71], 0 offset:{CNT_F} sc1
    s_cmp_ge_u32 s31, {SPIN}
    s_cbranch_scc1 M_end
    s_waitcnt vmcnt(0)
    v_readfirstlane_b32 s30, v0
    s_nop 0
    s_cmp_eq_u32 s30, {NF}
    s_cbranch_scc0 {tag}_spin
    s_branch {tag}_ok"""

def ctouch(o):
    if not o["ctouch"]:
        return ""
    return f"""    s_getpc_b64 s[84:85]
    s_lshr_b32 s30, s2, 3
    s_and_b32 s30, s30, 15
    s_lshl_b32 s30, s30, 11
    s_and_b32 s84, s84, 0xffffff00
    s_cmp_ge_u32 s2, {88 if o["ctouch"] == 2 else 0}
    s_cselect_b32 s86, M_codeend-{NAME}_kernel, 0
    s_mov_b32 s87, 0x20000
    v_lshlrev_b32 v254, 3, v0
    s_mov_b32 exec_lo, 0x00010001
    s_mov_b32 exec_hi, 0x00010001
    buffer_load_dword v254, v254, s[84:87], s30 offen
    s_mov_b64 exec, -1"""

COST = {}
def gen_main(o):
    L = []
    A = L.append
    bstride = 256 * SLOT if o["inter"] else SLOT
    wgmul = SLOT if o["inter"] else 3 * SLOT
    tord = o["tord"]
    if len(o["early"]) != 1 or o["estat"]:
        o["e2"] = 0
    HB = (2048 - o["nh"] // 2) * SLOT
    A(f""".p2align 8
.type {NAME}_kernel,@function
{NAME}_kernel:
    s_cmp_ge_u32 s2, 256
    s_cbranch_scc1 M_end
{stamp(o, True)}
    s_load_dwordx8 s[72:79], s[0:1], 0        ; x w b out
    s_load_dwordx4 s[80:83], s[0:1], 32
{ctouch(o)}
    v_lshrrev_b32 v20, 6, v0
    v_and_b32 v12, 63, v0                     ; lane
    v_readfirstlane_b32 s20, v20              ; wave
    ; DMA lane offset: (tid/8)*1152 + ((tid%8) ^ ((tid/16)%8))*16
    v_lshrrev_b32 v22, 3, v0
    v_mul_u32_u24 v22, 1152, v22
    v_lshrrev_b32 v23, 4, v0
    v_xor_b32 v23, v23, v0
    v_and_b32 v23, 7, v23
    v_lshl_add_u32 v{vDma}, v23, 4, v22
    v_lshrrev_b32 v13, 4, v12                 ; q
    v_and_b32 v14, 15, v12                    ; m
    v_lshlrev_b32 v{vL16}, 4, v12
    v_lshlrev_b32 v{vL8}, 3, v12
    v_lshlrev_b32 v25, 4, v13
    v_lshlrev_b32 v26, 3, v13
    s_mov_b32 s6, {576*576*2}
    s_mov_b32 s7, 0x20000
    s_mov_b32 s10, {XB}
    s_mov_b32 s11, s7
    s_mov_b32 s18, {WS_USED}
    s_mov_b32 s19, s7
    s_movk_i32 s70, 256
    s_mov_b32 s71, s7
    s_movk_i32 s86, 1152
    s_mov_b32 s87, s7
    s_mov_b32 s98, 0
    s_mul_i32 s96, s20, {o['R']}
    s_and_b32 s97, s2, {o['R']-1}
    s_add_u32 s96, s96, s97
    s_lshl_b32 s96, s96, 8
    s_add_u32 s96, s96, {SIG}
    s_mul_i32 s22, s2, {wgmul}
    s_mul_i32 s26, s20, 9216
    s_mov_b32 s24, s22
    s_mov_b32 s42, s26
    s_lshl_b32 s28, s20, 8
    s_lshl_b32 s97, s20, 5
    s_cmp_lt_u32 s2, {NF}
    s_cbranch_scc0 M_x1
{gen_ftask(o, bstride)}
M_x1:
{kwait(o)}
{(stamp(o) + chr(10)) * 3 if o["diag"] == 2 else ""}
{stamp(o)}
{biasloads() if not o["blate"] else ""}
{text(finalize(xdma(o, "s42", "s22")[:2 * o["xa"]]))}""")
    A(f"""M_set:                                        ; set-up while the first loads (or the prep stores) are under way
    s_mov_b32 s12, s78
    s_mov_b32 s13, s79
    s_mov_b32 s14, {XB}
    s_mov_b32 s15, 0x20000
    s_mul_i32 s29, s20, {LTABW}
    s_add_u32 s29, s29, {LTAB}
    v_lshrrev_b32 v24, 1, v14                 ; f(m)
    v_and_b32 v27, 7, v14
    v_lshlrev_b32 v22, 7, v27
    v_lshl_or_b32 v{vXor}, v24, 4, v22        ; (f<<4) | (m%8)<<7
    v_lshrrev_b32 v23, 3, v14
    v_mul_u32_u24 v{vRow}, 9216, v23
    v_xad_u32 v{vB0}, v25, v{vXor}, v{vRow}
    v_xor_b32 v{vB1}, 64, v{vB0}
    v_add_u32 v{vTQ}, s29, v25
    v_add_u32 v{vTA}, s29, v{vL16}
    v_mul_u32_u24 v24, 1152, v27
    v_lshl_add_u32 v24, v23, 6, v24
    v_add3_u32 v{vS4}, v24, v25, s28          ; (m%8)*1152 + (m/8)*64 + q*16 + w*256
    v_lshrrev_b32 v24, 3, v12
    v_xor_b32 v28, v24, v12
    v_and_b32 v28, 7, v28
    v_mul_u32_u24 v24, 1152, v24
    v_lshl_add_u32 v24, v28, 4, v24
    v_add_u32 v{vS2}, 1024, v24               ; (l/8)*1152 + 1024 + ((l%8)^(l/8))*16
    s_lshl_b32 s30, s20, 1
    v_lshrrev_b32 v24, 1, v13
    v_add_u32 v24, s30, v24
    v_xor_b32 v24, v24, v27
    v_lshl_add_u32 v24, v24, 4, v22
    v_and_b32 v28, 8, v26
    v_mul_u32_u24 v29, {LTABW}, v23
    v_add3_u32 v24, v24, v28, v29
    v_add_u32 v{vXw}, {LTAB+L_X}, v24
    s_lshr_b32 s30, s2, 3
    s_and_b32 s30, s30, {o['nsh']-1}          ; shard
    s_mul_i32 s92, s30, {1024//max(o['nsh'],4)}
    s_add_u32 s92, s92, {CTR - L_MB}
    s_add_u32 s30, s30, {768 + (256 * o['early'][-1][0] if o['estat'] else 0)}
    s_mul_i32 s93, s30, {SLOT}
    s_mov_b32 s94, {o['nsh']*SLOT}
    s_and_b32 s95, s20, 1
    s_mul_i32 s95, s95, 9216
    s_add_u32 s59, s24, 9216
    s_mul_i32 s43, s20, {WSTR}
    s_add_u32 s47, s29, {L_T0}
    s_add_u32 s48, s29, {L_OVL}
    s_add_u32 s49, s29, {L_CNT}
    s_add_u32 s54, s29, {L_OVL + 256 + MDUM}  ; outside the LDS allocation: writes are dropped
    s_add_u32 s38, s26, {2*SLOT}
    s_add_u32 s35, s38, {128*8}
    s_add_u32 s39, s38, {192*8}
    s_mov_b32 s40, s48
    s_add_u32 s41, s48, 256
    s_mov_b32 s50, {slot_luts()[0] & 0xffffffff}
    s_mov_b32 s51, {slot_luts()[0] >> 32}
    s_mov_b32 s52, {slot_luts()[1] & 0xffffffff}
    s_mov_b32 s53, {slot_luts()[1] >> 32}
    v_mov_b32 v16, 0
    v_mov_b32 v17, 0
    v_mov_b32 v18, 0
    v_mov_b32 v19, 0
    v_cmp_gt_u32 s[44:45], 36, v12
    v_mov_b32 v20, {"2.0" if o["toob"] else "0"}
    s_nop 0
    v_cndmask_b32 v20, 0, v20, s[44:45]
    v_mov_b32 v21, v20
    v_mov_b32 v22, v20
    v_mov_b32 v23, v20
    v_mov_b32 v{vR+12}, {MDUM}
    v_mov_b32 v{vR+13}, 0
    v_mov_b32 v{vR+14}, {MDUM}
    v_mov_b32 v{vR+15}, 0
    v_lshl_add_u32 v{vD0}, v12, 2, s49
    v_add_u32 v{vD1}, s38, v{vL8}
    v_add_u32 v24, s38, v{vL16}""")
    for t in range(9):
        A(f"    ds_write_b128 v{vTA}, v[16:19] offset:{t*1024}")
    assert not o["x2pre"]
    A(f"""    ds_write_b128 v24, {vr(vR+12,4)}
    ds_write_b128 v24, {vr(vR+12,4)} offset:1024
    ds_write_b128 v{vTA}, v[20:23] offset:{L_T0}
    s_cmp_lt_u32 s2, {NF}
    s_cbranch_scc1 F_sig
{stamp(o)}
{text(finalize(xdma(o, "s42", "s22")[2 * o["xa"]:2 * max(o["xa"], o["fx"] + o["fxb"])]))}
M_x2:
{text(finalize(xdma(o, "s42", "s22")[2 * max(o["xa"], o["fx"] + o["fxb"]):]))}
    s_add_u32 s22, s22, {bstride}
    s_add_u32 s42, s42, {SLOT}
{biasloads() if o["blate"] else ""}
{text(finalize(xdma(o, "s42", "s22")))}
    s_add_u32 s22, s22, {bstride}
    s_add_u32 s42, s42, {SLOT}
{stamp(o) if o["diag"] != 3 else ""}
    s_waitcnt vmcnt({o['pw']})
{stamp(o) if o["diag"] != 3 else ""}
{poll(o, 0)}
    v_readlane_b32 s100, v{vCI}, 0
    v_mov_b32 v{vCI}, 0xeeee4444
{"    s_add_u32 s100, s100, 5" if o["testfb"] else ""}""")
    for j in range(18):
        A(f"    v_lshlrev_b32 v{vACC[0]+2*j}, 16, v{vBB+j}\n    v_and_b32 v{vACC[0]+2*j+1}, 0xffff0000, v{vBB+j}")
    A("    s_mov_b32 exec_lo, 0x00010001\n    s_mov_b32 exec_hi, 0x00010001")
    for t in range(9):
        A(f"    ds_write_b128 v{vTQ}, {vr(vACC[0]+4*t,4)} offset:{L_BIAS+t*64}")
    A("    s_mov_b64 exec, -1")
    if o["xtail"]:
        wd = o["xw"] or [o["xfull"] + o["xtail"] * (q + 1) for q in range(9)]
        g0 = vG
        n0 = NF if o["xA"] == 1 else 0
        ft, fn = o["ftouch"], o["ftn"]
        assert sum(wd) <= (8 * fn * ft if ft else 8 * (256 - n0))
        if ft:
            A(f"""    s_cmp_lt_u32 s2, {fn}
    s_cbranch_scc0 M_ft2
    s_lshl2_add_u32 s30, s2, s20
    s_lshl_b32 s30, s30, 1
    s_add_u32 m0, s29, {L_X + 1024}
M_ft:""")
        else:
            A(f"""    s_mul_i32 s30, s20, {256 - n0}
    s_xor_b32 s31, s2, {255 if o["xA"] == 2 else 0}
    s_add_u32 s30, s30, s31
    s_sub_u32 s30, s30, {n0}
    s_cmp_lt_u32 s2, {n0}
    s_cselect_b32 s30, 1023, s30
    s_lshl_b32 s30, s30, 1""")
        A(f"""    v_lshrrev_b32 v{g0}, 5, v12
    v_add_u32 v{g0+4}, s30, v{g0}             ; e
    v_mov_b32 v{g0}, -1
    v_mov_b32 v{g0+1}, 0""")
        for q in range(9):
            if wd[q]:
                A(f"""    v_subrev_u32 v{g0+2}, {sum(wd[q+1:])}, v{g0+4}
    v_cmp_gt_u32 vcc, {wd[q]}, v{g0+2}
    v_mov_b32 v{g0+3}, {q}
    s_nop 0
    v_cndmask_b32 v{g0}, v{g0}, v{g0+2}, vcc
    v_cndmask_b32 v{g0+1}, v{g0+1}, v{g0+3}, vcc""")
        A(f"""    v_sub_u32 v{g0}, 2047, v{g0}
    v_mul_u32_u24 v{g0}, {SLOT}, v{g0}
    v_lshl_add_u32 v{g0}, v{g0+1}, 7, v{g0}
    v_and_b32 v{g0+1}, 31, v12
    v_mul_u32_u24 v{g0+1}, 1152, v{g0+1}
    v_add_u32 v{g0+5}, v{g0}, v{g0+1}""")
        if ft:
            A(f"""    buffer_load_dword v{g0+5}, s[8:11], 0 offen lds
    s_add_u32 s30, s30, {8*fn}
    s_cmp_lt_u32 s30, {8*fn*ft}
    s_cbranch_scc1 M_ft
M_ft2:""")
    A("    s_mov_b32 vcc_lo, 0xff00ff00\n    s_mov_b32 vcc_hi, 0xff00ff00")
    if o["pp"]:
        A(poll(o, vG + 7) + "\n    s_waitcnt vmcnt(1)")
    else:
        A("    s_waitcnt vmcnt(0)")
    A(stamp(o))
    A(spin("M_pf", "s100", NARR).replace("M_pf_spin", "M_pf_pp" if o["pp"] else "M_pf_spin"))
    A(stamp(o))

    lag, e_cor, cper = o["lag"], o["ecor"], o["cper"]
    def uload(u, dst, n):
        g = [salu("s_add_u32 s43, s43, 4096")] if u % 4 == 0 and u else []
        g.append(I(f"buffer_load_dword{'x4' if n == 4 else ''} {dst}, v{vL16}, s[16:19], s43 offen offset:{(u%4)*1024} {o['wsc']}", "load", rd=[vr(vL16)], wr=[dst]))
        return g
    def wload(p):
        s, t = divmod(p, 9)
        g = uload(u_idx(s), vr(vIDX + 4 * s, 4), 4) if t == 0 else []
        return g + uload(u_frag(s, t), wfrag(p), 4)
    def pbuf(rb, s):
        return vBB + 8 * ((0, 1)[s & 1] if rb == 0 else (4, 3)[s & 1])
    seq = []
    if o["touch"]:
        nl = o["touch"]
        t0 = WSTR - 21 * nl * 128
        A(f"""    s_lshr_b32 s30, s2, 3
    s_sub_u32 s31, s30, 11
    s_cselect_b32 s30, s30, s31
    s_mul_i32 s30, s30, {nl*128}
    s_add_u32 s30, s30, s43
    s_add_u32 s30, s30, {t0}
    v_lshlrev_b32 v{vG}, 3, v{vL16}""")
    SR5 = [66, 60, 64, 56, 88, 90, 96, 100, 58, 84, 86, 4, 6, 68, 70, 0]
    if o["diag"] == 5:
        seq.append(I(f"s_memtime s[{SR5[0]}:{SR5[0]+1}]", "other"))
    seq.append(valu(f"v_mov_b32 v0, v{vG+5}", [], ["v0"]))
    R = vR
    seq += uload(0, vr(R, 4), 4) + uload(1, vr(R + 4, 4), 4) + uload(2, vr(R + 8, 4), 4)
    seq += [salu(f"s_mov_b32 exec_hi, {(1 << ((18*RA + 9*RB)//16 - 224)) - 1}")] + uload(3, vr(R + 12, 4), 4) + [salu("s_mov_b32 exec_hi, -1")]
    seq += uload(4, vr(vIDX + 36, 4), 4) + uload(5, vr(vIDX + 40), 1)
    for p in range(lag):
        seq += wload(p)
    if o["touch"]:
        j = [q for q, i in enumerate(seq) if i.kind == "load"][o["tpos"]]
        assert o["tpos"] != 3
        seq[j:j] = [salu(f"s_bfm_b64 exec, {o['touch']}, 0"), I(f"buffer_load_dword v{vG}, v{vG}, s[16:19], s30 offen sc1", "load", wr=[vr(vG)]), salu("s_mov_b64 exec, -1")]
    def V(txt, rd, wr):
        return valu(txt, [f"v{r}" if isinstance(r, int) else r for r in rd], [f"v{r}" if isinstance(r, int) else r for r in wr])
    OLD, X = R + 6, R + 18
    DUM = X + 8
    build = [V(f"v_mov_b32 v{DUM}, s54", [], [DUM]),
             V(f"v_or3_b32 v{X+4}, v{R}, v{R+4}, v{R+8}", [R, R + 4, R + 8], [X + 4]),
             V(f"v_or_b32 v{X+4}, v{X+4}, v{R+12}", [R + 12, X + 4], [X + 4]),
             V(f"v_cmp_gt_i32 s[32:33], 0, v{X+4}", [X + 4], ["s[32:33]"])]
    for j in range(8):
        M, Y, K = R + 2 * j, X + (j & 1), "s[44:45]" if j & 1 else "s[36:37]"
        k0 = 44 if j & 1 else 36
        build += [V(f"v_cmp_gt_u32 {K}, 2.0, v{M}", [M], [K]),
                  V(f"v_mbcnt_lo_u32_b32 v{Y}, s{k0}, 0", [K], [Y]),
                  V(f"v_mbcnt_hi_u32_b32 v{Y}, s{k0+1}, v{Y}", [K, Y], [Y]),
                  V(f"v_lshl_add_u32 v{Y}, v{Y}, 3, s38", [Y], [Y]),
                  V(f"v_min_u32 v{Y}, s39, v{Y}", [Y], [Y]),
                  V(f"v_cndmask_b32 v{Y}, v{DUM}, v{Y}, {K}", [DUM, Y, K], [Y]),
                  I(f"ds_write_b64 v{Y}, {vr(M,2)}", "dsw", rd=[vr(Y), vr(M, 2)]),
                  salu(f"s_bcnt1_i32_b64 s30, {K}"),
                  salu(f"s_lshl3_add_u32 s38, s30, s38")]
    build += [ds_read("ds_read_b64", vr(R + 2 * j, 2), vr(vD1), f"offset:{j*512}") for j in range(3)] + [None] * 10
    def rank(j):
        M, Y = R + 2 * j, X + 2 * (j & 1)
        return [V(f"v_bfe_u32 v{Y}, v{M}, 24, 4", [M], [Y]),
                V(f"v_lshlrev_b32 v{Y+1}, 1, v{M}", [M], [Y + 1]),
                V(f"v_lshl_add_u32 v{Y}, v{Y}, 2, s49", [Y], [Y]),
                V(f"v_and_b32 v{Y+1}, 16, v{Y+1}", [Y + 1], [Y + 1]),
                V(f"v_and_or_b32 v{Y}, v{M}, 2.0, v{Y}", [M, Y], [Y]),
                V(f"v_lshlrev_b32 v{Y+1}, v{Y+1}, 1", [Y + 1], [Y + 1]),
                I(f"ds_add_rtn_u32 v{OLD+j}, v{Y}, v{Y+1}", "ds", rd=[vr(Y, 2)], wr=[vr(OLD + j)])]
    def place(j):
        M, E, O = R + 2 * j, R + 2 * j + 1, OLD + j
        return [V(f"v_and_b32 v{X}, 8, v{M}", [M], [X]),
                V(f"v_lshrrev_b32 v{X+3}, 14, v{M}", [M], [X + 3]),
                V(f"v_cmp_ne_u32 s[44:45], 0, v{X}", [X], ["s[44:45]"]),
                V(f"v_and_b32 v{X+6}, 0x3cf0, v{X+3}", [X + 3], [X + 6]),
                V(f"v_lshrrev_b32 v{X+1}, 16, v{O}", [O], [X + 1]),
                V(f"v_and_b32 v{X+2}, 0xffff, v{O}", [O], [X + 2]),
                V(f"v_sub_u32 v{X}, 15, v{X+1}", [X + 1], [X]),
                V(f"v_and_b32 v{O}, 2.0, v{M}", [M], [O]),
                V(f"v_add3_u32 v{O}, v{X+2}, v{X+1}, v{O}", [X + 2, X + 1, O], [O]),
                V(f"v_cndmask_b32 v{X}, v{X+2}, v{X}, s[44:45]", [X + 2, X, "s[44:45]"], [X]),
                V(f"v_cmp_gt_u32 s[44:45], 16, v{O}", [O], ["s[44:45]"]),
                V(f"v_cmp_gt_u32 s[36:37], 2.0, v{O}", [O], ["s[36:37]"]),
                V(f"v_lshlrev_b32 v{X}, 2, v{X}", [X], [X]),
                V(f"v_lshrrev_b64 v[{X+2}:{X+3}], v{X}, s[50:51]", [X], [X + 2, X + 3]),
                salu("s_andn2_b64 s[36:37], s[36:37], s[44:45]"),
                V(f"v_lshrrev_b64 v[{X+4}:{X+5}], v{X}, s[52:53]", [X], [X + 4, X + 5]),
                V(f"v_bfe_u32 v{X}, v{M}, 24, 4", [M], [X]),
                V(f"v_mbcnt_lo_u32_b32 v{X+1}, s36, 0", [], [X + 1]),
                V(f"v_and_b32 v{X+2}, 15, v{X+2}", [X + 2], [X + 2]),
                V(f"v_mbcnt_hi_u32_b32 v{X+1}, s37, v{X+1}", [X + 1], [X + 1]),
                V(f"v_and_b32 v{X+4}, 15, v{X+4}", [X + 4], [X + 4]),
                V(f"v_lshl_add_u32 v{X+1}, v{X+1}, 3, s40", [X + 1], [X + 1]),
                V(f"v_lshl_add_u32 v{X+2}, v{X}, 4, v{X+2}", [X, X + 2], [X + 2]),
                V(f"v_min_u32 v{X+1}, s41, v{X+1}", [X + 1], [X + 1]),
                V(f"v_mul_u32_u24 v{X+4}, 68, v{X+4}", [X + 4], [X + 4]),
                V(f"v_cndmask_b32 v{X+1}, v{DUM}, v{X+1}, s[36:37]", [DUM, X + 1], [X + 1]),
                I(f"ds_write_b64 v{X+1}, {vr(M,2)}", "dsw", rd=[vr(X + 1), vr(M, 2)]),
                salu("s_bcnt1_i32_b64 s30, s[36:37]"),
                salu("s_lshl3_add_u32 s40, s30, s40"),
                V(f"v_lshl_add_u32 v{X+2}, v{X+2}, 2, s47", [X + 2], [X + 2]),
                V(f"v_and_b32 v{X+4}, 0x30c, v{X+4}", [X + 4], [X + 4]),
                V(f"v_cndmask_b32 v{X+2}, v{DUM}, v{X+2}, s[44:45]", [DUM, X + 2, "s[44:45]"], [X + 2]),
                V(f"v_add3_u32 v{X+3}, v{X+6}, v{X+4}, s29", [X + 6, X + 4], [X + 3]),
                V(f"v_and_b32 v{X+4}, 0x3fff, v{M}", [M], [X + 4]),
                V(f"v_cndmask_b32 v{X}, v{DUM}, v{X+3}, s[44:45]", [DUM, X + 3, "s[44:45]"], [X]),
                I(f"ds_write_b32 v{X+2}, v{X+4}", "dsw", rd=[vr(X + 2), vr(X + 4)]),
                I(f"ds_write_b32 v{X}, v{E}", "dsw", rd=[vr(X), vr(E)])]
    C = X + 7
    build += rank(0) + rank(1)
    build += [I("s_cmp_gt_u32 s38, s35\n    s_cbranch_scc1 M_r3\nM_r3r:", "other", rd=[vr(R + 4, 2)]),
              ds_read("ds_read_b32", vr(C), vr(vD0))]
    build += place(0) + place(1)
    build += [V(f"v_lshrrev_b32 v{X}, 16, v{C}", [C], [X]),
              V(f"v_and_b32 v{C}, 0xffff, v{C}", [C], [C]),
              V(f"v_add_u32 v{C}, v{C}, v{X}", [C, X], [C]),
              V(f"v_cmp_lt_u32 s[34:35], 16, v{C}", [C], ["s[34:35]"]),
              salu("s_sub_u32 s46, s40, s48"),
              salu("s_add_u32 s46, s46, 56"),
              salu("s_lshr_b32 s46, s46, 6"),
              salu("s_mov_b32 s21, 0"),
              salu("s_and_b32 s27, s34, " + ("0" if o["exp"] & 4 else "0x1ff")),
              I("""s_cmp_gt_u32 s46, 4
    s_cselect_b32 s32, 1, s32
    s_or_b32 s32, s32, s33
    s_cbranch_scc1 M_dn
M_dnr:""", "other")]
    nov = 2 if o["diag"] else 3
    build += [ds_read("ds_read_b128", vr(R, 4), vr(vTQ), f"offset:{L_OVL}"),
              I(f"""s_bcnt1_i32_b32 s30, s27
    s_cmp_gt_u32 s30, {nov}
    s_cselect_b32 s34, 0, s27
    s_cselect_b32 s80, 0, 1""", "other"),
              I("s_getpc_b64 s[36:37]\nM_pc:", "other"),
              V(f"v_bfe_u32 v{X}, v{vL16}, 4, 4", [], [X])]
    for j in range(nov):
        build += [I(f"""s_ff1_i32_b32 s{81+j}, s34
    s_bitset0_b32 s34, s{81+j}
    s_mul_i32 s30, s{81+j}, 20""", "other"),
                  I(f"""s_add_u32 s31, s30, M_ovc{min(j,1)}-M_pc
    s_add_u32 s30, s30, M_ovl{j}-M_pc""", "other"),
                  I(f"""s_cmp_lg_u32 s34, 0
    s_cselect_b32 s30, s31, s30
    s_cmp_lt_i32 s{81+j}, 0
    s_cselect_b32 s30, M_ovn-M_pc, s30""", "other"),
                  I(f"""s_add_u32 s{72+2*j}, s36, s30
    s_addc_u32 s{73+2*j}, s37, 0""", "other")]
    build += [V(f"v_lshrrev_b32 v{X+2}, 18, v{R}", [R], [X + 2]),
              V(f"v_lshrrev_b32 v{X+3}, 18, v{R+2}", [R + 2], [X + 3]),
              V(f"v_and_b32 v{X+4}, 0x3fff, v{R}", [R], [X + 4]),
              V(f"v_and_b32 v{X+5}, 0x3fff, v{R+2}", [R + 2], [X + 5]),
              I(f"ds_write_b64 v{vTQ}, {vr(X+4,2)} offset:{L_OVT}", "dsw", rd=[vr(X + 4, 2)])]
    for j in range(nov):
        build += [V(f"v_lshl_or_b32 v{X+1}, s{81+j}, 6, v{X}", [X], [X + 1]),
                  V(f"v_cmp_eq_u32 s[44:45], v{X+2}, v{X+1}", [X + 1, X + 2], ["s[44:45]"]),
                  V(f"v_cmp_eq_u32 s[36:37], v{X+3}, v{X+1}", [X + 1, X + 3], ["s[36:37]"]),
                  V(f"v_cndmask_b32 v{vOV[j]}, 0, v{R+1}, s[44:45]", [R + 1, "s[44:45]"], [vOV[j]]),
                  V(f"v_cndmask_b32 v{vOV[j]+1}, 0, v{R+3}, s[36:37]", [R + 3, "s[36:37]"], [vOV[j] + 1])]
    seq += [bias_init(1, t) for t in range(9)]
    seq.append(I(count_in("M_cnt"), "other"))
    bar = I("s_barrier", "other", rd=[wfrag(0)])
    seq.append(bar)
    seq += bread_to(0, 0, pbuf(0, 0)) + bread_to(1, 0, pbuf(1, 0))
    assert e_cor + 9 * cper <= 81 and e_cor <= 73 - lag, e_cor
    build.append(tread(tord[0]))
    queue = [(j * (e_cor - 2) // len(build), ins) for j, ins in enumerate(build) if ins]
    build = [i for i in build if i]
    for k in range(9):
        e = e_cor + k * cper
        queue += [(e - 1, xad(0)), (e - 1, xad(1)), (e, gather(0)), (e, gather(1)), (e, xad(2)), (e, xad(3)), (e, gather(2)), (e, gather(3)), (e, aread(tord[k]))]
        queue += [(e, tread(tord[k + 1]))] if k < 8 else []
        if k == 0:
            og = ov_gather()
            queue.insert(len(build), (e - 2, og[0]))
            queue += [(e + 1, i) for i in og[1:]]
        if k == 1:
            queue += [(e + 2, ov_call(0))]
        queue += [(e + cper - 1, csmf(0, tord[k])), (e + cper - 1, csmf(1, tord[k]))]
    def pop(e, nv):
        out = []
        while queue and queue[0][0] <= e and queue[0][1].kind != "valu":
            out.append(queue.pop(0)[1])
        while queue and queue[0][0] <= e and queue[0][1].kind == "valu" and nv:
            out.append(queue.pop(0)[1])
            nv -= 1
        return out
    n2 = o["n2"]
    assert o["nA"] == 2 and o["nF"] == 2
    x2n = o["x2n"] or n2
    assert x2n == n2 or o["early"][0][0] == 1
    x2 = xdma(o, "s42", "s22")[:2 * x2n]
    for e in range(81):
        s, t = divmod(e, 9)
        seq.append(smf(0, s, t, pbuf(0, s)))
        if o["diag"] == 5 and e % 6 == 0:
            seq.append(I(f"s_memtime s[{SR5[1+e//6]}:{SR5[1+e//6]+1}]", "other"))
        if e + lag < 81:
            seq += wload(e + lag)
        if e + lag == o["xat"] and o["xtail"] and not o["ftouch"]:
            assert o["xat"] <= o["x2at"]
            seq += [salu(f"s_add_u32 m0, s29, {L_X + 1024}"), I("buffer_load_dword v0, s[8:11], 0 offen lds", "dma", rd=["v0"])]
        if e + lag >= o["x2at"] and (e + lag - o["x2at"]) % o["x2step"] == 0 and x2:
            seq += x2[:2]
            x2 = x2[2:]
        if e in o["tst"]:
            j = o["tst"].index(e)
            seq.append(I(f"buffer_store_dwordx4 v[12:15], v{vS4}, s[12:15], {('s24', 's59')[j % 2]} offen offset:{(j // 2) * 128} {o['stf']}", "store", rd=["v[12:15]"]))
        if s < 7:
            seq += pop(e, 1)
            seq.append(smf(1, s, t, pbuf(1, s)))
        if t == 0 and s < 8:
            seq += bread_to(0, s + 1, pbuf(0, s + 1))
        if t == 1 and s < 8:
            seq += bread_to(1, s + 1, pbuf(1, s + 1))
        seq += pop(e, 6)
        if e == 72 - lag:
            assert not any(i in build for _, i in queue)
    while queue:
        seq += pop(99, 9)
    if o["x2pre"] == 1:
        seq.append(I(f"s_cmp_lt_u32 s2, {NF}\n    s_cbranch_scc0 M_x4\n" + text(finalize(x2)) + "\nM_x4:", "other"))
    elif not o["x2pre"]:
        seq += x2
    if o["diag"] == 5:
        seq.append(I(f"s_memtime s[{SR5[15]}:{SR5[15]+1}]\n    s_waitcnt lgkmcnt(0)\n    s_mov_b32 s62, 16\n" + "\n".join(f"    v_writelane_b32 v255, s{SR5[q]}, {q}\n    v_writelane_b32 v255, s{SR5[q]}, {q+32}" for q in range(16)), "lgkm0"))
    elif o["diag"]:
        seq.append(I(stamp(o).strip(), "lgkm0"))
    seq.append(I(f"""s_cmp_gt_u32 s46, s80
    s_cbranch_scc1 M_slow
M_slowr0:""", "other"))
    seq.append(I(f"""s_cmp_eq_u32 s20, 0
    s_mov_b32 s31, {0x40000000 + L_MB + 8}
    s_cselect_b32 s30, {L_MB}, s31
    v_mov_b32 v{vAt}, s31
    v_writelane_b32 v{vAt}, s30, 0""", "other"))
    seq += sum(epilogue(0, ("s24", "s59"), o), [])
    seq += [salu("s_mov_b32 s89, 0"), salu(f"s_mov_b32 s101, {(768 + o['wth']) * SLOT}"), salu("s_mov_b32 s91, 0"), salu(f"s_mov_b32 s25, {SLOT}"),
            salu(f"s_add_u32 s90, s24, {bstride}"),
            salu(f"s_mov_b32 s28, s26"),
            salu("s_add_u32 s23, s24, 18432"),
            salu("s_cmp_lt_u32 s20, 2"),
            salu("s_cselect_b32 s66, s23, s24"),
            salu(f"s_cselect_b32 s99, s14, {HB}"),
            salu("s_add_u32 s66, s66, s95"),
            ]
    seq += [valu(f"v_add_u32 v{r}, {SLOT}, v{r}", [vr(r)], [vr(r)]) for r in (vRow, vB0, vB1)]
    A(text(finalize(seq, vm=True)))

    vers = [("L", o["win"], 0, False)] + [(f"E{j}", w_, 0, False) for j, (n_, w_) in enumerate(o["early"])]
    vers += ([("W", o["wwin"], 0, False)] if o["wwin"] else []) + ([("P", o["pwin"], 0, False)] if o["pn"] else []) + ([("Q", o["win"], 0, False)] if o["q"] else []) + [("F", o["fwin"], 0, True)]
    dispatch = f"s_cmp_lt_u32 s22, {XB}\n    s_cbranch_scc0 M_bF"
    if o["pn"]:
        dispatch += f"\n    s_cmp_ge_u32 s22, {(2048 - o['pn']) * SLOT}\n    s_cbranch_scc1 M_bP"
    if o["wwin"]:
        dispatch += "\n    s_cmp_eq_u32 s89, 0\n    s_cbranch_scc1 M_bE0\n    s_cmp_eq_u32 s89, 2\n    s_cbranch_scc1 M_bW"
    else:
        dispatch += "\n    s_cmp_eq_u32 s91, 1\n    s_cbranch_scc1 M_bE0" if o["e2"] else "".join(f"\n    s_cmp_lt_u32 s91, {n_}\n    s_cbranch_scc1 M_bE{j}" for j, (n_, w_) in enumerate(o["early"]))
    LPRE = []
    def version(vid, nm, wn, wns, final, resv=()):
        KS = [(0, 1, 2), (3, 4), (5, 6), (7, 8)]
        T9 = list(range(9))
        glist = [(1, KS[3], T9)] + [(0, ks, T9) for ks in KS]
        if final:
            glist += [(1, ks, [8, 0, 1, 2, 3]) for ks in KS] + [(1, ks, [4, 5, 6, 7]) for ks in KS]
        else:
            glist += [(1, ks, T9) for ks in KS[:3]]
        P = {k: o["f" + k] if final and o.get("f" + k) else o[k] for k in ("b0", "per", "e0", "slowat", "e1", "ov", "bar2", "gstep", "rstep")}
        b0, per = P["b0"], P["per"]
        glist = [(rb, ks, list(ts)) for rb, ks, ts in glist]
        cat = {}
        k = nxt = 0
        for rb, ks, ts in glist:
            fixed = set()
            for c in range(len(ts)):
                k += len(ks)
                if nxt < 9 and k >= b0 + per * (nxt + 1):
                    cat[k - 1] = (nxt, rb)
                    if o["cchain"] and tord[nxt] in ts and ts.index(tord[nxt]) not in fixed:
                        j = ts.index(tord[nxt])
                        ts[j], ts[c] = ts[c], ts[j]
                        fixed.add(c)
                    nxt += 1
        mains = []
        gstart = []
        for rb, ks, ts in glist:
            gstart.append(len(mains))
            mains += [smf(rb, s_, t, vBB + 8 * GBUF[s_]) for t in ts for s_ in ks]
        stream = []
        pos = {}
        cpos = {}
        for k in range(len(mains)):
            pos[k] = len(stream)
            stream.append(mains[k])
            if k in cat:
                nxt, rb = cat[k]
                stream.append(csmf(rb, tord[nxt]))
                cpos[nxt] = len(stream)
                stream.append(csmf(1 - rb, tord[nxt]))
        gp = Gaps(len(stream) + 40)
        gp.exact = o["exact"]
        for k in set(resv) - {c - 2 for c in cpos.values()}:
            gp.reserve(k)
        x = xch(o, "s66")
        top_reads = [x[0]]
        bar2 = I("s_barrier", "other", rd=[vr(vG, 4)])
        def greads(j):
            rb, ks, _ = glist[j % len(glist)]
            return sum([bread_to(rb, s_, vBB + 8 * GBUF[s_]) for s_ in ks], [])
        gp.chain(greads(1), 0, step=1)
        gp.nv[1] += [I(dispatch, "other"), I(f"M_b{nm}:", "label")]
        if final and o["nh"]:
            gp.nv[1] += [I(f"s_cmp_ge_u32 s24, {HB}\n    s_cbranch_scc1 M_bH", "other")]
        gp.res[1] += 2
        k = cpos[P["slowat"]]
        gp.nv[k] += [salu("s_cmp_gt_u32 s46, s80"), I("s_cbranch_scc1 M_slow", "other"), I(f"M_slowr{nm}:", "label")]
        gp.put(tread(tord[0]), 7)
        for t in range(9):
            gp.reserve(cpos[t] - 2)
            k = pos[b0] - 2 if t == 0 else cpos[t - 1] - 2
            kg = k + 2
            for j in range(4):
                k = gp.put(xad(j), k) + 1
            for j in range(4):
                kg = gp.put(gather(j), max(kg, k - 3 + j), 3)
                if j == (2 if o["exact"] else 0):
                    gp.put(aread(tord[t]), kg, 3)
                kg += P["gstep"] if j < 3 else 0
            if t < 8:
                gp.put(tread(tord[t + 1]), kg, 3)
        for j in range(1, len(glist) - (1 if final else 0)):
            r = greads(j + 1)
            if j == 4:
                hrel = r[4:]
                r = r[:4]
            if j == 8:
                gp.chain(r[4:], pos[gstart[6] + 4], 2, step=1)
                r = r[:4]
            if o["theta"] >= 0 and (j < 5 or not final):
                nxt_ = pos[gstart[j + 1] - 1] if j + 1 < len(glist) else pos[o["lastrd"]] + o["rlead"]
                gp.lds_chain(r, pos[gstart[j] - 1], nxt_ - o["rlead"], o["theta"], 2)
            else:
                gp.chain(r, pos[gstart[j] - 1], 2 if j < 5 or not final else 3, step=P["rstep"] if j < 5 or not final else 1)
        def win(lst):
            out = []
            for i in lst:
                if i.kind in ("store", "dma") and wn:
                    out.append(I("WIN", "wait"))
                out.append(i)
            return out
        gp.chain(win(x[1:]), o['xst'], 3)
        gp.put(bar2, P["bar2"])
        ovl = ov_gather()
        k = gp.put(ovl[0], pos[P["ov"][0]], 3)
        k = gp.chain(ovl[1:], max(k + 5, pos[P["ov"][1]]), 3)
        for u, g in enumerate(epilogue(1, ("s23", "s58"), o)):
            k = max(k, gp.chain(win(g), pos[P["e1"][u]], 3))
        k = max(k + 6, pos[P["ov"][2]])
        while gp.load(k) > 0:
            k += 1
        ovchk = [ov_call(nm)]
        gp.nv[k].append(ovchk[0])
        gp.res[k] += 2
        gp.chain(hrel, max(k + 1, pos[P["ov"][3]]), 2, step=1)
        atom = I(f"buffer_atomic_add v0, v{vAt}, s[16:19], s92 offen sc0 sc1", "store", rd=["v0", vr(vAt)])
        dyn = not final and not (o["estat"] and nm[0] == "E")
        if not final and not dyn:
            krf = gp.put(salu(f"s_add_u32 s88, s22, {bstride}"), 9)
        if dyn:
            if o["nh"]:
                gp.nv[2] += [salu(f"s_cmp_lt_u32 s22, {HB}"), salu("s_cselect_b32 s30, 1, 0")]
            gp.put(valu("v_mov_b32 v0, " + ("s30" if o["nh"] else "1"), [], ["v0"]), 3)
            gp.chain(win([atom]), pos[o["claim"][0]], 2)
        awt = I("s_waitcnt vmcnt(0)", "wait")
        mbw = I(f"ds_write_b32 v{vAt}, v0", "dsw", rd=["v0", vr(vAt)], wr=["@mb"])
        bar3 = I("s_barrier", "other", rd=["@mb"])
        sel10 = salu(f"s_cselect_b32 s10, {XB}, 0")
        if dyn: gp.chain([awt, valu("v_mul_u32_u24 v0, s94, v0", ["v0"], ["v0"]), valu("v_add_u32 v0, s93, v0", ["v0"], ["v0"]),
                  ] + ([] if o["nh"] else [valu(f"v_min_u32 v0, {XB}, v0", ["v0"], ["v0"])]) + [
                  mbw, valu(f"v_mov_b32 v0, {L_MB}", [], ["v0"])], pos[o["claim"][1]], 3)
        if dyn:
            k = gp.chain([bar3, ds_read("ds_read_b32", "v0", "v0")], pos[o["claim"][2]], 3)
            k = gp.put(valu("v_readfirstlane_b32 s88, v0", ["v0"], ["s88"]), k + 5)
            if o["nh"]:
                k = gp.chain([salu(f"s_add_u32 s30, s88, {HB}"), salu("s_lshr_b32 s30, s30, 1"), salu("s_min_u32 s88, s88, s30"), salu("s_min_u32 s88, s88, s14")], k + 1, 3) + 1
                while gp.load(k, sel10) > 2:
                    k += 1
                gp.nv[k] += [salu(f"s_cmp_lt_u32 s22, {HB}"), salu("s_cselect_b32 s88, s88, s14")]
            krf = k
        for u, g in sorted(enumerate(epilogue(0, ("s24", "s59"), o, init=not final)), key=lambda z: z[0] != 2):
            gp.chain(win(g), pos[P["e0"][u]], 3)
        d = xdma(o, "s28", "s22")[2 * n2:] + xdma(o, "s28", "s88")[:2 * n2]
        gp.put(salu(f"s_mov_b32 s21, {vid}"), 8)
        kd = 0
        for j in range(0 if final else 9):
            if j == 9 - n2:
                kd = max(kd, krf) + 1
                while gp.load(kd, sel10) > 2:
                    kd += 1
                gp.nv[kd] += [salu("s_cmp_lt_u32 s88, s99"), sel10]
                if o["q"] and nm in "LQ":
                    kd += 1
                    while gp.load(kd) > 0:
                        kd += 1
                    gp.nv[kd] += [I("s_cmp_lt_u32 s88, s14\n    s_cbranch_scc0 M_q", "other"), I("M_q:" if nm == "Q" else "M_nq:", "label")]
                    gp.res[kd] += 2
            k = gp.put(d[2 * j], max(kd + 1, pos[o["pdma" if nm == "P" and o["pdma"] else "dma"][j]]), 2)
            kd = gp.chain(win([d[2 * j + 1]]), k if wn and o["exact"] else k + 1, 3)
        book = [salu(f"s_add_u32 s28, s28, {SLOT}"),
                salu(f"s_cmp_ge_u32 s28, {NSLOT*SLOT}"),
                salu(f"s_cselect_b32 s28, s26, s28"),
                salu(f"s_add_u32 s30, s25, {SLOT}"),
                salu(f"s_cmp_eq_u32 s30, {NSLOT*SLOT}"),
                salu(f"s_cselect_b32 s30, 0, s30"),
                salu(f"s_sub_u32 s31, s30, s25"),
                salu(f"s_mov_b32 s25, s30"),
                salu("s_mov_b32 s90, s22"),
                salu("s_mov_b32 s22, s88"),
                salu("s_add_u32 s91, s91, 1")] + ([
                salu(f"s_cmp_ge_u32 s91, {o['early'][0][0]}"),
                salu("s_cselect_b32 s89, 1, 0"),
                salu(f"s_cmp_ge_u32 s91, {o['wfrom']}"),
                salu("s_cselect_b32 s30, s101, -1"),
                salu("s_cmp_gt_u32 s88, s30"),
                salu("s_addc_u32 s89, s89, 0"),
                salu(f"s_add_u32 s101, s101, {256*SLOT}")] if o["wwin"] else []) + [
                salu("s_cmp_lt_u32 s20, 2"),
                salu("s_cselect_b32 s66, s23, s24"),
                salu("s_add_u32 s66, s66, s95")]
        if final:
            book = book[-3:] + [salu("s_add_u32 s23, s24, 18432"), salu("s_add_u32 s58, s24, 27648"), salu("s_add_u32 s67, s23, s95")]
            fl = o["fl"]
            xa, xb = xch(o, "s66", vT), xch(o, "s67", vT, 1024)
            barx = [I("s_barrier", "other", rd=["@x0"]), I("s_barrier", "other", rd=["@x2"])]
            k = gp.chain([barx[0], xa[0]], pos[fl[0]], 3)
            gp.put(xa[1], k + 6)
            ep = epilogue(1, ("s23", "s58"), o, init=False, xoff=1024)
            k = gp.chain(ep[2], pos[fl[1]], 3)
            k = gp.chain([barx[1], xb[0]], k + 4, 3)
            k += 6
            while gp.load(k) > 0:
                k += 1
            gp.nv[k] += [salu("s_cmp_lt_u32 s20, 2"), I("s_cbranch_scc0 M_fx", "other", rd=[vr(vT, 4)]), xb[1], I("M_fx:", "label")]
            gp.chain(ep[0], pos[fl[2]], 3)
            gp.chain(ep[1], pos[fl[3]], 3)
        kb = gp.chain(book, pos[o["fbook" if final else "book"]], 3)
        if not final: k = gp.chain([valu(f"v_add_u32 v{r}, s31, v{r}", [vr(r)], [vr(r)]) for r in (vRow, vB0, vB1)], max(kb + 1, pos[152]))
        body = []
        for k in range(len(stream) + 40):
            if k < len(stream):
                body.append(stream[k])
            else:
                assert final or not gp.gap(k)
            body += gp.gap(k)
        for j, i in enumerate([i for i in body if i.text == "WIN"]):
            i.text = f"s_waitcnt vmcnt({(wn * (j + 1)) // 10 - (wn * j) // 10 - 1})"
        if final:
            wr23 = body.index(book[3])
            assert all((j < wr23) == (i not in ep[0] + ep[1]) for j, i in enumerate(body) if i.kind == "store" and ("s23" in i.text or "s58" in i.text))
            assert body.index(book[2]) < body.index(xa[1]) and body.index(book[5]) < body.index(xb[1]) and body.index(x[1]) < body.index(book[1])
            assert max(j for j, i in enumerate(body) if "read2st64" in i.text) < body.index(xa[0]) and body.index(xa[1]) < body.index(xb[0])
            assert all(j < body.index(barx[0]) for j, i in enumerate(body) if i.kind == "dsw" and ("@", "@x2") not in i.wr)
        for r in (vRow, vB0, vB1) if not final else ():
            w = [j for j, i in enumerate(body) if ("v", r) in i.wr]
            u = [j for j, i in enumerate(body) if ("v", r) in i.rd]
            assert len(w) == 1 and max(u) == w[0], r
        for rb in range(2):
            for t in range(9):
                RR = regs(vr(vACC[rb] + 4 * t, 4))
                ev = "".join("I" if i.kind == "ds" else "M" if i.kind == "mfma" else "E" for i in body if (i.rd | i.wr) & RR and i.kind != "other")
                assert re.fullmatch("M{10}E+I?" if rb == 0 else "MME+IM{10}E+" if final else "MME+IM{8}", ev), (rb, t, ev)
        sl = [j for j, i in enumerate(body) if "M_slowr" in i.text][0]
        assert all(j < sl for j, i in enumerate(body) if i.kind == "ds" and i.wr & regs(vr(vACC[1], 36)))
        assert all(j > sl for j, i in enumerate(body) if i.kind == "valu" and i.rd & regs(vr(vACC[0], 36)))
        assert body[sl - 3] is stream[cpos[P["slowat"]]]
        dm = [j for j, i in enumerate(body) if i.kind == "dma"]
        lastdma = dm[8 - n2] if dm else 0
        if dm:
            assert [body[j] for j in dm] == d[1::2]
            assert lastdma < body.index(sel10) < dm[9 - n2] and body.index(d[2 * (9 - n2)]) < body.index(book[0])
            assert lastdma < body.index(book[8]) and body.index(sel10) < body.index(book[9])
            assert not dyn or body.index(mbw) < body.index(bar3)
            if dyn:
                ev = [i.text.split()[0] for i in body if ("v", 0) in i.rd | i.wr or i is awt]
                assert ev[:4] == ["v_mov_b32", "buffer_atomic_add", "s_waitcnt", "v_mul_u32_u24"] and ev[-4:] == ["ds_write_b32", "v_mov_b32", "ds_read_b32", "v_readfirstlane_b32"], ev
            for j in range(9):
                assert body.index(d[2 * j]) < dm[j] and (j == 0 or body.index(d[2 * j]) > dm[j - 1])
        hw = [j for j, i in enumerate(body) if i.kind == "ds" and "read_b" in i.text and i.wr & regs(vr(H, 8))]
        hm = [j for j, i in enumerate(body) if i.kind == "mfma" and i.rd & regs(vr(H, 8))]
        assert hm[8] < hw[2] and body.index(ovchk[-1]) < hw[3]
        assert all(j < body.index(ovchk[0]) for j, i in enumerate(body) if i.kind == "ds" and i.wr & regs(vr(vACC[1], 36)))
        assert all(j > body.index(bar2) for j, i in enumerate(body) if i.kind == "dsw")
        assert body.index(x[1]) < min(j for j, i in enumerate(body) if "read2st64" in i.text)
        for j, i in enumerate(body):
            if ("cselect" in i.text or "s_cbranch_scc" in i.text or "s_addc" in i.text) and "\n" not in i.text:
                p = max(q for q in range(j) if (body[q].kind == "salu" and "s_mov" not in body[q].text) or "\n" in body[q].text)
                assert body[p].text.startswith("s_cmp") and "\n" not in body[p].text, (i.text, body[p].text)
        isvm = lambda i: i.kind in ("dma", "store")
        if dyn: awt.text = f"s_waitcnt vmcnt({sum(isvm(i) for i in body[body.index(atom) + 1:body.index(awt)])})"
        nstrict = sum(isvm(i) for i in body[lastdma + 1:])
        if nm == "Q":
            c = [j for j, i in enumerate(body) if i.text == "M_q:"][0]
            assert sl > c or True
            body = body[:c] + [i for i in body[c:] if i not in d and not (i.kind == "wait" and "vmcnt" in i.text)]
            nstrict -= n2
            if o["qplain"]:
                for i in body[c:]:
                    if i.kind == "store":
                        i.text = i.text.replace(" sc1", "")
        if final and o["fplain"]:
            st = [i for i in body if i.kind == "store"]
            for i in st[:o["fplain"]]:
                i.text = i.text.replace(" sc1", "")
            if o["wb"]:
                j = body.index(st[o["wb"][0]])
                body.insert(j + 1, I(f"s_add_u32 s30, s24, s28\n    s_sub_u32 s30, s30, {(2048 - o['wb'][1]) * SLOT}\n    s_cmp_lt_u32 s30, {o['wb'][2] * SLOT}\n    s_cbranch_scc0 M_nwb\n    buffer_wbl2 sc1\nM_nwb:", "other"))
                body.insert(body.index(st[0]) + 1, salu("s_lshl_b32 s28, s20, 28"))
        if nm == "E0" and x2n > n2:
            for j in range(x2n - n2):
                q_ = body.index(d[2 * j + 1])
                w_ = max(z for z in range(q_) if body[z].kind == "wait" and "vmcnt" in body[z].text and body[z] is not awt)
                body = [i for z, i in enumerate(body) if z not in (q_, w_) and i is not d[2 * j]]
            if dyn:
                awt.text = f"s_waitcnt vmcnt({sum(isvm(i) for i in body[body.index(atom) + 1:body.index(awt)])})"
        seq = []
        seq.append(I("M_top:", "label"))
        if o["diag"] == 3:
            seq.append(I(stamp(o).strip(), "other"))
        seq.append(I("M_top1:", "label"))
        if o["diag"]:
            seq.append(I(stamp(o).strip(), "other"))
        seq.append(salu(f"s_add_u32 s23, s24, 18432"))
        seq.append(salu(f"s_add_u32 s58, s24, 27648"))
        seq.append(salu(f"s_mov_b32 s24, s90"))
        seq.append(salu(f"s_add_u32 s59, s90, 9216"))
        seq.append(I(f"s_waitcnt lgkmcnt(0)", "lgkm0"))
        seq.append(I("s_barrier", "other"))
        if o["diag"] == 3:
            seq.append(I(stamp(o).strip(), "other"))
        seq += top_reads
        seq += body
        if not final:
            seq.append(I(f"s_waitcnt vmcnt({nstrict})", "wait"))
            seq.append(I("s_branch M_top1", "other"))
        if o["diag"] == 4 and final:
            seq2, nm_, on = [], 0, False
            sr = list(range(32, 44, 2)) + [48, 50, 52, 60, 64, 98, 90, 88, 92, 96, 84, 86, 8, 10, 4, 6, 68, 70]
            st_ = o["dstep"]
            for i in seq:
                on = on or i.text == "M_bF:"
                if on and i.kind == "mfma":
                    if nm_ % st_ == 0:
                        seq2.append(i); seq2.append(I(f"s_memtime s[{sr[nm_//st_]}:{sr[nm_//st_]+1}]", "other")); nm_ += 1
                        continue
                    nm_ += 1
                seq2.append(i)
            j = (nm_ + st_ - 1) // st_
            seq2.append(I(f"s_memtime s[{sr[j]}:{sr[j]+1}]\n    s_waitcnt lgkmcnt(0)\n    v_mov_b32 v255, 0\n    s_mov_b32 s62, {j+1}\n" + "\n".join(f"    v_writelane_b32 v255, s{sr[q]}, {q}\n    v_writelane_b32 v255, s{sr[q]}, {q+32}" for q in range(j + 1)), "other"))
            seq = seq2
        out = finalize(seq, hoist=o["exact"])
        if o["exact"]:
            k, found = -1, set()
            for i in out:
                k += i.kind == "mfma"
                if i.kind == "wait" and "lgkm" in i.text and k >= 2:
                    found.add(k)
            if not found <= set(resv) and len(resv) < o["maxres"]:
                return version(vid, nm, wn, wns, final, tuple(found | set(resv)))
        COST[nm] = gap_cost(out)
        if o["cost"]:
            print(nm, "modelled loss", COST[nm], "reserved", len(resv), file=sys.stderr)
        cut = [j for j, i in enumerate(out) if i.text == f"M_b{nm}:"][0]
        if nm == "Q":
            c = [j for j, i in enumerate(out) if i.text == "M_q:"][0]
            norm = lambda l: re.sub(r"s_mov_b32 s21, \d+|(?<=M_ovr)[LQ]|(?<=M_slowr)[LQ]", "", text(l))
            assert norm(out[cut + 1:c]) == norm(LPRE[0])
            return out[:cut], out[c:c + 1] + [salu(f"s_mov_b32 s21, {vid}")] + out[c + 1:], nstrict
        if nm == "L" and o["q"]:
            LPRE.append(out[cut + 1:[j for j, i in enumerate(out) if i.text == "M_nq:"][0]])
        return out[:cut], out[cut:], nstrict
    def half(vid):
        TA, TB = [8, 0, 1, 2, 3], [4, 5, 6, 7]
        glist = [(1, {7: 3, 8: 4}, list(range(9))), (0, {0: 0, 1: 1, 2: 2}, TA), (0, {3: 3, 4: 4}, TA), (0, {5: 0, 6: 1}, TA), (0, {7: 3, 8: 4}, TA),
                 (0, {0: 0, 1: 1}, TB), (0, {2: 3, 3: 4}, TB), (0, {4: 0, 5: 1}, TB), (0, {6: 3, 7: 4, 8: 2}, TB)]
        b0, per, hp = o["hb0"], o["hper"], o["hp"]
        to = [8, 0, 1, 2, 3, 4, 5, 6, 7]
        stream, pos, cpos, gstart, nxt, k = [], {}, {}, [], 0, 0
        for rb, kb_, ts in glist:
            gstart.append(k)
            for t in ts:
                for s_, b_ in kb_.items():
                    pos[k] = len(stream)
                    stream.append(smf(rb, s_, t, vBB + 8 * b_))
                    k += 1
                if nxt < 9 and k >= b0 + per * (nxt + 1):
                    cpos[nxt] = len(stream)
                    stream.append(csmf(0, to[nxt]))
                    nxt += 1
        assert nxt == 9
        gp = Gaps(len(stream) + 60)
        greads = lambda j: sum([bread_to(glist[j][0], s_, vBB + 8 * b_) for s_, b_ in glist[j][1].items()], [])
        x = xch(o, "s66")
        gp.chain(greads(1), 0, step=1)
        gp.nv[1] += [I(dispatch, "other"), I("M_bH:", "label")]
        gp.res[1] += 2
        gp.put(tread(to[0]), 2)
        gp.put(x[1], 5)
        gp.put(salu(f"s_mov_b32 s21, {vid}"), 6)
        slow = I("s_cbranch_scc1 M_slow", "other")
        gp.nv[cpos[hp[0]]] += [salu("s_cmp_gt_u32 s46, s80"), slow, I("M_slowrH:", "label")]
        for t in range(9):
            gp.reserve(cpos[t] - 1)
            k = pos[b0] - 1 if t == 0 else cpos[t - 1] - 1
            kg = k + 1
            for j in range(4):
                k = gp.put(xad(j), k) + 1
                kg = gp.put(ds_read("ds_read_b32", vr(vG + 2 * j), vr(vT + j)), max(kg, k), 3)
                if j == 0:
                    gp.put(aread(to[t]), kg, 3)
            if t < 8:
                gp.put(tread(to[t + 1]), kg, 3)
        for j in range(1, len(glist) - 1):
            gp.chain(greads(j + 1)[:4], pos[gstart[j] - 1], 3, step=1)
        bar2 = I("s_barrier", "other", rd=[vr(vG, 4)])
        gp.put(bar2, 6)
        ovl = ov_gather()
        k = gp.put(ovl[0], pos[33], 3)
        k = gp.chain(ovl[1:], k + 5, 3) + 5
        e1 = epilogue(1, ("s23", "s58"), o, init=False)
        for u in (2, 0, 1):
            k = max(k, gp.chain(e1[u], pos[hp[1 + u]], 3) + 1)
        while gp.load(k) > 1 or gp.v[k] is not None:
            k += 1
        call = ov_call("H")
        gp.nv[k].append(call)
        gp.res[k] += 2
        gp.chain(greads(8)[4:], k + 1, 3, step=1)
        book = [salu("s_cmp_lt_u32 s20, 2"), salu("s_cselect_b32 s66, s23, s24"), salu("s_add_u32 s66, s66, s95")]
        gp.nv[7] = book + gp.nv[7]
        e0 = epilogue(0, ("s24", "s59"), o, init=False)
        k0 = max(k + 5, cpos[hp[0]] + 1, pos[hp[4]])
        k = gp.chain(e0[2], k0, 3)
        xa = xch(o, "s66", vACC[1])
        barx = I("s_barrier", "other", rd=["@x0"])
        k = gp.chain([barx, xa[0]], k + 4, 3)
        gp.put(xa[1], k + 6)
        k = gp.chain(e0[0], k0, 3)
        gp.chain(e0[1], max(k + 1, len(stream) - 3), 3)
        body = []
        for k in range(len(stream) + 60):
            body += ([stream[k]] if k < len(stream) else []) + gp.gap(k)
        for rb in range(2):
            for t in range(9):
                RR = regs(vr(vACC[rb] + 4 * t, 4))
                ev = "".join("I" if i.kind == "ds" else "M" if i.kind == "mfma" else "E" for i in body if (i.rd | i.wr) & RR and i.kind != "other")
                assert re.fullmatch("M{10}E+" if rb == 0 else "MME+(IE)?", ev), (rb, t, ev)
        ix = lambda l: [body.index(i) for i in l]
        for c in (slow, call):
            assert max(ix(sum(e1, []))) < body.index(c) < min(ix(sum(e0, []) + xa))
        hw = [j for j, i in enumerate(body) if i.kind == "ds" and "read_b" in i.text and i.wr & regs(vr(H, 8))]
        hm = [j for j, i in enumerate(body) if i.kind == "mfma" and i.rd & regs(vr(H, 8))]
        assert hm[4] < hw[2] and body.index(call) < hw[3] and hw[4] < hm[5]
        assert body.index(x[1]) < body.index(book[1]) and body.index(x[1]) < min(j for j, i in enumerate(body) if "read_b32" in i.text)
        assert all(body.index(bar2) < j < body.index(barx) for j, i in enumerate(body) if i.kind == "dsw")
        out = finalize([I("s_waitcnt lgkmcnt(0)", "lgkm0"), x[0]] + body + [I("s_branch M_done", "other")])
        COST["H"] = gap_cost(out)
        if o["cost"]:
            print("H modelled loss", COST["H"], file=sys.stderr)
        cut = [j for j, i in enumerate(out) if i.text == "M_bH:"][0]
        return out[:cut], out[cut:]
    built = [version(j + 1, *v) for j, v in enumerate(vers)]
    assert all(text(h[3:]) == text(built[0][0][3:]) for h, _, _ in built)
    A(text(built[0][0]))
    for _, bd, _ in built[:-1]:
        A(text(bd))
    if o["nh"]:
        vers.append(("H",))
        hh, hb = half(len(vers))
        assert text(built[0][0]).endswith(text(hh[1:]))
        A(text(hb))
    A(text(built[-1][1]))
    A("M_done:")
    A(stamp(o))
    A(stamp_out(o))
    A("M_end:\n    s_endpgm")
    if o["pp"]:
        A("M_pf_pp:")
        for a_, b_ in [(vG + 4, vG + 7), (vG + 7, vG + 4)] * o["pp"]:
            A(f"""{poll(o, a_)}
    s_waitcnt vmcnt(1)
    v_readfirstlane_b32 s30, v{b_}
    s_nop 0
    s_sub_u32 s30, s30, s100
    s_cmp_eq_u32 s30, {NARR}
    s_cbranch_scc1 M_pf_ok""")
    A(spin_out(o, "M_pf", "s100", NARR, "s96"))
    A("M_r3:")
    A(text(finalize(rank(2) + place(2))))
    A("""    s_cmp_gt_u32 s38, s39
    s_cselect_b32 s32, 1, s32
    s_branch M_r3r""")
    A("M_dn:\n    s_mov_b32 s27, 0\n    s_mov_b32 s46, 0x80000000")
    for j in range(4):
        A(f"    v_mov_b32 v{vG+j}, 0")
    for t in range(9):
        A(f"    ds_write_b128 v{vTA}, {vr(vG,4)} offset:{t*1024}")
    A("    s_waitcnt lgkmcnt(0)\n    s_branch M_dnr")
    def ret(lab, lab0):
        return "".join(f"    s_cmp_eq_u32 s21, {j+1}\n    s_cbranch_scc1 {lab}{v[0]}\n" for j, v in enumerate(vers) if any(f"{lab}{v[0]}:" in x for x in L)) + f"    s_branch {lab0}"
    def ovtile(t, E, G, a):
        return f"""    v_lshrrev_b32 v{a}, 18, v{E}
    v_lshrrev_b32 v{a+1}, 18, v{E+2}
    v_or_b32 v{vA+1}, {t << 6}, v{vA}
    v_cmp_eq_u32 s[44:45], v{a}, v{vA+1}
    v_cmp_eq_u32 s[54:55], v{a+1}, v{vA+1}
    s_nop 0
    v_cndmask_b32 v{a}, 0, v{E+1}, s[44:45]
    v_cndmask_b32 v{a+1}, 0, v{E+3}, s[54:55]
    s_nop 1
    v_smfmac_f32_16x16x32_bf16 {vr(vACC[0]+4*t,4)}, {vr(a,2)}, {vr(G,4)}, v{vCI}
    v_smfmac_f32_16x16x32_bf16 {vr(vACC[1]+4*t,4)}, {vr(a,2)}, {vr(G,4)}, v{vCI} abid:2"""
    for kind, j in (("c", 0), ("l", 0), ("c", 1), ("l", 1), ("l", 2)):
        A(f"M_ov{kind}{j}:")
        for t in range(9):
            A(f"""    v_smfmac_f32_16x16x32_bf16 {vr(vACC[0]+4*t,4)}, {vr(vOV[j],2)}, {vr(H,4)}, v{vCI}
    v_smfmac_f32_16x16x32_bf16 {vr(vACC[1]+4*t,4)}, {vr(vOV[j],2)}, {vr(H,4)}, v{vCI} abid:2
    s_setpc_b64 {f"s[{74+2*j}:{75+2*j}]" if kind == "c" else "s[78:79]"}""")
    A("M_ovn:\n    s_setpc_b64 s[78:79]")
    G = vG
    A(f"""M_slow:
    s_bitcmp1_b32 s46, 31
    s_cbranch_scc1 M_dense
    s_mov_b32 s56, s80
M_sl:
    s_lshl_b32 s57, s56, 6
    v_add_u32 v{vA}, s57, v{vTQ}
    ds_read_b128 {vr(G+4,4)}, v{vA} offset:{L_OVL}
    s_waitcnt lgkmcnt(0)
    v_and_b32 v{vA}, 0x3fff, v{G+4}
    v_and_b32 v{vA+1}, 0x3fff, v{G+6}
    v_xad_u32 v{vA}, v{vA}, v{vXor}, v{vRow}
    v_xad_u32 v{vA+1}, v{vA+1}, v{vXor}, v{vRow}
    ds_read2st64_b32 {vr(G,2)}, v{vA} offset0:0 offset1:72
    ds_read2st64_b32 {vr(G+2,2)}, v{vA+1} offset0:0 offset1:72
    v_subrev_u32 v{vA}, s29, v{vTA}
    v_bfe_u32 v{vA}, v{vA}, 4, 4
    s_waitcnt lgkmcnt(0)""")
    for t in range(9):
        A(f"""    s_bitcmp1_b32 s27, {t}
    s_cbranch_scc0 M_sle{t}
{ovtile(t, G + 4, G, vA + 2)}
M_sle{t}:""")
    A(f"""    s_add_u32 s56, s56, 1
    s_cmp_lt_u32 s56, s46
    s_cbranch_scc1 M_sl
M_slx:
    s_nop 7
{ret("M_slowr", "M_slowr0")}
M_dense:""")
    for rb in range(2):
        A(f"""    s_mul_i32 s57, s20, {81*1024}
    s_add_u32 s57, s57, {EFB}
    s_mov_b32 s56, 0
    v_mov_b32 v54, v{vB0}
    v_mov_b32 v55, v{vB1}
    v_subrev_u32 v252, s29, v{vTA}
M_dn{rb}:
    ds_read_b128 {vr(G,4)}, v54 offset:{rb*18432}
    ds_read_b128 {vr(G+4,4)}, v55 offset:{rb*18432}
    v_add_u32 v54, 1024, v54
    v_add_u32 v55, 1024, v55""")
        for t in range(9):
            A(f"""    buffer_load_dwordx4 {vr(vA,4)}, v252, s[16:19], s57 offen sc1
    s_add_u32 s57, s57, 1024
    s_waitcnt vmcnt(0) lgkmcnt(0)
    v_smfmac_f32_16x16x64_bf16 {vr(vACC[rb]+4*t,4)}, {vr(vA,4)}, {vr(G,8)}, v{vCI}""")
        A(f"""    s_add_u32 s56, s56, 1
    s_cmp_lt_u32 s56, 9
    s_cbranch_scc1 M_dn{rb}""")
    A("    s_branch M_slx")
    A("M_codeend:")
    return "\n".join(L)

def gen(**kw):
    o = dict(DEF)
    o.update(kw)
    hdr = f"""; out = x @ prune_2of4(w) + b   (bf16, M=65536 K=576 N=576); generated by dev/gen6.py
; @launch grid=(256,1,1) block=(256,1,1) lds={LDS_BYTES}
.amdgcn_target "amdgcn-amd-amdhsa--gfx950"
.text
.globl {NAME}_kernel
"""
    kd = f"""
.section .rodata,"a"
.p2align 6
.amdhsa_kernel {NAME}_kernel
  .amdhsa_next_free_vgpr 512
  .amdhsa_next_free_sgpr 102
  .amdhsa_accum_offset 256
  .amdhsa_group_segment_fixed_size 0
  .amdhsa_kernarg_size 48
  .amdhsa_user_sgpr_count 2
  .amdhsa_user_sgpr_kernarg_segment_ptr 1
  .amdhsa_system_sgpr_workgroup_id_x 1
  .amdhsa_float_denorm_mode_32 3
.end_amdhsa_kernel
"""
    src = hdr + gen_main(o) + kd
    return "\n".join(l for l in src.split("\n") if l.strip()) + "\n"

if __name__ == "__main__":
    kw = {}
    out = f"/code/{NAME}.s"
    for a in sys.argv[1:]:
        if "=" in a:
            k, v = a.split("=", 1)
            assert k in DEF, k
            kw[k] = int(v) if v.lstrip("-").isdigit() else (eval(v) if v.startswith("[") else v.replace("+", " "))
        else:
            out = a
    open(out, "w").write(gen(**kw))
    print("wrote", out)
```

```python
import sys
from asmlib import *

NAME = "standalone__structured_sparse_n_m__ragged"
XB = 16 * 4096 * 576 * 2
WSB = 301989888
WSTR = 96 * 1024
U_REC, U_I8 = 0, 4
RA, RB = 176, 96
def u_idx(s): return 6 + 10 * s
def u_frag(s, t): return 7 + 10 * s + t
EFB = 4 * WSTR
CTR = EFB + 324 * 1024
SIG = CTR + 1024
WS_USED = SIG + 256 * 256
NF = 81
NARR = 27
CNT_F = 0
SLOT = 36864
NSLOT = 3
LTAB = NSLOT * SLOT
L_T0, L_OVL, L_CNT, L_BIAS, L_X = 9216, 9792, 10112, 10240, 10816
LTABW = L_X + 2048
L_MB = LTAB + 4 * LTABW
LDS_BYTES = L_MB + 16
RAW = 2 * SLOT
R_CNT = RAW + 8192
MDUM = 1 << 30
SPIN = 1 << 17

DEF = dict(xnt="nt", stf="sc1", inter=1, diag=0, nA=2, nF=2, lag=28, ecor=36, cper=5,
           gstep=1, book=132, b0=24, per=12, tord=[3, 1, 2, 0, 8, 7, 5, 6, 4], e1=[10, 44, 36], e0=[106, 137, 102],
           dma=[14, 38, 48, 74, 86, 102, 114, 138, 146], nostore=0, wsc="sc1", chain=1, win=70, rstep=1, slowat=5,
           bar2=21, claim=[8, 72, 84], touch=24, ctouch=2, xtail=16, pw=3, nfast=6, testfb=0, ov=[46, 58, 70, 91], pf="atom", slp=4, R=16, xwin=0, fx=3, fx2=0, fxb=0, dstep=9, cearly=1, sgap=0, e2=1, x2n=0, x2step=2, pp=0, blate=1, fpre=0, tpos=12, qplain=0, fplain=0, wb=[], ftouch=0, ftn=81, q=1, nh=0, hb0=8, hper=9, hp=[6, 10, 30, 22, 66], estat=0, fe1=0, fov=0, fbar2=0, fgstep=0, frstep=0, exact=0, maxres=30, cost=0, cchain=1, align=1, toob=1, pn=0, pwin=0, pdma=[], xw=[20, 34, 48, 62, 78, 94, 108, 122, 136], wwin=0, wth=160, wfrom=1, theta=16, rlead=9, lastrd=150, xa=5, tst=[], exp=0, xfull=0, xat=81, early=[(2, 65)], fwin=0, xA=0, n2=4, x2at=88, nsh=2, xst=6, x2pre=0, stail=0, sfull=0, sdist=[2, 2, 2, 2, 2, 2, 2, 1, 17], fb0=22, fper=11, fe0=[100, 124, 104], fslowat=5, fbook=84, fl=[116, 140, 147, 179])

DIAG = 1 << 20
def stamp(o, first=False, cond=False):
    if not o["diag"]:
        return ""
    if cond:
        return "    s_cmp_lg_u32 s21, 1\n    s_cbranch_scc1 D_c\n" + stamp(o) + "\n" + stamp(o) + "\nD_c:"
    L = []
    if first:
        L += ["    s_mov_b32 s62, 0", "    v_mov_b32 v255, 0"]
    L += ["    s_mov_b32 s63, m0", "    s_memrealtime s[60:61]", "    s_memtime s[64:65]", "    s_waitcnt lgkmcnt(0)", "    s_mov_b32 m0, s62", "    v_writelane_b32 v255, s60, m0",
          "    s_add_u32 m0, s62, 32", "    v_writelane_b32 v255, s64, m0", "    s_add_u32 s62, s62, 1", "    s_mov_b32 m0, s63"]
    return "\n".join(L)
def stamp_out(o):
    if not o["diag"]:
        return ""
    L = ["    s_mov_b64 exec, -1", "    s_waitcnt vmcnt(0)", stamp(o), f"    s_mov_b32 s18, {WSB}",
         "    s_lshl_b32 s60, s2, 2", "    s_add_u32 s60, s60, s20", "    s_lshl_b32 s60, s60, 8", f"    s_add_u32 s60, s60, {DIAG}",
         "    v_mbcnt_lo_u32_b32 v0, -1, 0", "    v_mbcnt_hi_u32_b32 v0, -1, v0", "    v_lshlrev_b32 v0, 2, v0",
         "    buffer_store_dword v255, v0, s[16:19], s60 offen"]
    return "\n".join(L)

def lut_tables():
    l64 = 0
    l32 = 0
    for nk in range(16):
        keep = [j for j in range(4) if not (nk >> j) & 1]
        e = 0
        if len(keep) >= 2:
            ia, ib = keep[-2], keep[-1]
            for j in keep[:-2]:
                assert j < 2
                e |= 1 << j
        elif len(keep) == 1:
            ib = keep[0]
            ia = (ib + 1) % 4
            if ia > ib:
                ia, ib = ib, ia
        else:
            ia, ib = 0, 1
        l64 |= (ia | ib << 2) << (4 * nk)
        l32 |= e << (2 * nk)
    return l64, l32

vB0, vB1, vXor, vRow, vDma, vS4, vS2, vTA, vTQ, vCI, vL16 = range(1, 12)
vIDX = 12
vXw, vL8, vD1 = 53, 54, 55
vD0 = 121
vR = 92
vAt = vL16
vWF = 56
vACC = (124, 160)
vBB = 196
vT, vA, vG = 236, 240, 244
vOV = (54, 252, 254)
L_OVT = L_OVL + 264
GROUPS = [(0, (0, 1, 2)), (0, (3, 4)), (0, (5, 6)), (0, (7, 8)), (1, (0, 1, 2)), (1, (3, 4)), (1, (5, 6)), (1, (7, 8))]
GBUF = {0: 0, 1: 1, 2: 2, 3: 3, 4: 4, 5: 0, 6: 1, 7: 3, 8: 4}

def slot_luts():
    lt = ll = 0
    for p in range(16):
        r = p if p < 8 else 15 - p
        qb = 2 * (r >> 2) + (p >> 3)
        jj = r & 3
        lt |= (qb * 4 + jj) << (4 * p)
        ll |= (((jj // 2) * 2 + qb // 2) * 4 + (qb % 2) * 2 + jj % 2) << (4 * p)
    return lt, ll

def poll(o, v):
    if o["pf"] != "atom":
        return f"    buffer_load_dword v{v}, off, s[16:19], s96 {o['pf']}"
    return f"""    v_mov_b32 v{v}, 0
    s_mov_b64 exec, 1
    buffer_atomic_add v{v}, off, s[16:19], s96 sc0 sc1
    s_mov_b64 exec, -1"""

def kwait(o, first=""):
    return f"""    s_waitcnt lgkmcnt(0)
    s_mov_b64 s[4:5], s[74:75]
{first}
    s_mov_b64 s[16:17], s[82:83]
    s_mov_b64 s[8:9], s[72:73]
    s_mov_b64 s[84:85], s[76:77]
    s_mov_b64 s[68:69], s[80:81]
    ; what the arrival counter this wave will poll holds before this launch adds to it
{poll(o, vCI)}"""

def stail(o):
    c = o["stail"]
    if not c:
        return ""
    J = 9 * c
    mg = ((1 << 20) + J - 1) // J
    assert all((e * mg) >> 20 == e // J for e in range(700)) and 5 * J <= 700
    return f"""    s_mul_i32 s30, s20, {256 - NF}
    s_add_u32 s30, s30, s2
    s_sub_u32 s30, s30, {NF}
    s_min_u32 s30, s30, {5*J - 1}
    s_mul_i32 s31, s30, {mg}
    s_lshr_b32 s31, s31, 20                   ; row r holds line r-1 in its first c*r columns, then line 8-r
    s_mul_i32 s32, s31, {J}
    s_sub_u32 s30, s30, s32
    s_mul_i32 s32, s31, {c}
    s_sub_u32 s33, s30, s32
    s_sub_u32 s34, s31, 1
    s_sub_u32 s31, 8, s31
    s_cmp_lt_u32 s30, s32
    s_cselect_b32 s30, s30, s33
    s_cselect_b32 s31, s34, s31
    s_sub_u32 s30, {2047 - o["sfull"]}, s30
    s_mul_i32 s30, s30, {SLOT}
    s_lshl_b32 s31, s31, 7
    s_add_u32 s33, s30, s31"""

def biasloads():
    return "\n".join([f"    buffer_load_dwordx4 {vr(vBB+4*u,4)}, v25, s[84:87], s28 offen offset:{u*64}" for u in range(4)]
                     + [f"    buffer_load_dwordx2 {vr(vBB+16,2)}, v26, s[84:87], s97 offen offset:1024"])

def fsetup(o, l64):
    l = f"""    s_lshl_b32 s34, s31, 2
    s_add_u32 s34, s34, s20
    s_lshr_b32 s35, s20, 1
    s_lshl_b32 s35, s35, 6
    s_and_b32 s36, s20, 1
    s_lshl_b32 s36, s36, 3
    s_add_u32 s35, s35, s36
    s_lshl_b32 s36, s20, 5
    s_mul_i32 s39, s32, 10240
    s_add_u32 s39, s39, {u_idx(0)*1024}
    s_lshl_b32 s40, s34, 1
    s_add_u32 s40, s40, s39
    s_lshl_b32 s38, s32, 1
    s_cmp_eq_u32 s32, 8
    s_cselect_b32 s38, 1024, s38
    s_add_u32 s38, s38, {U_I8*1024}
    s_cmp_lt_u32 s33, 8
    s_cselect_b32 s34, s34, 8                 ; t
    s_cselect_b32 s35, s35, s36               ; byte column of the tile
    s_cselect_b32 s36, 4, 3                   ; log2 distance of its 4-column runs
    s_cselect_b32 s40, s40, s38
    s_cselect_b32 s46, 0, s20                 ; list number
    s_cselect_b32 s47, {RA//8}, {RB//8}                  ; entries incl. the header
    s_add_u32 s40, s40, s48                   ; index word
    s_lshl_b32 s38, s34, 10
    s_add_u32 s39, s39, s38
    s_add_u32 s39, s39, s48
    s_add_u32 s39, s39, 1024                  ; fragment
    v_and_b32 v15, 3, v14
    v_lshlrev_b32 v15, s36, v15
    v_add_u32 v15, s35, v15
    v_lshrrev_b32 v16, 3, v14
    v_lshlrev_b32 v16, 4, v16
    v_xor_b32 v15, v15, v16
    v_lshrrev_b32 v16, 2, v14
    v_lshl_add_u32 v16, v13, 4, v16
    v_lshl_add_u32 v15, v16, 7, v15
    v_add_u32 v24, {RAW}, v15
    v_xor_b32 v27, 32, v24
    v_xor_b32 v28, 64, v24
    v_xor_b32 v29, 0x60, v24
    s_lshl_b32 s31, s46, 2
    s_add_u32 s31, s31, {R_CNT}
    v_mov_b32 v60, s31
    v_mov_b32 v61, 1
    ds_write_b32 v60, v61                     ; next free entry (0 is the header)
    s_mul_i32 s49, s30, 81
    s_mul_i32 s31, s32, 9
    s_add_u32 s49, s49, s31
    s_add_u32 s49, s49, s34
    s_lshl_b32 s49, s49, 10
    s_add_u32 s49, s49, {EFB}
    s_lshl_b32 s31, s34, 24
    s_lshl_b32 s38, s32, 10
    s_add_u32 s31, s31, s38
    v_lshlrev_b32 v31, 18, v14
    v_lshl_add_u32 v31, v13, 5, v31
    v_add_u32 v31, s31, v31                   ; record entry of group 0
    s_mov_b32 s50, {l64 & 0xffffffff}
    s_mov_b32 s51, {l64 >> 32}
    s_mov_b32 s52, 0x00010001
    s_mov_b32 s53, 0x00200010
    s_mov_b32 s38, 0x0202
    s_mul_i32 s57, s30, {o['R']*256}
    s_add_u32 s57, s57, {SIG}
    s_cmp_eq_u32 s33, 8
    s_cselect_b32 s56, 0, s20                 ; line 8: every wave signals its own group
    s_cmp_eq_u32 s20, 0
    s_cselect_b32 s98, 1, 0                   ; this wave still has to add to the zero-based fallback counter
    v_add_u32 v74, {R_CNT + 64}, v{vL8}
    v_lshl_add_u32 v73, s20, 1, v74
    v_mov_b32 v41, 0x01000100
    v_mov_b32 v40, 0
    v_mov_b32 v63, -2.0                       ; header of an overflowed record""".split("\n")
    n = o["fpre"]
    while n < len(l) and ("cselect" in l[n] or "s_bfm" in l[n]):
        n += 1
    return "\n".join(l[:n]), "\n".join(l[n:])

def gen_ftask(o, bstride):
    L = []
    A = L.append
    l64, l32 = lut_tables()
    n1 = o["fx"]
    d = xdma(o, "s42", "s22")
    nb = o["fxb"]
    db = d[2 * n1:2 * (n1 + nb)]
    d2 = d[2 * (n1 + nb):]
    raw = f"""    buffer_load_dwordx4 v{vDma}, s[4:7], s54 offen lds
    s_add_u32 m0, m0, 4096
    s_mov_b32 s45, 0
    buffer_load_dwordx4 v{vDma}, s[4:7], s55 offen lds"""
    A(f"""    s_mul_i32 s32, s2, 57
    s_lshr_b32 s32, s32, 9                    ; k step
    s_mul_i32 s33, s32, 9
    s_sub_u32 s33, s2, s33
    s_mul_i32 s54, s32, {64*1152}
    s_lshl_b32 s35, s33, 7
    s_add_u32 s54, s54, s35
    s_add_u32 s55, s54, {32*1152}
    s_lshl_b32 s36, s20, 10
    s_add_u32 m0, s36, {RAW}
    s_lshr_b32 s30, s33, 1
    s_and_b32 s31, s33, 1
    s_lshl1_add_u32 s37, s32, s31
    s_mul_i32 s37, s37, {RA}
    s_mul_i32 s38, s32, {RB}
    s_add_u32 s38, s38, {18*RA}
    s_cmp_lt_u32 s33, 8
    s_cselect_b32 s30, s30, s20               ; w
    s_cselect_b32 s37, s37, s38
    s_cselect_b32 s44, {(1 << (RA//16)) - 1}, {(1 << (RB//16)) - 1}
    s_cselect_b32 s45, s20, 3
    s_cmp_eq_u32 s45, 3
    s_cselect_b32 s99, {WS_USED}, 0
    s_mul_i32 s48, s30, {WSTR}
    s_add_u32 s37, s37, s48
    v_mov_b32 v44, 2.0
    v_mov_b32 v45, 0
    v_mov_b32 v46, 2.0
    v_mov_b32 v47, 0
{fsetup(o, l64)[0]}
{kwait(o, raw)}
    s_mov_b64 exec, s[44:45]
    s_mov_b32 s18, s99
    buffer_store_dwordx4 v[44:47], v{vL16}, s[16:19], s37 offen sc1
    s_mov_b32 s18, {WS_USED}
    s_mov_b64 exec, -1
{biasloads() if not o["blate"] else ""}
{text(finalize(d[:2*n1]))}
{fsetup(o, l64)[1]}
{stamp(o) if o["diag"] == 2 else ""}
    s_waitcnt vmcnt({7 + n1 - 5 * o['blate']}) lgkmcnt(0)
{stamp(o) if o["diag"] == 2 else ""}
    s_barrier
    ds_read_b64_tr_b16 v[16:17], v24
    ds_read_b64_tr_b16 v[18:19], v27 offset:512
    ds_read_b64_tr_b16 v[20:21], v28 offset:1024
    ds_read_b64_tr_b16 v[22:23], v29 offset:1536
{text(finalize(db))}""")
    for g in range(4):
        a = 16 + 2 * g
        A(f"""    s_waitcnt lgkmcnt({3-g})
    v_and_b32 v44, 0x7fff7fff, v{a}
    v_and_b32 v45, 0x7fff7fff, v{a+1}
    v_pk_max_u16 v46, v44, v45
    v_pk_min_u16 v47, v44, v45
    v_pk_min_u16 v46, v46, v46 op_sel:[0,1] op_sel_hi:[1,0]
    v_pk_max_u16 v47, v47, v47 op_sel:[0,1] op_sel_hi:[1,0]
    v_pk_max_u16 v46, v46, s52
    v_pk_max_u16 v46, v46, v47
    v_pk_sub_i16 v44, v44, v46
    v_pk_sub_i16 v45, v45, v46
    v_pk_ashrrev_i16 v44, 15, v44 op_sel_hi:[0,1]           ; all ones where dropped
    v_pk_ashrrev_i16 v45, 15, v45 op_sel_hi:[0,1]
    v_alignbit_b32 v47, -1, v44, 16
    v_alignbit_b32 v46, v45, v45, 16
    v_and_b32 v48, 0x00080004, v44
    v_bitop3_b32 v46, v45, v46, v47 bitop3:0xe8
    v_and_or_b32 v{64+g}, v45, s53, v48
    v_bitop3_b32 v{36+g}, v{a}, v44, v46 bitop3:0x10
    v_min_u32 v{68+g}, 1, v{36+g}""")
    A(f"""    v_add_u32 v72, v68, v69
    v_add3_u32 v72, v72, v70, v71
    buffer_store_dwordx4 v[36:39], v{vL16}, s[16:19], s49 offen sc1
    v_cmp_ne_u32 vcc, 0, v72
    s_and_saveexec_b64 s[44:45], vcc
    ds_add_rtn_u32 v62, v60, v72
    s_mov_b64 exec, -1""")
    for g in range(4):
        A(f"""    v_lshrrev_b32 v48, 16, v{64+g}
    v_or_b32 v48, v48, v{64+g}                ; 4 * mask of dropped elements
    v_lshrrev_b64 v[52:53], v48, s[50:51]
    v_and_b32 v{64+g}, 15, v52
    v_lshl_or_b32 v40, v{64+g}, {4*g}, v40""")
    if o["align"]:
        A("""    v_lshrrev_b32 v44, 2, v40
    v_lshlrev_b32 v45, 2, v40
    s_movk_i32 s31, 0x3333
    v_not_b32 v47, v40
    v_bfi_b32 v44, s31, v44, v45              ; both indices swapped
    s_movk_i32 s31, 0x1111
    s_nop 0
    v_mov_b32_dpp v47, v44 row_shr:4 row_mask:0xf bank_mask:0xf
    v_xor_b32 v47, v47, v40
    v_lshrrev_b32 v45, 1, v47
    v_or_b32 v47, v47, v45                    ; bit 0 / 2 of a nibble clear: shared element in the other slot
    v_lshrrev_b32 v45, 2, v47
    v_bitop3_b32 v47, v47, v45, s31 bitop3:0x2a
    s_nop 1
    v_xor_b32_dpp v47, v47, v47 row_shr:4 row_mask:0xf bank_mask:0xe
    s_nop 1
    v_xor_b32_dpp v47, v47, v47 row_shr:8 row_mask:0xf bank_mask:0xc
    v_mul_u32_u24 v47, 15, v47
    v_bfi_b32 v40, v47, v44, v40""")
    A(f"    ds_write_b16 v73, v40")
    for g in range(4):
        a = 16 + 2 * g
        if g == 2:
            A(f"""    s_waitcnt vmcnt({6 + n1 + nb - 5 * o['blate']}) lgkmcnt(0)
    s_barrier
    ds_read_b64 v[50:51], v74""")
        if o["align"]:
            A(f"    v_bfe_u32 v{64+g}, v40, {4*g}, 4")
        A(f"""    v_mul_u32_u24 v46, 0x4001, v{64+g}
    v_and_b32 v46, 0x30003, v46
    v_mad_u32_u24 v46, v46, s38, v41
    v_perm_b32 v{32+g}, v{a+1}, v{a}, v46""")
    A(f"""{stamp(o) if o["diag"] == 2 else ""}
    buffer_store_dwordx4 v[32:35], v{vL16}, s[16:19], s39 offen sc1
    s_cmp_eq_u32 s33, 8
    s_cbranch_scc0 F_i1
    buffer_store_short v40, v{vL16}, s[16:19], s40 offen sc1
    s_branch F_i2
F_i1:
    s_cmp_eq_u32 s20, 0
    s_cbranch_scc0 F_i2
    s_waitcnt lgkmcnt(0)
    buffer_store_dwordx2 v[50:51], v{vL16}, s[16:19], s40 offen sc1
F_i2:
    s_cbranch_vccz F_z""")
    for g in range(4):
        A(f"""    v_cmp_ne_u32 vcc, 0, v{36+g}
    s_and_saveexec_b64 s[44:45], vcc
    s_cbranch_execz F_e{g}
    v_cmp_gt_u32 vcc, s47, v62
    v_add_u32 v42, {8*g}, v31
    v_lshlrev_b32 v44, 3, v62
    v_add_u32 v62, 1, v62
    v_cndmask_b32 v42, v63, v42, vcc
    v_cndmask_b32 v43, 0, v{36+g}, vcc
    v_cndmask_b32 v44, 0, v44, vcc
{"" if o["exp"] & 2 else "    buffer_store_dwordx2 v[42:43], v44, s[16:19], s37 offen sc1"}
F_e{g}:
    s_mov_b64 exec, -1""")
    A(f"""F_z:
{stamp(o)}
    s_cmp_lg_u32 s2, 0
    s_cbranch_scc1 M_set
    v_mov_b32 v64, 0
    v_mov_b32 v65, 0
    v_mov_b32 v66, 0
    v_mov_b32 v67, 0
    s_mov_b32 s40, {CTR}
    buffer_store_dwordx4 v[64:67], v{vL16}, s[16:19], s40 offen sc1
    s_branch M_set
F_sig:
    ; all stores of this workgroup done -> add to the replicas the consumers poll
    v_lshlrev_b32 v30, 8, v12
    s_waitcnt vmcnt(0)
{stamp(o)}
    s_barrier
    s_cmp_lg_u32 s56, 0
    s_cbranch_scc1 F_end
{f"    s_bfm_b64 exec, {o['R']}, 0" if o['R'] < 64 else ""}
    buffer_atomic_add v61, v30, s[16:19], s57 offen sc1
    s_mov_b64 exec, -1
{"    " + count_in("F_cnt") if o["cearly"] == 1 else ""}
F_end:
{text(finalize(d[2 * (n1 + nb):2 * o["xa"]]))}
    s_branch M_x2""")
    return "\n".join(L)

def wfrag(p):
    return vr(4 * p, 4, "a") if p < 64 else vr(vWF + 4 * (p - 64), 4)

def smf(rb, s, t, buf):
    p = s * 9 + t
    ir, ih = (4 * s + t // 2, t & 1) if t < 8 else (36 + s // 2, s & 1)
    return smfmac(vr(vACC[rb] + 4 * t, 4), wfrag(p), vr(buf, 8), vr(vIDX + ir), ih)

def group_smf(gi, chain=True):
    rb, ks = GROUPS[gi]
    if chain:
        return [smf(rb, s, t, vBB + 8 * GBUF[s]) for t in range(9) for s in ks]
    return [smf(rb, s, t, vBB + 8 * GBUF[s]) for s in ks for t in range(9)]

def bread_to(rb, s, b):
    off = rb * 18432 + s * 1024
    return [ds_read("ds_read_b128", vr(b, 4), vr(vB0), f"offset:{off}"),
            ds_read("ds_read_b128", vr(b + 4, 4), vr(vB1), f"offset:{off}")]

def group_reads(gi):
    rb, ks = GROUPS[gi]
    return sum([bread_to(rb, s, vBB + 8 * GBUF[s]) for s in ks], [])

def bias_init(rb, t):
    return ds_read("ds_read_b128", vr(vACC[rb] + 4 * t, 4), vr(vTQ), f"offset:{L_BIAS + t*64}")

def tread(t, tok=None):
    i = ds_read("ds_read_b128", vr(vT, 4), vr(vTQ), f"offset:{L_T0 + t*64}")
    if tok:
        i.rd |= regs(tok)
    return i

def aread(t):
    return ds_read("ds_read_b128", vr(vA, 4), vr(vTA), f"offset:{t*1024}")

def xad(j):
    return valu(f"v_xad_u32 v{vT+j}, v{vT+j}, v{vXor}, v{vRow}", [vr(vT + j), vr(vXor), vr(vRow)], [vr(vT + j)])

def gather(j):
    return ds_read("ds_read2st64_b32", vr(vG + 2 * j, 2), vr(vT + j), "offset0:0 offset1:72")

H = vBB + 16
def ov_gather():
    return [ds_read("ds_read_b64", vr(H + 4, 2), vr(vTQ), f"offset:{L_OVT}"),
            valu(f"v_xad_u32 v{H}, v{H+4}, v{vXor}, v{vRow}", [vr(H + 4), vr(vXor), vr(vRow)], [vr(H)]),
            ds_read("ds_read2st64_b32", vr(H, 2), vr(H), "offset0:0 offset1:72"),
            valu(f"v_xad_u32 v{H+2}, v{H+5}, v{vXor}, v{vRow}", [vr(H + 5), vr(vXor), vr(vRow)], [vr(H + 2)]),
            ds_read("ds_read2st64_b32", vr(H + 2, 2), vr(H + 2), "offset0:0 offset1:72")]

def ov_call(tag):
    return I(f"s_cmp_lt_i32 s81, 0\n    s_cbranch_scc1 M_ovr{tag}\n    s_swappc_b64 s[78:79], s[72:73]\nM_ovr{tag}:", "other", rd=[vr(H, 4), vr(vACC[1], 36)] + [vr(r, 2) for r in vOV])

def csmf(rb, t):
    return smfmac(vr(vACC[rb] + 4 * t, 4), vr(vA, 4), vr(vG, 8), vr(vCI), rb)

def epilogue(rb, soff, o, init=True, xoff=0):
    gs = []
    for ln in range(2):
        g = []
        a = vACC[rb] + 16 * ln
        X, Y, Z = a, a + 8, a + 4
        for j in range(4):
            g.append(valu(f"v_cvt_pk_bf16_f32 v{X+j}, v{a+2*j}, v{a+2*j+1}", [vr(a + 2 * j, 2)], [vr(X + j)]))
        for j in range(4):
            g.append(valu(f"v_cvt_pk_bf16_f32 v{Y+j}, v{a+8+2*j}, v{a+8+2*j+1}", [vr(a + 8 + 2 * j, 2)], [vr(Y + j)]))
        if init:
            g.append(bias_init(rb, 4 * ln + 3))
        for j in range(4):
            g.append(valu(f"v_cndmask_b32_dpp v{Z+j}, v{X+j}, v{Y+j}, vcc row_ror:8 row_mask:0xf bank_mask:0xf", [vr(X + j), vr(Y + j)], [vr(Z + j)]))
        g.append(I(f"buffer_store_dwordx4 {vr(Z,4)}, v{vS4}, s[12:15], {soff[1]} offen offset:{ln*128} {o['stf']}".rstrip(), "store", rd=[vr(Z, 4), vr(vS4)]))
        for j in range(4):
            g.append(valu(f"v_mov_b32_dpp v{X+j}, v{Y+j} row_ror:8 row_mask:0xf bank_mask:0xc", [vr(X + j), vr(Y + j)], [vr(X + j)]))
        g.append(I(f"buffer_store_dwordx4 {vr(X,4)}, v{vS4}, s[12:15], {soff[0]} offen offset:{ln*128} {o['stf']}".rstrip(), "store", rd=[vr(X, 4), vr(vS4)]))
        if init:
            g += [bias_init(rb, 4 * ln + 1), bias_init(rb, 4 * ln + 2), bias_init(rb, 4 * ln)]
        gs.append(g)
    g = []
    a = vACC[rb] + 32
    for j in range(2):
        g.append(valu(f"v_cvt_pk_bf16_f32 v{a+j}, v{a+2*j}, v{a+2*j+1}", [vr(a + 2 * j, 2)], [vr(a + j)]))
    g.append(I(f"ds_write_b64 v{vXw}, {vr(a,2)} offset:{(1-rb)*2*LTABW + xoff}", "dsw", rd=[vr(a, 2), vr(vXw)], wr=["@x2" if xoff else f"@x{rb}"]))
    if init:
        g.append(bias_init(rb, 8))
    gs.append(g)
    if o["nostore"]:
        gs = [[i for i in g if i.kind != "store"] for g in gs]
    return gs

def xch(o, soff, r=vG, xoff=0):
    return [ds_read("ds_read_b128", vr(r, 4), vr(vTA), f"offset:{L_X + xoff}"),
            I(f"buffer_store_dwordx4 {vr(r,4)}, v{vS2}, s[12:15], {soff} offen {o['stf']}".rstrip(), "store", rd=[vr(r, 4), vr(vS2)])]

def xdma(o, m0base, soff):
    g = []
    for s in range(9):
        if s == 0:
            g.append(salu(f"s_mov_b32 m0, {m0base}"))
        else:
            g.append(salu("s_add_u32 m0, m0, 896"))
        g.append(I(f"buffer_load_dwordx4 v{vDma}, s[8:11], {soff} offen offset:{s*128} {o['xnt']} lds", "dma", rd=[vr(vDma), soff]))
    return g

def count_in(tag):
    return f"""s_cmp_eq_u32 s98, 0
    s_cbranch_scc1 {tag}
    s_mov_b32 s98, 0
    v_mov_b32 v{vG+6}, 1
    s_mov_b64 exec, 1
    buffer_atomic_add v{vG+6}, off, s[68:71], 0 offset:{CNT_F} sc1
    s_mov_b64 exec, -1
    s_nop 3
{tag}:"""

def spin(tag, base, target):
    return f"""    v_readfirstlane_b32 s30, v0
    s_mov_b32 s31, 0
    s_sub_u32 s30, s30, {base}
    s_cmp_eq_u32 s30, {target}
    s_cbranch_scc0 {tag}_spin
{tag}_ok:"""

def spin_out(o, tag, base, target, soff):
    return f"""{tag}_spin:
    s_sleep {o['slp']}
{poll(o, 0)}
    s_add_u32 s31, s31, 1
    s_waitcnt vmcnt(0)
    v_readfirstlane_b32 s30, v0
    s_nop 0
    s_sub_u32 s30, s30, {base}
    s_cmp_eq_u32 s30, {target}
    s_cbranch_scc1 {tag}_ok
    s_cmp_lt_u32 s31, {o['nfast']}
    s_cbranch_scc1 {tag}_spin
    {count_in(tag + "_spin2")}
    buffer_load_dword v0, off, s[68:71], 0 offset:{CNT_F} sc1
    s_cmp_ge_u32 s31, {SPIN}
    s_cbranch_scc1 M_end
    s_waitcnt vmcnt(0)
    v_readfirstlane_b32 s30, v0
    s_nop 0
    s_cmp_eq_u32 s30, {NF}
    s_cbranch_scc0 {tag}_spin
    s_branch {tag}_ok"""

def ctouch(o):
    if not o["ctouch"]:
        return ""
    return f"""    s_getpc_b64 s[84:85]
    s_lshr_b32 s30, s2, 3
    s_and_b32 s30, s30, 15
    s_lshl_b32 s30, s30, 11
    s_and_b32 s84, s84, 0xffffff00
    s_cmp_ge_u32 s2, {88 if o["ctouch"] == 2 else 0}
    s_cselect_b32 s86, M_codeend-{NAME}_kernel, 0
    s_mov_b32 s87, 0x20000
    v_lshlrev_b32 v254, 3, v0
    s_mov_b32 exec_lo, 0x00010001
    s_mov_b32 exec_hi, 0x00010001
    buffer_load_dword v254, v254, s[84:87], s30 offen
    s_mov_b64 exec, -1"""

COST = {}
def gen_main(o):
    L = []
    A = L.append
    bstride = 256 * SLOT if o["inter"] else SLOT
    wgmul = SLOT if o["inter"] else 3 * SLOT
    tord = o["tord"]
    if len(o["early"]) != 1 or o["estat"]:
        o["e2"] = 0
    HB = (2048 - o["nh"] // 2) * SLOT
    A(f""".p2align 8
.type {NAME}_kernel,@function
{NAME}_kernel:
    s_cmp_ge_u32 s2, 256
    s_cbranch_scc1 M_end
{stamp(o, True)}
    s_load_dwordx8 s[72:79], s[0:1], 0        ; x w b out
    s_load_dwordx4 s[80:83], s[0:1], 32
{ctouch(o)}
    v_lshrrev_b32 v20, 6, v0
    v_and_b32 v12, 63, v0                     ; lane
    v_readfirstlane_b32 s20, v20              ; wave
    ; DMA lane offset: (tid/8)*1152 + ((tid%8) ^ ((tid/16)%8))*16
    v_lshrrev_b32 v22, 3, v0
    v_mul_u32_u24 v22, 1152, v22
    v_lshrrev_b32 v23, 4, v0
    v_xor_b32 v23, v23, v0
    v_and_b32 v23, 7, v23
    v_lshl_add_u32 v{vDma}, v23, 4, v22
    v_lshrrev_b32 v13, 4, v12                 ; q
    v_and_b32 v14, 15, v12                    ; m
    v_lshlrev_b32 v{vL16}, 4, v12
    v_lshlrev_b32 v{vL8}, 3, v12
    v_lshlrev_b32 v25, 4, v13
    v_lshlrev_b32 v26, 3, v13
    s_mov_b32 s6, {576*576*2}
    s_mov_b32 s7, 0x20000
    s_mov_b32 s10, {XB}
    s_mov_b32 s11, s7
    s_mov_b32 s18, {WS_USED}
    s_mov_b32 s19, s7
    s_movk_i32 s70, 256
    s_mov_b32 s71, s7
    s_movk_i32 s86, 1152
    s_mov_b32 s87, s7
    s_mov_b32 s98, 0
    s_mul_i32 s96, s20, {o['R']}
    s_and_b32 s97, s2, {o['R']-1}
    s_add_u32 s96, s96, s97
    s_lshl_b32 s96, s96, 8
    s_add_u32 s96, s96, {SIG}
    s_mul_i32 s22, s2, {wgmul}
    s_mul_i32 s26, s20, 9216
    s_mov_b32 s24, s22
    s_mov_b32 s42, s26
    s_lshl_b32 s28, s20, 8
    s_lshl_b32 s97, s20, 5
    s_cmp_lt_u32 s2, {NF}
    s_cbranch_scc0 M_x1
{gen_ftask(o, bstride)}
M_x1:
{kwait(o)}
{(stamp(o) + chr(10)) * 3 if o["diag"] == 2 else ""}
{stamp(o)}
{biasloads() if not o["blate"] else ""}
{text(finalize(xdma(o, "s42", "s22")[:2 * o["xa"]]))}""")
    A(f"""M_set:                                        ; set-up while the first loads (or the prep stores) are under way
    s_mov_b32 s12, s78
    s_mov_b32 s13, s79
    s_mov_b32 s14, {XB}
    s_mov_b32 s15, 0x20000
    s_mul_i32 s29, s20, {LTABW}
    s_add_u32 s29, s29, {LTAB}
    v_lshrrev_b32 v24, 1, v14                 ; f(m)
    v_and_b32 v27, 7, v14
    v_lshlrev_b32 v22, 7, v27
    v_lshl_or_b32 v{vXor}, v24, 4, v22        ; (f<<4) | (m%8)<<7
    v_lshrrev_b32 v23, 3, v14
    v_mul_u32_u24 v{vRow}, 9216, v23
    v_xad_u32 v{vB0}, v25, v{vXor}, v{vRow}
    v_xor_b32 v{vB1}, 64, v{vB0}
    v_add_u32 v{vTQ}, s29, v25
    v_add_u32 v{vTA}, s29, v{vL16}
    v_mul_u32_u24 v24, 1152, v27
    v_lshl_add_u32 v24, v23, 6, v24
    v_add3_u32 v{vS4}, v24, v25, s28          ; (m%8)*1152 + (m/8)*64 + q*16 + w*256
    v_lshrrev_b32 v24, 3, v12
    v_xor_b32 v28, v24, v12
    v_and_b32 v28, 7, v28
    v_mul_u32_u24 v24, 1152, v24
    v_lshl_add_u32 v24, v28, 4, v24
    v_add_u32 v{vS2}, 1024, v24               ; (l/8)*1152 + 1024 + ((l%8)^(l/8))*16
    s_lshl_b32 s30, s20, 1
    v_lshrrev_b32 v24, 1, v13
    v_add_u32 v24, s30, v24
    v_xor_b32 v24, v24, v27
    v_lshl_add_u32 v24, v24, 4, v22
    v_and_b32 v28, 8, v26
    v_mul_u32_u24 v29, {LTABW}, v23
    v_add3_u32 v24, v24, v28, v29
    v_add_u32 v{vXw}, {LTAB+L_X}, v24
    s_lshr_b32 s30, s2, 3
    s_and_b32 s30, s30, {o['nsh']-1}          ; shard
    s_mul_i32 s92, s30, {1024//max(o['nsh'],4)}
    s_add_u32 s92, s92, {CTR - L_MB}
    s_add_u32 s30, s30, {768 + (256 * o['early'][-1][0] if o['estat'] else 0)}
    s_mul_i32 s93, s30, {SLOT}
    s_mov_b32 s94, {o['nsh']*SLOT}
    s_and_b32 s95, s20, 1
    s_mul_i32 s95, s95, 9216
    s_add_u32 s59, s24, 9216
    s_mul_i32 s43, s20, {WSTR}
    s_add_u32 s47, s29, {L_T0}
    s_add_u32 s48, s29, {L_OVL}
    s_add_u32 s49, s29, {L_CNT}
    s_add_u32 s54, s29, {L_OVL + 256 + MDUM}  ; outside the LDS allocation: writes are dropped
    s_add_u32 s38, s26, {2*SLOT}
    s_add_u32 s35, s38, {128*8}
    s_add_u32 s39, s38, {192*8}
    s_mov_b32 s40, s48
    s_add_u32 s41, s48, 256
    s_mov_b32 s50, {slot_luts()[0] & 0xffffffff}
    s_mov_b32 s51, {slot_luts()[0] >> 32}
    s_mov_b32 s52, {slot_luts()[1] & 0xffffffff}
    s_mov_b32 s53, {slot_luts()[1] >> 32}
    v_mov_b32 v16, 0
    v_mov_b32 v17, 0
    v_mov_b32 v18, 0
    v_mov_b32 v19, 0
    v_cmp_gt_u32 s[44:45], 36, v12
    v_mov_b32 v20, {"2.0" if o["toob"] else "0"}
    s_nop 0
    v_cndmask_b32 v20, 0, v20, s[44:45]
    v_mov_b32 v21, v20
    v_mov_b32 v22, v20
    v_mov_b32 v23, v20
    v_mov_b32 v{vR+12}, {MDUM}
    v_mov_b32 v{vR+13}, 0
    v_mov_b32 v{vR+14}, {MDUM}
    v_mov_b32 v{vR+15}, 0
    v_lshl_add_u32 v{vD0}, v12, 2, s49
    v_add_u32 v{vD1}, s38, v{vL8}
    v_add_u32 v24, s38, v{vL16}""")
    for t in range(9):
        A(f"    ds_write_b128 v{vTA}, v[16:19] offset:{t*1024}")
    assert not o["x2pre"]
    A(f"""    ds_write_b128 v24, {vr(vR+12,4)}
    ds_write_b128 v24, {vr(vR+12,4)} offset:1024
    ds_write_b128 v{vTA}, v[20:23] offset:{L_T0}
    s_cmp_lt_u32 s2, {NF}
    s_cbranch_scc1 F_sig
{stamp(o)}
{text(finalize(xdma(o, "s42", "s22")[2 * o["xa"]:2 * max(o["xa"], o["fx"] + o["fxb"])]))}
M_x2:
{text(finalize(xdma(o, "s42", "s22")[2 * max(o["xa"], o["fx"] + o["fxb"]):]))}
    s_add_u32 s22, s22, {bstride}
    s_add_u32 s42, s42, {SLOT}
{"    " + count_in("M_cnt") if o["cearly"] == 2 else ""}
{biasloads() if o["blate"] else ""}
{text(finalize(xdma(o, "s42", "s22")))}
    s_add_u32 s22, s22, {bstride}
    s_add_u32 s42, s42, {SLOT}
{stamp(o) if o["diag"] != 3 else ""}
    s_waitcnt vmcnt({o['pw']})
{stamp(o) if o["diag"] != 3 else ""}
{poll(o, 0)}
    v_readlane_b32 s100, v{vCI}, 0
    v_mov_b32 v{vCI}, 0xeeee4444
{"    s_add_u32 s100, s100, 5" if o["testfb"] else ""}""")
    for j in range(18):
        A(f"    v_lshlrev_b32 v{vACC[0]+2*j}, 16, v{vBB+j}\n    v_and_b32 v{vACC[0]+2*j+1}, 0xffff0000, v{vBB+j}")
    A("    s_mov_b32 exec_lo, 0x00010001\n    s_mov_b32 exec_hi, 0x00010001")
    for t in range(9):
        A(f"    ds_write_b128 v{vTQ}, {vr(vACC[0]+4*t,4)} offset:{L_BIAS+t*64}")
    A("    s_mov_b64 exec, -1")
    if o["xtail"]:
        wd = o["xw"] or [o["xfull"] + o["xtail"] * (q + 1) for q in range(9)]
        g0 = vG
        n0 = NF if o["xA"] == 1 else 0
        ft, fn = o["ftouch"], o["ftn"]
        assert sum(wd) <= (8 * fn * ft if ft else 8 * (256 - n0))
        if ft:
            A(f"""    s_cmp_lt_u32 s2, {fn}
    s_cbranch_scc0 M_ft2
    s_lshl2_add_u32 s30, s2, s20
    s_lshl_b32 s30, s30, 1
    s_add_u32 m0, s29, {L_X + 1024}
M_ft:""")
        else:
            A(f"""    s_mul_i32 s30, s20, {256 - n0}
    s_xor_b32 s31, s2, {255 if o["xA"] == 2 else 0}
    s_add_u32 s30, s30, s31
    s_sub_u32 s30, s30, {n0}
    s_cmp_lt_u32 s2, {n0}
    s_cselect_b32 s30, 1023, s30
    s_lshl_b32 s30, s30, 1""")
        A(f"""    v_lshrrev_b32 v{g0}, 5, v12
    v_add_u32 v{g0+4}, s30, v{g0}             ; e
    v_mov_b32 v{g0}, -1
    v_mov_b32 v{g0+1}, 0""")
        for q in range(9):
            if wd[q]:
                A(f"""    v_subrev_u32 v{g0+2}, {sum(wd[q+1:])}, v{g0+4}
    v_cmp_gt_u32 vcc, {wd[q]}, v{g0+2}
    v_mov_b32 v{g0+3}, {q}
    s_nop 0
    v_cndmask_b32 v{g0}, v{g0}, v{g0+2}, vcc
    v_cndmask_b32 v{g0+1}, v{g0+1}, v{g0+3}, vcc""")
        A(f"""    v_sub_u32 v{g0}, 2047, v{g0}
    v_mul_u32_u24 v{g0}, {SLOT}, v{g0}
    v_lshl_add_u32 v{g0}, v{g0+1}, 7, v{g0}
    v_and_b32 v{g0+1}, 31, v12
    v_mul_u32_u24 v{g0+1}, 1152, v{g0+1}
    v_add_u32 v{g0+5}, v{g0}, v{g0+1}""")
        if ft:
            A(f"""    buffer_load_dword v{g0+5}, s[8:11], 0 offen lds
    s_add_u32 s30, s30, {8*fn}
    s_cmp_lt_u32 s30, {8*fn*ft}
    s_cbranch_scc1 M_ft
M_ft2:""")
    A("    s_mov_b32 vcc_lo, 0xff00ff00\n    s_mov_b32 vcc_hi, 0xff00ff00")
    if o["pp"]:
        A(poll(o, vG + 7) + "\n    s_waitcnt vmcnt(1)")
    else:
        A("    s_waitcnt vmcnt(0)")
    A(stamp(o))
    A(spin("M_pf", "s100", NARR).replace("M_pf_spin", "M_pf_pp" if o["pp"] else "M_pf_spin"))
    A(stamp(o))

    lag, e_cor, cper = o["lag"], o["ecor"], o["cper"]
    def uload(u, dst, n):
        g = [salu("s_add_u32 s43, s43, 4096")] if u % 4 == 0 and u else []
        g.append(I(f"buffer_load_dword{'x4' if n == 4 else ''} {dst}, v{vL16}, s[16:19], s43 offen offset:{(u%4)*1024} {o['wsc']}", "load", rd=[vr(vL16)], wr=[dst]))
        return g
    def wload(p):
        s, t = divmod(p, 9)
        g = uload(u_idx(s), vr(vIDX + 4 * s, 4), 4) if t == 0 else []
        return g + uload(u_frag(s, t), wfrag(p), 4)
    def pbuf(rb, s):
        return vBB + 8 * ((0, 1)[s & 1] if rb == 0 else (4, 3)[s & 1])
    seq = []
    if o["touch"]:
        nl = o["touch"]
        t0 = WSTR - 21 * nl * 128
        A(f"""    s_lshr_b32 s30, s2, 3
    s_sub_u32 s31, s30, 11
    s_cselect_b32 s30, s30, s31
    s_mul_i32 s30, s30, {nl*128}
    s_add_u32 s30, s30, s43
    s_add_u32 s30, s30, {t0}
    v_lshlrev_b32 v{vG}, 3, v{vL16}""")
    SR5 = [66, 60, 64, 56, 88, 90, 96, 100, 58, 84, 86, 4, 6, 68, 70, 0]
    if o["diag"] == 5:
        seq.append(I(f"s_memtime s[{SR5[0]}:{SR5[0]+1}]", "other"))
    seq.append(valu(f"v_mov_b32 v0, v{vG+5}", [], ["v0"]))
    R = vR
    seq += uload(0, vr(R, 4), 4) + uload(1, vr(R + 4, 4), 4) + uload(2, vr(R + 8, 4), 4)
    seq += [salu(f"s_mov_b32 exec_hi, {(1 << ((18*RA + 9*RB)//16 - 224)) - 1}")] + uload(3, vr(R + 12, 4), 4) + [salu("s_mov_b32 exec_hi, -1")]
    seq += uload(4, vr(vIDX + 36, 4), 4) + uload(5, vr(vIDX + 40), 1)
    for p in range(lag):
        seq += wload(p)
    if o["touch"]:
        j = [q for q, i in enumerate(seq) if i.kind == "load"][o["tpos"]]
        assert o["tpos"] != 3
        seq[j:j] = [salu(f"s_bfm_b64 exec, {o['touch']}, 0"), I(f"buffer_load_dword v{vG}, v{vG}, s[16:19], s30 offen sc1", "load", wr=[vr(vG)]), salu("s_mov_b64 exec, -1")]
    def V(txt, rd, wr):
        return valu(txt, [f"v{r}" if isinstance(r, int) else r for r in rd], [f"v{r}" if isinstance(r, int) else r for r in wr])
    OLD, X = R + 6, R + 18
    DUM = X + 8
    build = [V(f"v_mov_b32 v{DUM}, s54", [], [DUM]),
             V(f"v_or3_b32 v{X+4}, v{R}, v{R+4}, v{R+8}", [R, R + 4, R + 8], [X + 4]),
             V(f"v_or_b32 v{X+4}, v{X+4}, v{R+12}", [R + 12, X + 4], [X + 4]),
             V(f"v_cmp_gt_i32 s[32:33], 0, v{X+4}", [X + 4], ["s[32:33]"])]
    for j in range(8):
        M, Y, K = R + 2 * j, X + (j & 1), "s[44:45]" if j & 1 else "s[36:37]"
        k0 = 44 if j & 1 else 36
        build += [V(f"v_cmp_gt_u32 {K}, 2.0, v{M}", [M], [K]),
                  V(f"v_mbcnt_lo_u32_b32 v{Y}, s{k0}, 0", [K], [Y]),
                  V(f"v_mbcnt_hi_u32_b32 v{Y}, s{k0+1}, v{Y}", [K, Y], [Y]),
                  V(f"v_lshl_add_u32 v{Y}, v{Y}, 3, s38", [Y], [Y]),
                  V(f"v_min_u32 v{Y}, s39, v{Y}", [Y], [Y]),
                  V(f"v_cndmask_b32 v{Y}, v{DUM}, v{Y}, {K}", [DUM, Y, K], [Y]),
                  I(f"ds_write_b64 v{Y}, {vr(M,2)}", "dsw", rd=[vr(Y), vr(M, 2)]),
                  salu(f"s_bcnt1_i32_b64 s30, {K}"),
                  salu(f"s_lshl3_add_u32 s38, s30, s38")]
    build += [ds_read("ds_read_b64", vr(R + 2 * j, 2), vr(vD1), f"offset:{j*512}") for j in range(3)] + [None] * 10
    def rank(j):
        M, Y = R + 2 * j, X + 2 * (j & 1)
        return [V(f"v_bfe_u32 v{Y}, v{M}, 24, 4", [M], [Y]),
                V(f"v_lshlrev_b32 v{Y+1}, 1, v{M}", [M], [Y + 1]),
                V(f"v_lshl_add_u32 v{Y}, v{Y}, 2, s49", [Y], [Y]),
                V(f"v_and_b32 v{Y+1}, 16, v{Y+1}", [Y + 1], [Y + 1]),
                V(f"v_and_or_b32 v{Y}, v{M}, 2.0, v{Y}", [M, Y], [Y]),
                V(f"v_lshlrev_b32 v{Y+1}, v{Y+1}, 1", [Y + 1], [Y + 1]),
                I(f"ds_add_rtn_u32 v{OLD+j}, v{Y}, v{Y+1}", "ds", rd=[vr(Y, 2)], wr=[vr(OLD + j)])]
    def place(j):
        M, E, O = R + 2 * j, R + 2 * j + 1, OLD + j
        return [V(f"v_and_b32 v{X}, 8, v{M}", [M], [X]),
                V(f"v_lshrrev_b32 v{X+3}, 14, v{M}", [M], [X + 3]),
                V(f"v_cmp_ne_u32 s[44:45], 0, v{X}", [X], ["s[44:45]"]),
                V(f"v_and_b32 v{X+6}, 0x3cf0, v{X+3}", [X + 3], [X + 6]),
                V(f"v_lshrrev_b32 v{X+1}, 16, v{O}", [O], [X + 1]),
                V(f"v_and_b32 v{X+2}, 0xffff, v{O}", [O], [X + 2]),
                V(f"v_sub_u32 v{X}, 15, v{X+1}", [X + 1], [X]),
                V(f"v_and_b32 v{O}, 2.0, v{M}", [M], [O]),
                V(f"v_add3_u32 v{O}, v{X+2}, v{X+1}, v{O}", [X + 2, X + 1, O], [O]),
                V(f"v_cndmask_b32 v{X}, v{X+2}, v{X}, s[44:45]", [X + 2, X, "s[44:45]"], [X]),
                V(f"v_cmp_gt_u32 s[44:45], 16, v{O}", [O], ["s[44:45]"]),
                V(f"v_cmp_gt_u32 s[36:37], 2.0, v{O}", [O], ["s[36:37]"]),
                V(f"v_lshlrev_b32 v{X}, 2, v{X}", [X], [X]),
                V(f"v_lshrrev_b64 v[{X+2}:{X+3}], v{X}, s[50:51]", [X], [X + 2, X + 3]),
                salu("s_andn2_b64 s[36:37], s[36:37], s[44:45]"),
                V(f"v_lshrrev_b64 v[{X+4}:{X+5}], v{X}, s[52:53]", [X], [X + 4, X + 5]),
                V(f"v_bfe_u32 v{X}, v{M}, 24, 4", [M], [X]),
                V(f"v_mbcnt_lo_u32_b32 v{X+1}, s36, 0", [], [X + 1]),
                V(f"v_and_b32 v{X+2}, 15, v{X+2}", [X + 2], [X + 2]),
                V(f"v_mbcnt_hi_u32_b32 v{X+1}, s37, v{X+1}", [X + 1], [X + 1]),
                V(f"v_and_b32 v{X+4}, 15, v{X+4}", [X + 4], [X + 4]),
                V(f"v_lshl_add_u32 v{X+1}, v{X+1}, 3, s40", [X + 1], [X + 1]),
                V(f"v_lshl_add_u32 v{X+2}, v{X}, 4, v{X+2}", [X, X + 2], [X + 2]),
                V(f"v_min_u32 v{X+1}, s41, v{X+1}", [X + 1], [X + 1]),
                V(f"v_mul_u32_u24 v{X+4}, 68, v{X+4}", [X + 4], [X + 4]),
                V(f"v_cndmask_b32 v{X+1}, v{DUM}, v{X+1}, s[36:37]", [DUM, X + 1], [X + 1]),
                I(f"ds_write_b64 v{X+1}, {vr(M,2)}", "dsw", rd=[vr(X + 1), vr(M, 2)]),
                salu("s_bcnt1_i32_b64 s30, s[36:37]"),
                salu("s_lshl3_add_u32 s40, s30, s40"),
                V(f"v_lshl_add_u32 v{X+2}, v{X+2}, 2, s47", [X + 2], [X + 2]),
                V(f"v_and_b32 v{X+4}, 0x30c, v{X+4}", [X + 4], [X + 4]),
                V(f"v_cndmask_b32 v{X+2}, v{DUM}, v{X+2}, s[44:45]", [DUM, X + 2, "s[44:45]"], [X + 2]),
                V(f"v_add3_u32 v{X+3}, v{X+6}, v{X+4}, s29", [X + 6, X + 4], [X + 3]),
                V(f"v_and_b32 v{X+4}, 0x3fff, v{M}", [M], [X + 4]),
                V(f"v_cndmask_b32 v{X}, v{DUM}, v{X+3}, s[44:45]", [DUM, X + 3, "s[44:45]"], [X]),
                I(f"ds_write_b32 v{X+2}, v{X+4}", "dsw", rd=[vr(X + 2), vr(X + 4)]),
                I(f"ds_write_b32 v{X}, v{E}", "dsw", rd=[vr(X), vr(E)])]
    C = X + 7
    build += rank(0) + rank(1)
    build += [I("s_cmp_gt_u32 s38, s35\n    s_cbranch_scc1 M_r3\nM_r3r:", "other", rd=[vr(R + 4, 2)]),
              ds_read("ds_read_b32", vr(C), vr(vD0))]
    build += place(0) + place(1)
    build += [V(f"v_lshrrev_b32 v{X}, 16, v{C}", [C], [X]),
              V(f"v_and_b32 v{C}, 0xffff, v{C}", [C], [C]),
              V(f"v_add_u32 v{C}, v{C}, v{X}", [C, X], [C]),
              V(f"v_cmp_lt_u32 s[34:35], 16, v{C}", [C], ["s[34:35]"]),
              salu("s_sub_u32 s46, s40, s48"),
              salu("s_add_u32 s46, s46, 56"),
              salu("s_lshr_b32 s46, s46, 6"),
              salu("s_mov_b32 s21, 0"),
              salu("s_and_b32 s27, s34, " + ("0" if o["exp"] & 4 else "0x1ff")),
              I("""s_cmp_gt_u32 s46, 4
    s_cselect_b32 s32, 1, s32
    s_or_b32 s32, s32, s33
    s_cbranch_scc1 M_dn
M_dnr:""", "other")]
    nov = 2 if o["diag"] else 3
    build += [ds_read("ds_read_b128", vr(R, 4), vr(vTQ), f"offset:{L_OVL}"),
              I(f"""s_bcnt1_i32_b32 s30, s27
    s_cmp_gt_u32 s30, {nov}
    s_cselect_b32 s34, 0, s27
    s_cselect_b32 s80, 0, 1""", "other"),
              I("s_getpc_b64 s[36:37]\nM_pc:", "other"),
              V(f"v_bfe_u32 v{X}, v{vL16}, 4, 4", [], [X])]
    for j in range(nov):
        build += [I(f"""s_ff1_i32_b32 s{81+j}, s34
    s_bitset0_b32 s34, s{81+j}
    s_mul_i32 s30, s{81+j}, 20""", "other"),
                  I(f"""s_add_u32 s31, s30, M_ovc{min(j,1)}-M_pc
    s_add_u32 s30, s30, M_ovl{j}-M_pc""", "other"),
                  I(f"""s_cmp_lg_u32 s34, 0
    s_cselect_b32 s30, s31, s30
    s_cmp_lt_i32 s{81+j}, 0
    s_cselect_b32 s30, M_ovn-M_pc, s30""", "other"),
                  I(f"""s_add_u32 s{72+2*j}, s36, s30
    s_addc_u32 s{73+2*j}, s37, 0""", "other")]
    build += [V(f"v_lshrrev_b32 v{X+2}, 18, v{R}", [R], [X + 2]),
              V(f"v_lshrrev_b32 v{X+3}, 18, v{R+2}", [R + 2], [X + 3]),
              V(f"v_and_b32 v{X+4}, 0x3fff, v{R}", [R], [X + 4]),
              V(f"v_and_b32 v{X+5}, 0x3fff, v{R+2}", [R + 2], [X + 5]),
              I(f"ds_write_b64 v{vTQ}, {vr(X+4,2)} offset:{L_OVT}", "dsw", rd=[vr(X + 4, 2)])]
    for j in range(nov):
        build += [V(f"v_lshl_or_b32 v{X+1}, s{81+j}, 6, v{X}", [X], [X + 1]),
                  V(f"v_cmp_eq_u32 s[44:45], v{X+2}, v{X+1}", [X + 1, X + 2], ["s[44:45]"]),
                  V(f"v_cmp_eq_u32 s[36:37], v{X+3}, v{X+1}", [X + 1, X + 3], ["s[36:37]"]),
                  V(f"v_cndmask_b32 v{vOV[j]}, 0, v{R+1}, s[44:45]", [R + 1, "s[44:45]"], [vOV[j]]),
                  V(f"v_cndmask_b32 v{vOV[j]+1}, 0, v{R+3}, s[36:37]", [R + 3, "s[36:37]"], [vOV[j] + 1])]
    seq += [bias_init(1, t) for t in range(9)]
    if not o["cearly"]:
        seq.append(I(count_in("M_cnt"), "other"))
    bar = I("s_barrier", "other", rd=[wfrag(0)])
    seq.append(bar)
    seq += bread_to(0, 0, pbuf(0, 0)) + bread_to(1, 0, pbuf(1, 0))
    assert e_cor + 9 * cper <= 81 and e_cor <= 73 - lag, e_cor
    build.append(tread(tord[0]))
    queue = [(j * (e_cor - 2) // len(build), ins) for j, ins in enumerate(build) if ins]
    build = [i for i in build if i]
    for k in range(9):
        e = e_cor + k * cper
        queue += [(e - 1, xad(0)), (e - 1, xad(1)), (e, gather(0)), (e, gather(1)), (e, xad(2)), (e, xad(3)), (e, gather(2)), (e, gather(3)), (e, aread(tord[k]))]
        queue += [(e, tread(tord[k + 1]))] if k < 8 else []
        if k == 0:
            og = ov_gather()
            queue.insert(len(build), (e - 2, og[0]))
            queue += [(e + 1, i) for i in og[1:]]
        if k == 1:
            queue += [(e + 2, ov_call(0))]
        queue += [(e + cper - 1, csmf(0, tord[k])), (e + cper - 1, csmf(1, tord[k]))]
    def pop(e, nv):
        out = []
        while queue and queue[0][0] <= e and queue[0][1].kind != "valu":
            out.append(queue.pop(0)[1])
        while queue and queue[0][0] <= e and queue[0][1].kind == "valu" and nv:
            out.append(queue.pop(0)[1])
            nv -= 1
        return out
    n2 = o["n2"]
    assert o["nA"] == 2 and o["nF"] == 2
    x2n = o["x2n"] or n2
    assert x2n == n2 or o["early"][0][0] == 1
    x2 = xdma(o, "s42", "s22")[:2 * x2n]
    for e in range(81):
        s, t = divmod(e, 9)
        seq.append(smf(0, s, t, pbuf(0, s)))
        if o["diag"] == 5 and e % 6 == 0:
            seq.append(I(f"s_memtime s[{SR5[1+e//6]}:{SR5[1+e//6]+1}]", "other"))
        if e + lag < 81:
            seq += wload(e + lag)
        if e + lag == o["xat"] and o["xtail"] and not o["ftouch"]:
            assert o["xat"] <= o["x2at"]
            seq += [salu(f"s_add_u32 m0, s29, {L_X + 1024}"), I("buffer_load_dword v0, s[8:11], 0 offen lds", "dma", rd=["v0"])]
        if e + lag >= o["x2at"] and (e + lag - o["x2at"]) % o["x2step"] == 0 and x2:
            seq += x2[:2]
            x2 = x2[2:]
        if e in o["tst"]:
            j = o["tst"].index(e)
            seq.append(I(f"buffer_store_dwordx4 v[12:15], v{vS4}, s[12:15], {('s24', 's59')[j % 2]} offen offset:{(j // 2) * 128} {o['stf']}", "store", rd=["v[12:15]"]))
        if s < 7:
            seq += pop(e, 1)
            seq.append(smf(1, s, t, pbuf(1, s)))
        if t == 0 and s < 8:
            seq += bread_to(0, s + 1, pbuf(0, s + 1))
        if t == 1 and s < 8:
            seq += bread_to(1, s + 1, pbuf(1, s + 1))
        seq += pop(e, 6)
        if e == 72 - lag:
            assert not any(i in build for _, i in queue)
    while queue:
        seq += pop(99, 9)
    if o["x2pre"] == 1:
        seq.append(I(f"s_cmp_lt_u32 s2, {NF}\n    s_cbranch_scc0 M_x4\n" + text(finalize(x2)) + "\nM_x4:", "other"))
    elif not o["x2pre"]:
        seq += x2
    if o["diag"] == 5:
        seq.append(I(f"s_memtime s[{SR5[15]}:{SR5[15]+1}]\n    s_waitcnt lgkmcnt(0)\n    s_mov_b32 s62, 16\n" + "\n".join(f"    v_writelane_b32 v255, s{SR5[q]}, {q}\n    v_writelane_b32 v255, s{SR5[q]}, {q+32}" for q in range(16)), "lgkm0"))
    elif o["diag"]:
        seq.append(I(stamp(o).strip(), "lgkm0"))
    seq.append(I(f"""s_cmp_gt_u32 s46, s80
    s_cbranch_scc1 M_slow
M_slowr0:""", "other"))
    seq.append(I(f"""s_cmp_eq_u32 s20, 0
    s_mov_b32 s31, {0x40000000 + L_MB + 8}
    s_cselect_b32 s30, {L_MB}, s31
    v_mov_b32 v{vAt}, s31
    v_writelane_b32 v{vAt}, s30, 0""", "other"))
    seq += sum(epilogue(0, ("s24", "s59"), o), [])
    seq += [salu("s_mov_b32 s89, 0"), salu(f"s_mov_b32 s101, {(768 + o['wth']) * SLOT}"), salu("s_mov_b32 s91, 0"), salu(f"s_mov_b32 s25, {SLOT}"),
            salu(f"s_add_u32 s90, s24, {bstride}"),
            salu(f"s_mov_b32 s28, s26"),
            salu("s_add_u32 s23, s24, 18432"),
            salu("s_cmp_lt_u32 s20, 2"),
            salu("s_cselect_b32 s66, s23, s24"),
            salu(f"s_cselect_b32 s99, s14, {HB}"),
            salu("s_add_u32 s66, s66, s95"),
            ]
    seq += [valu(f"v_add_u32 v{r}, {SLOT}, v{r}", [vr(r)], [vr(r)]) for r in (vRow, vB0, vB1)]
    A(text(finalize(seq, vm=True)))

    vers = [("L", o["win"], 0, False)] + [(f"E{j}", w_, 0, False) for j, (n_, w_) in enumerate(o["early"])]
    vers += ([("W", o["wwin"], 0, False)] if o["wwin"] else []) + ([("P", o["pwin"], 0, False)] if o["pn"] else []) + ([("Q", o["win"], 0, False)] if o["q"] else []) + [("F", o["fwin"], 0, True)]
    dispatch = f"s_cmp_lt_u32 s22, {XB}\n    s_cbranch_scc0 M_bF"
    if o["pn"]:
        dispatch += f"\n    s_cmp_ge_u32 s22, {(2048 - o['pn']) * SLOT}\n    s_cbranch_scc1 M_bP"
    if o["wwin"]:
        dispatch += "\n    s_cmp_eq_u32 s89, 0\n    s_cbranch_scc1 M_bE0\n    s_cmp_eq_u32 s89, 2\n    s_cbranch_scc1 M_bW"
    else:
        dispatch += "\n    s_cmp_eq_u32 s91, 1\n    s_cbranch_scc1 M_bE0" if o["e2"] else "".join(f"\n    s_cmp_lt_u32 s91, {n_}\n    s_cbranch_scc1 M_bE{j}" for j, (n_, w_) in enumerate(o["early"]))
    LPRE = []
    def version(vid, nm, wn, wns, final, resv=()):
        KS = [(0, 1, 2), (3, 4), (5, 6), (7, 8)]
        T9 = list(range(9))
        glist = [(1, KS[3], T9)] + [(0, ks, T9) for ks in KS]
        if final:
            glist += [(1, ks, [8, 0, 1, 2, 3]) for ks in KS] + [(1, ks, [4, 5, 6, 7]) for ks in KS]
        else:
            glist += [(1, ks, T9) for ks in KS[:3]]
        P = {k: o["f" + k] if final and o.get("f" + k) else o[k] for k in ("b0", "per", "e0", "slowat", "e1", "ov", "bar2", "gstep", "rstep")}
        b0, per = P["b0"], P["per"]
        glist = [(rb, ks, list(ts)) for rb, ks, ts in glist]
        cat = {}
        k = nxt = 0
        for rb, ks, ts in glist:
            fixed = set()
            for c in range(len(ts)):
                k += len(ks)
                if nxt < 9 and k >= b0 + per * (nxt + 1):
                    cat[k - 1] = (nxt, rb)
                    if o["cchain"] and tord[nxt] in ts and ts.index(tord[nxt]) not in fixed:
                        j = ts.index(tord[nxt])
                        ts[j], ts[c] = ts[c], ts[j]
                        fixed.add(c)
                    nxt += 1
        mains = []
        gstart = []
        for rb, ks, ts in glist:
            gstart.append(len(mains))
            mains += [smf(rb, s_, t, vBB + 8 * GBUF[s_]) for t in ts for s_ in ks]
        stream = []
        pos = {}
        cpos = {}
        for k in range(len(mains)):
            pos[k] = len(stream)
            stream.append(mains[k])
            if k in cat:
                nxt, rb = cat[k]
                stream.append(csmf(rb, tord[nxt]))
                cpos[nxt] = len(stream)
                stream.append(csmf(1 - rb, tord[nxt]))
        gp = Gaps(len(stream) + 40)
        gp.exact = o["exact"]
        for k in set(resv) - {c - 2 for c in cpos.values()}:
            gp.reserve(k)
        x = xch(o, "s66")
        top_reads = [x[0]]
        bar2 = I("s_barrier", "other", rd=[vr(vG, 4)])
        def greads(j):
            rb, ks, _ = glist[j % len(glist)]
            return sum([bread_to(rb, s_, vBB + 8 * GBUF[s_]) for s_ in ks], [])
        gp.chain(greads(1), 0, step=1)
        gp.nv[1] += [I(dispatch, "other"), I(f"M_b{nm}:", "label")]
        if final and o["nh"]:
            gp.nv[1] += [I(f"s_cmp_ge_u32 s24, {HB}\n    s_cbranch_scc1 M_bH", "other")]
        gp.res[1] += 2
        k = cpos[P["slowat"]]
        gp.nv[k] += [salu("s_cmp_gt_u32 s46, s80"), I("s_cbranch_scc1 M_slow", "other"), I(f"M_slowr{nm}:", "label")]
        gp.put(tread(tord[0]), 7)
        for t in range(9):
            gp.reserve(cpos[t] - 2)
            k = pos[b0] - 2 if t == 0 else cpos[t - 1] - 2
            kg = k + 2
            for j in range(4):
                k = gp.put(xad(j), k) + 1
            for j in range(4):
                kg = gp.put(gather(j), max(kg, k - 3 + j), 3)
                if j == (2 if o["exact"] else 0):
                    gp.put(aread(tord[t]), kg, 3)
                kg += P["gstep"] if j < 3 else 0
            if t < 8:
                gp.put(tread(tord[t + 1]), kg, 3)
        for j in range(1, len(glist) - (1 if final else 0)):
            r = greads(j + 1)
            if j == 4:
                hrel = r[4:]
                r = r[:4]
            if j == 8:
                gp.chain(r[4:], pos[gstart[6] + 4], 2, step=1)
                r = r[:4]
            if o["theta"] >= 0 and (j < 5 or not final):
                nxt_ = pos[gstart[j + 1] - 1] if j + 1 < len(glist) else pos[o["lastrd"]] + o["rlead"]
                gp.lds_chain(r, pos[gstart[j] - 1], nxt_ - o["rlead"], o["theta"], 2)
            else:
                gp.chain(r, pos[gstart[j] - 1], 2 if j < 5 or not final else 3, step=P["rstep"] if j < 5 or not final else 1)
        def win(lst):
            out = []
            for i in lst:
                if i.kind in ("store", "dma") and wn:
                    out.append(I("WIN", "wait"))
                out.append(i)
            return out
        def echain(g, k):
            st = [j for j, i in enumerate(g) if i.kind == "store"]
            if len(st) < 2 or final or not o["sgap"]:
                return gp.chain(win(g), k, 3)
            k1 = gp.chain(win(g[:st[0] + 1]), k, 3)
            k = gp.chain(g[st[0] + 1:st[1]] + g[st[1] + 1:st[1] + 3], k1, 3)
            k = gp.chain(win([g[st[1]]]), max(k, k1 + o["sgap"]), 3)
            return gp.chain(g[st[1] + 3:], k + 2, 3)
        gp.chain(win(x[1:]), o['xst'], 3)
        gp.put(bar2, P["bar2"])
        ovl = ov_gather()
        k = gp.put(ovl[0], pos[P["ov"][0]], 3)
        k = gp.chain(ovl[1:], max(k + 5, pos[P["ov"][1]]), 3)
        for u, g in enumerate(epilogue(1, ("s23", "s58"), o)):
            k = max(k, echain(g, pos[P["e1"][u]]))
        k = max(k + 6, pos[P["ov"][2]])
        while gp.load(k) > 0:
            k += 1
        ovchk = [ov_call(nm)]
        gp.nv[k].append(ovchk[0])
        gp.res[k] += 2
        gp.chain(hrel, max(k + 1, pos[P["ov"][3]]), 2, step=1)
        atom = I(f"buffer_atomic_add v0, v{vAt}, s[16:19], s92 offen sc0 sc1", "store", rd=["v0", vr(vAt)])
        dyn = not final and not (o["estat"] and nm[0] == "E")
        if not final and not dyn:
            krf = gp.put(salu(f"s_add_u32 s88, s22, {bstride}"), 9)
        if dyn:
            if o["nh"]:
                gp.nv[2] += [salu(f"s_cmp_lt_u32 s22, {HB}"), salu("s_cselect_b32 s30, 1, 0")]
            gp.put(valu("v_mov_b32 v0, " + ("s30" if o["nh"] else "1"), [], ["v0"]), 3)
            gp.chain(win([atom]), pos[o["claim"][0]], 2)
        awt = I("s_waitcnt vmcnt(0)", "wait")
        mbw = I(f"ds_write_b32 v{vAt}, v0", "dsw", rd=["v0", vr(vAt)], wr=["@mb"])
        bar3 = I("s_barrier", "other", rd=["@mb"])
        sel10 = salu(f"s_cselect_b32 s10, {XB}, 0")
        if dyn: gp.chain([awt, valu("v_mul_u32_u24 v0, s94, v0", ["v0"], ["v0"]), valu("v_add_u32 v0, s93, v0", ["v0"], ["v0"]),
                  ] + ([] if o["nh"] else [valu(f"v_min_u32 v0, {XB}, v0", ["v0"], ["v0"])]) + [
                  mbw, valu(f"v_mov_b32 v0, {L_MB}", [], ["v0"])], pos[o["claim"][1]], 3)
        if dyn:
            k = gp.chain([bar3, ds_read("ds_read_b32", "v0", "v0")], pos[o["claim"][2]], 3)
            k = gp.put(valu("v_readfirstlane_b32 s88, v0", ["v0"], ["s88"]), k + 5)
            if o["nh"]:
                k = gp.chain([salu(f"s_add_u32 s30, s88, {HB}"), salu("s_lshr_b32 s30, s30, 1"), salu("s_min_u32 s88, s88, s30"), salu("s_min_u32 s88, s88, s14")], k + 1, 3) + 1
                while gp.load(k, sel10) > 2:
                    k += 1
                gp.nv[k] += [salu(f"s_cmp_lt_u32 s22, {HB}"), salu("s_cselect_b32 s88, s88, s14")]
            krf = k
        for u, g in sorted(enumerate(epilogue(0, ("s24", "s59"), o, init=not final)), key=lambda z: z[0] != 2):
            echain(g, pos[P["e0"][u]])
        d = xdma(o, "s28", "s22")[2 * n2:] + xdma(o, "s28", "s88")[:2 * n2]
        gp.put(salu(f"s_mov_b32 s21, {vid}"), 8)
        kd = 0
        for j in range(0 if final else 9):
            if j == 9 - n2:
                kd = max(kd, krf) + 1
                while gp.load(kd, sel10) > 2:
                    kd += 1
                gp.nv[kd] += [salu("s_cmp_lt_u32 s88, s99"), sel10]
                if o["q"] and nm in "LQ":
                    kd += 1
                    while gp.load(kd) > 0:
                        kd += 1
                    gp.nv[kd] += [I("s_cmp_lt_u32 s88, s14\n    s_cbranch_scc0 M_q", "other"), I("M_q:" if nm == "Q" else "M_nq:", "label")]
                    gp.res[kd] += 2
            k = gp.put(d[2 * j], max(kd + 1, pos[o["pdma" if nm == "P" and o["pdma"] else "dma"][j]]), 2)
            kd = gp.chain(win([d[2 * j + 1]]), k if wn and o["exact"] else k + 1, 3)
        book = [salu(f"s_add_u32 s28, s28, {SLOT}"),
                salu(f"s_cmp_ge_u32 s28, {NSLOT*SLOT}"),
                salu(f"s_cselect_b32 s28, s26, s28"),
                salu(f"s_add_u32 s30, s25, {SLOT}"),
                salu(f"s_cmp_eq_u32 s30, {NSLOT*SLOT}"),
                salu(f"s_cselect_b32 s30, 0, s30"),
                salu(f"s_sub_u32 s31, s30, s25"),
                salu(f"s_mov_b32 s25, s30"),
                salu("s_mov_b32 s90, s22"),
                salu("s_mov_b32 s22, s88"),
                salu("s_add_u32 s91, s91, 1")] + ([
                salu(f"s_cmp_ge_u32 s91, {o['early'][0][0]}"),
                salu("s_cselect_b32 s89, 1, 0"),
                salu(f"s_cmp_ge_u32 s91, {o['wfrom']}"),
                salu("s_cselect_b32 s30, s101, -1"),
                salu("s_cmp_gt_u32 s88, s30"),
                salu("s_addc_u32 s89, s89, 0"),
                salu(f"s_add_u32 s101, s101, {256*SLOT}")] if o["wwin"] else []) + [
                salu("s_cmp_lt_u32 s20, 2"),
                salu("s_cselect_b32 s66, s23, s24"),
                salu("s_add_u32 s66, s66, s95")]
        if final:
            book = book[-3:] + [salu("s_add_u32 s23, s24, 18432"), salu("s_add_u32 s58, s24, 27648"), salu("s_add_u32 s67, s23, s95")]
            fl = o["fl"]
            xa, xb = xch(o, "s66", vT), xch(o, "s67", vT, 1024)
            barx = [I("s_barrier", "other", rd=["@x0"]), I("s_barrier", "other", rd=["@x2"])]
            k = gp.chain([barx[0], xa[0]], pos[fl[0]], 3)
            gp.put(xa[1], k + 6)
            ep = epilogue(1, ("s23", "s58"), o, init=False, xoff=1024)
            k = gp.chain(ep[2], pos[fl[1]], 3)
            k = gp.chain([barx[1], xb[0]], k + 4, 3)
            k += 6
            while gp.load(k) > 0:
                k += 1
            gp.nv[k] += [salu("s_cmp_lt_u32 s20, 2"), I("s_cbranch_scc0 M_fx", "other", rd=[vr(vT, 4)]), xb[1], I("M_fx:", "label")]
            gp.chain(ep[0], pos[fl[2]], 3)
            gp.chain(ep[1], pos[fl[3]], 3)
        kb = gp.chain(book, pos[o["fbook" if final else "book"]], 3)
        if not final: k = gp.chain([valu(f"v_add_u32 v{r}, s31, v{r}", [vr(r)], [vr(r)]) for r in (vRow, vB0, vB1)], max(kb + 1, pos[152]))
        body = []
        for k in range(len(stream) + 40):
            if k < len(stream):
                body.append(stream[k])
            else:
                assert final or not gp.gap(k)
            body += gp.gap(k)
        for j, i in enumerate([i for i in body if i.text == "WIN"]):
            i.text = f"s_waitcnt vmcnt({(wn * (j + 1)) // 10 - (wn * j) // 10 - 1})"
        if final:
            wr23 = body.index(book[3])
            assert all((j < wr23) == (i not in ep[0] + ep[1]) for j, i in enumerate(body) if i.kind == "store" and ("s23" in i.text or "s58" in i.text))
            assert body.index(book[2]) < body.index(xa[1]) and body.index(book[5]) < body.index(xb[1]) and body.index(x[1]) < body.index(book[1])
            assert max(j for j, i in enumerate(body) if "read2st64" in i.text) < body.index(xa[0]) and body.index(xa[1]) < body.index(xb[0])
            assert all(j < body.index(barx[0]) for j, i in enumerate(body) if i.kind == "dsw" and ("@", "@x2") not in i.wr)
        for r in (vRow, vB0, vB1) if not final else ():
            w = [j for j, i in enumerate(body) if ("v", r) in i.wr]
            u = [j for j, i in enumerate(body) if ("v", r) in i.rd]
            assert len(w) == 1 and max(u) == w[0], r
        for rb in range(2):
            for t in range(9):
                RR = regs(vr(vACC[rb] + 4 * t, 4))
                ev = "".join("I" if i.kind == "ds" else "M" if i.kind == "mfma" else "E" for i in body if (i.rd | i.wr) & RR and i.kind != "other")
                assert re.fullmatch("M{10}E+I?" if rb == 0 else "MME+IM{10}E+" if final else "MME+IM{8}", ev), (rb, t, ev)
        sl = [j for j, i in enumerate(body) if "M_slowr" in i.text][0]
        assert all(j < sl for j, i in enumerate(body) if i.kind == "ds" and i.wr & regs(vr(vACC[1], 36)))
        assert all(j > sl for j, i in enumerate(body) if i.kind == "valu" and i.rd & regs(vr(vACC[0], 36)))
        assert body[sl - 3] is stream[cpos[P["slowat"]]]
        dm = [j for j, i in enumerate(body) if i.kind == "dma"]
        lastdma = dm[8 - n2] if dm else 0
        if dm:
            assert [body[j] for j in dm] == d[1::2]
            assert lastdma < body.index(sel10) < dm[9 - n2] and body.index(d[2 * (9 - n2)]) < body.index(book[0])
            assert lastdma < body.index(book[8]) and body.index(sel10) < body.index(book[9])
            assert not dyn or body.index(mbw) < body.index(bar3)
            if dyn:
                ev = [i.text.split()[0] for i in body if ("v", 0) in i.rd | i.wr or i is awt]
                assert ev[:4] == ["v_mov_b32", "buffer_atomic_add", "s_waitcnt", "v_mul_u32_u24"] and ev[-4:] == ["ds_write_b32", "v_mov_b32", "ds_read_b32", "v_readfirstlane_b32"], ev
            for j in range(9):
                assert body.index(d[2 * j]) < dm[j] and (j == 0 or body.index(d[2 * j]) > dm[j - 1])
        hw = [j for j, i in enumerate(body) if i.kind == "ds" and "read_b" in i.text and i.wr & regs(vr(H, 8))]
        hm = [j for j, i in enumerate(body) if i.kind == "mfma" and i.rd & regs(vr(H, 8))]
        assert hm[8] < hw[2] and body.index(ovchk[-1]) < hw[3]
        assert all(j < body.index(ovchk[0]) for j, i in enumerate(body) if i.kind == "ds" and i.wr & regs(vr(vACC[1], 36)))
        assert all(j > body.index(bar2) for j, i in enumerate(body) if i.kind == "dsw")
        assert body.index(x[1]) < min(j for j, i in enumerate(body) if "read2st64" in i.text)
        for j, i in enumerate(body):
            if ("cselect" in i.text or "s_cbranch_scc" in i.text or "s_addc" in i.text) and "\n" not in i.text:
                p = max(q for q in range(j) if (body[q].kind == "salu" and "s_mov" not in body[q].text) or "\n" in body[q].text)
                assert body[p].text.startswith("s_cmp") and "\n" not in body[p].text, (i.text, body[p].text)
        isvm = lambda i: i.kind in ("dma", "store")
        if dyn: awt.text = f"s_waitcnt vmcnt({sum(isvm(i) for i in body[body.index(atom) + 1:body.index(awt)])})"
        nstrict = sum(isvm(i) for i in body[lastdma + 1:])
        if nm == "Q":
            c = [j for j, i in enumerate(body) if i.text == "M_q:"][0]
            assert sl > c or True
            body = body[:c] + [i for i in body[c:] if i not in d and not (i.kind == "wait" and "vmcnt" in i.text)]
            nstrict -= n2
            if o["qplain"]:
                for i in body[c:]:
                    if i.kind == "store":
                        i.text = i.text.replace(" sc1", "")
        if final and o["fplain"]:
            st = [i for i in body if i.kind == "store"]
            for i in st[:o["fplain"]]:
                i.text = i.text.replace(" sc1", "")
            if o["wb"]:
                j = body.index(st[o["wb"][0]])
                body.insert(j + 1, I(f"s_add_u32 s30, s24, s28\n    s_sub_u32 s30, s30, {(2048 - o['wb'][1]) * SLOT}\n    s_cmp_lt_u32 s30, {o['wb'][2] * SLOT}\n    s_cbranch_scc0 M_nwb\n    buffer_wbl2 sc1\nM_nwb:", "other"))
                body.insert(body.index(st[0]) + 1, salu("s_lshl_b32 s28, s20, 28"))
        if nm == "E0" and x2n > n2:
            for j in range(x2n - n2):
                q_ = body.index(d[2 * j + 1])
                w_ = max(z for z in range(q_) if body[z].kind == "wait" and "vmcnt" in body[z].text and body[z] is not awt)
                body = [i for z, i in enumerate(body) if z not in (q_, w_) and i is not d[2 * j]]
            if dyn:
                awt.text = f"s_waitcnt vmcnt({sum(isvm(i) for i in body[body.index(atom) + 1:body.index(awt)])})"
        seq = []
        seq.append(I("M_top:", "label"))
        if o["diag"] == 3:
            seq.append(I(stamp(o).strip(), "other"))
        seq.append(I("M_top1:", "label"))
        if o["diag"]:
            seq.append(I(stamp(o).strip(), "other"))
        seq.append(salu(f"s_add_u32 s23, s24, 18432"))
        seq.append(salu(f"s_add_u32 s58, s24, 27648"))
        seq.append(salu(f"s_mov_b32 s24, s90"))
        seq.append(salu(f"s_add_u32 s59, s90, 9216"))
        seq.append(I(f"s_waitcnt lgkmcnt(0)", "lgkm0"))
        seq.append(I("s_barrier", "other"))
        if o["diag"] == 3:
            seq.append(I(stamp(o).strip(), "other"))
        seq += top_reads
        seq += body
        if not final:
            seq.append(I(f"s_waitcnt vmcnt({nstrict})", "wait"))
            seq.append(I("s_branch M_top1", "other"))
        if o["diag"] == 4 and final:
            seq2, nm_, on = [], 0, False
            sr = list(range(32, 44, 2)) + [48, 50, 52, 60, 64, 98, 90, 88, 92, 96, 84, 86, 8, 10, 4, 6, 68, 70]
            st_ = o["dstep"]
            for i in seq:
                on = on or i.text == "M_bF:"
                if on and i.kind == "mfma":
                    if nm_ % st_ == 0:
                        seq2.append(i); seq2.append(I(f"s_memtime s[{sr[nm_//st_]}:{sr[nm_//st_]+1}]", "other")); nm_ += 1
                        continue
                    nm_ += 1
                seq2.append(i)
            j = (nm_ + st_ - 1) // st_
            seq2.append(I(f"s_memtime s[{sr[j]}:{sr[j]+1}]\n    s_waitcnt lgkmcnt(0)\n    v_mov_b32 v255, 0\n    s_mov_b32 s62, {j+1}\n" + "\n".join(f"    v_writelane_b32 v255, s{sr[q]}, {q}\n    v_writelane_b32 v255, s{sr[q]}, {q+32}" for q in range(j + 1)), "other"))
            seq = seq2
        out = finalize(seq, hoist=o["exact"])
        if o["exact"]:
            k, found = -1, set()
            for i in out:
                k += i.kind == "mfma"
                if i.kind == "wait" and "lgkm" in i.text and k >= 2:
                    found.add(k)
            if not found <= set(resv) and len(resv) < o["maxres"]:
                return version(vid, nm, wn, wns, final, tuple(found | set(resv)))
        COST[nm] = gap_cost(out)
        if o["cost"]:
            print(nm, "modelled loss", COST[nm], "reserved", len(resv), file=sys.stderr)
        cut = [j for j, i in enumerate(out) if i.text == f"M_b{nm}:"][0]
        if nm == "Q":
            c = [j for j, i in enumerate(out) if i.text == "M_q:"][0]
            norm = lambda l: re.sub(r"s_mov_b32 s21, \d+|(?<=M_ovr)[LQ]|(?<=M_slowr)[LQ]", "", text(l))
            assert norm(out[cut + 1:c]) == norm(LPRE[0])
            return out[:cut], out[c:c + 1] + [salu(f"s_mov_b32 s21, {vid}")] + out[c + 1:], nstrict
        if nm == "L" and o["q"]:
            LPRE.append(out[cut + 1:[j for j, i in enumerate(out) if i.text == "M_nq:"][0]])
        return out[:cut], out[cut:], nstrict
    def half(vid):
        TA, TB = [8, 0, 1, 2, 3], [4, 5, 6, 7]
        glist = [(1, {7: 3, 8: 4}, list(range(9))), (0, {0: 0, 1: 1, 2: 2}, TA), (0, {3: 3, 4: 4}, TA), (0, {5: 0, 6: 1}, TA), (0, {7: 3, 8: 4}, TA),
                 (0, {0: 0, 1: 1}, TB), (0, {2: 3, 3: 4}, TB), (0, {4: 0, 5: 1}, TB), (0, {6: 3, 7: 4, 8: 2}, TB)]
        b0, per, hp = o["hb0"], o["hper"], o["hp"]
        to = [8, 0, 1, 2, 3, 4, 5, 6, 7]
        stream, pos, cpos, gstart, nxt, k = [], {}, {}, [], 0, 0
        for rb, kb_, ts in glist:
            gstart.append(k)
            for t in ts:
                for s_, b_ in kb_.items():
                    pos[k] = len(stream)
                    stream.append(smf(rb, s_, t, vBB + 8 * b_))
                    k += 1
                if nxt < 9 and k >= b0 + per * (nxt + 1):
                    cpos[nxt] = len(stream)
                    stream.append(csmf(0, to[nxt]))
                    nxt += 1
        assert nxt == 9
        gp = Gaps(len(stream) + 60)
        greads = lambda j: sum([bread_to(glist[j][0], s_, vBB + 8 * b_) for s_, b_ in glist[j][1].items()], [])
        x = xch(o, "s66")
        gp.chain(greads(1), 0, step=1)
        gp.nv[1] += [I(dispatch, "other"), I("M_bH:", "label")]
        gp.res[1] += 2
        gp.put(tread(to[0]), 2)
        gp.put(x[1], 5)
        gp.put(salu(f"s_mov_b32 s21, {vid}"), 6)
        slow = I("s_cbranch_scc1 M_slow", "other")
        gp.nv[cpos[hp[0]]] += [salu("s_cmp_gt_u32 s46, s80"), slow, I("M_slowrH:", "label")]
        for t in range(9):
            gp.reserve(cpos[t] - 1)
            k = pos[b0] - 1 if t == 0 else cpos[t - 1] - 1
            kg = k + 1
            for j in range(4):
                k = gp.put(xad(j), k) + 1
                kg = gp.put(ds_read("ds_read_b32", vr(vG + 2 * j), vr(vT + j)), max(kg, k), 3)
                if j == 0:
                    gp.put(aread(to[t]), kg, 3)
            if t < 8:
                gp.put(tread(to[t + 1]), kg, 3)
        for j in range(1, len(glist) - 1):
            gp.chain(greads(j + 1)[:4], pos[gstart[j] - 1], 3, step=1)
        bar2 = I("s_barrier", "other", rd=[vr(vG, 4)])
        gp.put(bar2, 6)
        ovl = ov_gather()
        k = gp.put(ovl[0], pos[33], 3)
        k = gp.chain(ovl[1:], k + 5, 3) + 5
        e1 = epilogue(1, ("s23", "s58"), o, init=False)
        for u in (2, 0, 1):
            k = max(k, gp.chain(e1[u], pos[hp[1 + u]], 3) + 1)
        while gp.load(k) > 1 or gp.v[k] is not None:
            k += 1
        call = ov_call("H")
        gp.nv[k].append(call)
        gp.res[k] += 2
        gp.chain(greads(8)[4:], k + 1, 3, step=1)
        book = [salu("s_cmp_lt_u32 s20, 2"), salu("s_cselect_b32 s66, s23, s24"), salu("s_add_u32 s66, s66, s95")]
        gp.nv[7] = book + gp.nv[7]
        e0 = epilogue(0, ("s24", "s59"), o, init=False)
        k0 = max(k + 5, cpos[hp[0]] + 1, pos[hp[4]])
        k = gp.chain(e0[2], k0, 3)
        xa = xch(o, "s66", vACC[1])
        barx = I("s_barrier", "other", rd=["@x0"])
        k = gp.chain([barx, xa[0]], k + 4, 3)
        gp.put(xa[1], k + 6)
        k = gp.chain(e0[0], k0, 3)
        gp.chain(e0[1], max(k + 1, len(stream) - 3), 3)
        body = []
        for k in range(len(stream) + 60):
            body += ([stream[k]] if k < len(stream) else []) + gp.gap(k)
        for rb in range(2):
            for t in range(9):
                RR = regs(vr(vACC[rb] + 4 * t, 4))
                ev = "".join("I" if i.kind == "ds" else "M" if i.kind == "mfma" else "E" for i in body if (i.rd | i.wr) & RR and i.kind != "other")
                assert re.fullmatch("M{10}E+" if rb == 0 else "MME+(IE)?", ev), (rb, t, ev)
        ix = lambda l: [body.index(i) for i in l]
        for c in (slow, call):
            assert max(ix(sum(e1, []))) < body.index(c) < min(ix(sum(e0, []) + xa))
        hw = [j for j, i in enumerate(body) if i.kind == "ds" and "read_b" in i.text and i.wr & regs(vr(H, 8))]
        hm = [j for j, i in enumerate(body) if i.kind == "mfma" and i.rd & regs(vr(H, 8))]
        assert hm[4] < hw[2] and body.index(call) < hw[3] and hw[4] < hm[5]
        assert body.index(x[1]) < body.index(book[1]) and body.index(x[1]) < min(j for j, i in enumerate(body) if "read_b32" in i.text)
        assert all(body.index(bar2) < j < body.index(barx) for j, i in enumerate(body) if i.kind == "dsw")
        out = finalize([I("s_waitcnt lgkmcnt(0)", "lgkm0"), x[0]] + body + [I("s_branch M_done", "other")])
        COST["H"] = gap_cost(out)
        if o["cost"]:
            print("H modelled loss", COST["H"], file=sys.stderr)
        cut = [j for j, i in enumerate(out) if i.text == "M_bH:"][0]
        return out[:cut], out[cut:]
    built = [version(j + 1, *v) for j, v in enumerate(vers)]
    assert all(text(h[3:]) == text(built[0][0][3:]) for h, _, _ in built)
    A(text(built[0][0]))
    for _, bd, _ in built[:-1]:
        A(text(bd))
    if o["nh"]:
        vers.append(("H",))
        hh, hb = half(len(vers))
        assert text(built[0][0]).endswith(text(hh[1:]))
        A(text(hb))
    A(text(built[-1][1]))
    A("M_done:")
    A(stamp(o))
    A(stamp_out(o))
    A("M_end:\n    s_endpgm")
    if o["pp"]:
        A("M_pf_pp:")
        for a_, b_ in [(vG + 4, vG + 7), (vG + 7, vG + 4)] * o["pp"]:
            A(f"""{poll(o, a_)}
    s_waitcnt vmcnt(1)
    v_readfirstlane_b32 s30, v{b_}
    s_nop 0
    s_sub_u32 s30, s30, s100
    s_cmp_eq_u32 s30, {NARR}
    s_cbranch_scc1 M_pf_ok""")
    A(spin_out(o, "M_pf", "s100", NARR, "s96"))
    A("M_r3:")
    A(text(finalize(rank(2) + place(2))))
    A("""    s_cmp_gt_u32 s38, s39
    s_cselect_b32 s32, 1, s32
    s_branch M_r3r""")
    A("M_dn:\n    s_mov_b32 s27, 0\n    s_mov_b32 s46, 0x80000000")
    for j in range(4):
        A(f"    v_mov_b32 v{vG+j}, 0")
    for t in range(9):
        A(f"    ds_write_b128 v{vTA}, {vr(vG,4)} offset:{t*1024}")
    A("    s_waitcnt lgkmcnt(0)\n    s_branch M_dnr")
    def ret(lab, lab0):
        return "".join(f"    s_cmp_eq_u32 s21, {j+1}\n    s_cbranch_scc1 {lab}{v[0]}\n" for j, v in enumerate(vers) if any(f"{lab}{v[0]}:" in x for x in L)) + f"    s_branch {lab0}"
    def ovtile(t, E, G, a):
        return f"""    v_lshrrev_b32 v{a}, 18, v{E}
    v_lshrrev_b32 v{a+1}, 18, v{E+2}
    v_or_b32 v{vA+1}, {t << 6}, v{vA}
    v_cmp_eq_u32 s[44:45], v{a}, v{vA+1}
    v_cmp_eq_u32 s[54:55], v{a+1}, v{vA+1}
    s_nop 0
    v_cndmask_b32 v{a}, 0, v{E+1}, s[44:45]
    v_cndmask_b32 v{a+1}, 0, v{E+3}, s[54:55]
    s_nop 1
    v_smfmac_f32_16x16x32_bf16 {vr(vACC[0]+4*t,4)}, {vr(a,2)}, {vr(G,4)}, v{vCI}
    v_smfmac_f32_16x16x32_bf16 {vr(vACC[1]+4*t,4)}, {vr(a,2)}, {vr(G,4)}, v{vCI} abid:2"""
    for kind, j in (("c", 0), ("l", 0), ("c", 1), ("l", 1), ("l", 2)):
        A(f"M_ov{kind}{j}:")
        for t in range(9):
            A(f"""    v_smfmac_f32_16x16x32_bf16 {vr(vACC[0]+4*t,4)}, {vr(vOV[j],2)}, {vr(H,4)}, v{vCI}
    v_smfmac_f32_16x16x32_bf16 {vr(vACC[1]+4*t,4)}, {vr(vOV[j],2)}, {vr(H,4)}, v{vCI} abid:2
    s_setpc_b64 {f"s[{74+2*j}:{75+2*j}]" if kind == "c" else "s[78:79]"}""")
    A("M_ovn:\n    s_setpc_b64 s[78:79]")
    G = vG
    A(f"""M_slow:
    s_bitcmp1_b32 s46, 31
    s_cbranch_scc1 M_dense
    s_mov_b32 s56, s80
M_sl:
    s_lshl_b32 s57, s56, 6
    v_add_u32 v{vA}, s57, v{vTQ}
    ds_read_b128 {vr(G+4,4)}, v{vA} offset:{L_OVL}
    s_waitcnt lgkmcnt(0)
    v_and_b32 v{vA}, 0x3fff, v{G+4}
    v_and_b32 v{vA+1}, 0x3fff, v{G+6}
    v_xad_u32 v{vA}, v{vA}, v{vXor}, v{vRow}
    v_xad_u32 v{vA+1}, v{vA+1}, v{vXor}, v{vRow}
    ds_read2st64_b32 {vr(G,2)}, v{vA} offset0:0 offset1:72
    ds_read2st64_b32 {vr(G+2,2)}, v{vA+1} offset0:0 offset1:72
    v_subrev_u32 v{vA}, s29, v{vTA}
    v_bfe_u32 v{vA}, v{vA}, 4, 4
    s_waitcnt lgkmcnt(0)""")
    for t in range(9):
        A(f"""    s_bitcmp1_b32 s27, {t}
    s_cbranch_scc0 M_sle{t}
{ovtile(t, G + 4, G, vA + 2)}
M_sle{t}:""")
    A(f"""    s_add_u32 s56, s56, 1
    s_cmp_lt_u32 s56, s46
    s_cbranch_scc1 M_sl
M_slx:
    s_nop 7
{ret("M_slowr", "M_slowr0")}
M_dense:""")
    for rb in range(2):
        A(f"""    s_mul_i32 s57, s20, {81*1024}
    s_add_u32 s57, s57, {EFB}
    s_mov_b32 s56, 0
    v_mov_b32 v54, v{vB0}
    v_mov_b32 v55, v{vB1}
    v_subrev_u32 v252, s29, v{vTA}
M_dn{rb}:
    ds_read_b128 {vr(G,4)}, v54 offset:{rb*18432}
    ds_read_b128 {vr(G+4,4)}, v55 offset:{rb*18432}
    v_add_u32 v54, 1024, v54
    v_add_u32 v55, 1024, v55""")
        for t in range(9):
            A(f"""    buffer_load_dwordx4 {vr(vA,4)}, v252, s[16:19], s57 offen sc1
    s_add_u32 s57, s57, 1024
    s_waitcnt vmcnt(0) lgkmcnt(0)
    v_smfmac_f32_16x16x64_bf16 {vr(vACC[rb]+4*t,4)}, {vr(vA,4)}, {vr(G,8)}, v{vCI}""")
        A(f"""    s_add_u32 s56, s56, 1
    s_cmp_lt_u32 s56, 9
    s_cbranch_scc1 M_dn{rb}""")
    A("    s_branch M_slx")
    A("M_codeend:")
    return "\n".join(L)

def gen(**kw):
    o = dict(DEF)
    o.update(kw)
    hdr = f"""; out = x @ prune_2of4(w) + b   (bf16, M=65536 K=576 N=576); generated by dev/gen6.py
; @launch grid=(256,1,1) block=(256,1,1) lds={LDS_BYTES}
.amdgcn_target "amdgcn-amd-amdhsa--gfx950"
.text
.globl {NAME}_kernel
"""
    kd = f"""
.section .rodata,"a"
.p2align 6
.amdhsa_kernel {NAME}_kernel
  .amdhsa_next_free_vgpr 512
  .amdhsa_next_free_sgpr 102
  .amdhsa_accum_offset 256
  .amdhsa_group_segment_fixed_size 0
  .amdhsa_kernarg_size 48
  .amdhsa_user_sgpr_count 2
  .amdhsa_user_sgpr_kernarg_segment_ptr 1
  .amdhsa_system_sgpr_workgroup_id_x 1
  .amdhsa_float_denorm_mode_32 3
.end_amdhsa_kernel
"""
    src = hdr + gen_main(o) + kd
    return "\n".join(l for l in src.split("\n") if l.strip()) + "\n"

if __name__ == "__main__":
    kw = {}
    out = f"/code/{NAME}.s"
    for a in sys.argv[1:]:
        if "=" in a:
            k, v = a.split("=", 1)
            assert k in DEF, k
            kw[k] = int(v) if v.lstrip("-").isdigit() else (eval(v) if v.startswith("[") else v.replace("+", " "))
        else:
            out = a
    open(out, "w").write(gen(**kw))
    print("wrote", out)
```

```python
import sys
from asmlib import *

NAME = "standalone__structured_sparse_n_m__ragged"
XB = 16 * 4096 * 576 * 2
WSB = 301989888
WSTR = 96 * 1024
U_REC, U_I8 = 0, 4
RA, RB = 176, 96
def u_idx(s): return 6 + 10 * s
def u_frag(s, t): return 7 + 10 * s + t
EFB = 4 * WSTR
CTR = EFB + 324 * 1024
SIG = CTR + 1024
WS_USED = SIG + 256 * 256
NF = 81
NARR = 27
CNT_F = 0
SLOT = 36864
NSLOT = 3
LTAB = NSLOT * SLOT
L_T0, L_OVL, L_CNT, L_BIAS, L_X = 9216, 9792, 10112, 10240, 10816
LTABW = L_X + 2048
L_MB = LTAB + 4 * LTABW
LDS_BYTES = L_MB + 16
RAW = 2 * SLOT
R_CNT = RAW + 8192
MDUM = 1 << 30
SPIN = 1 << 17

DEF = dict(xnt="nt", stf="sc1", inter=1, diag=0, nA=2, nF=2, lag=28, ecor=36, cper=5,
           gstep=1, book=132, b0=24, per=12, tord=[3, 1, 2, 0, 8, 7, 5, 6, 4], e1=[10, 44, 36], e0=[106, 137, 102],
           dma=[14, 38, 48, 74, 86, 102, 114, 138, 146], nostore=0, wsc="sc1", chain=1, win=70, rstep=1, slowat=5,
           bar2=21, claim=[8, 72, 84], touch=24, ctouch=2, xtail=16, pw=3, nfast=6, testfb=0, ov=[46, 58, 70, 91], pf="atom", slp=4, R=16, xwin=0, fx=3, fx2=0, fxb=0, dstep=9, cearly=1, sgap=0, e2=1, x2n=0, x2step=2, pp=0, blate=1, fpre=0, tpos=12, qplain=0, fplain=0, wb=[], ftouch=0, ftn=81, q=1, nh=0, hb0=8, hper=9, hp=[6, 10, 30, 22, 66], estat=0, fe1=0, fov=0, fbar2=0, fgstep=0, frstep=0, exact=0, maxres=30, cost=0, cchain=1, align=1, toob=1, pn=0, pwin=0, pdma=[], xw=[20, 34, 48, 62, 78, 94, 108, 122, 136], wwin=0, wth=160, wfrom=1, theta=16, rlead=9, lastrd=150, xa=5, tst=[], exp=0, xfull=0, xat=81, early=[(2, 65)], fwin=0, xA=0, n2=4, x2at=88, nsh=2, xst=6, x2pre=0, stail=0, sfull=0, sdist=[2, 2, 2, 2, 2, 2, 2, 1, 17], fb0=22, fper=11, fe0=[100, 124, 104], fslowat=5, fbook=84, fl=[116, 140, 147, 179])

DIAG = 1 << 20
def stamp(o, first=False, cond=False):
    if not o["diag"]:
        return ""
    if cond:
        return "    s_cmp_lg_u32 s21, 1\n    s_cbranch_scc1 D_c\n" + stamp(o) + "\n" + stamp(o) + "\nD_c:"
    L = []
    if first:
        L += ["    s_mov_b32 s62, 0", "    v_mov_b32 v255, 0"]
    L += ["    s_mov_b32 s63, m0", "    s_memrealtime s[60:61]", "    s_memtime s[64:65]", "    s_waitcnt lgkmcnt(0)", "    s_mov_b32 m0, s62", "    v_writelane_b32 v255, s60, m0",
          "    s_add_u32 m0, s62, 32", "    v_writelane_b32 v255, s64, m0", "    s_add_u32 s62, s62, 1", "    s_mov_b32 m0, s63"]
    return "\n".join(L)
def stamp_out(o):
    if not o["diag"]:
        return ""
    L = ["    s_mov_b64 exec, -1", "    s_waitcnt vmcnt(0)", stamp(o), f"    s_mov_b32 s18, {WSB}",
         "    s_lshl_b32 s60, s2, 2", "    s_add_u32 s60, s60, s20", "    s_lshl_b32 s60, s60, 8", f"    s_add_u32 s60, s60, {DIAG}",
         "    v_mbcnt_lo_u32_b32 v0, -1, 0", "    v_mbcnt_hi_u32_b32 v0, -1, v0", "    v_lshlrev_b32 v0, 2, v0",
         "    buffer_store_dword v255, v0, s[16:19], s60 offen"]
    return "\n".join(L)

def lut_tables():
    l64 = 0
    l32 = 0
    for nk in range(16):
        keep = [j for j in range(4) if not (nk >> j) & 1]
        e = 0
        if len(keep) >= 2:
            ia, ib = keep[-2], keep[-1]
            for j in keep[:-2]:
                assert j < 2
                e |= 1 << j
        elif len(keep) == 1:
            ib = keep[0]
            ia = (ib + 1) % 4
            if ia > ib:
                ia, ib = ib, ia
        else:
            ia, ib = 0, 1
        l64 |= (ia | ib << 2) << (4 * nk)
        l32 |= e << (2 * nk)
    return l64, l32

vB0, vB1, vXor, vRow, vDma, vS4, vS2, vTA, vTQ, vCI, vL16 = range(1, 12)
vIDX = 12
vXw, vL8, vD1 = 53, 54, 55
vD0 = 121
vR = 92
vAt = vL16
vWF = 56
vACC = (124, 160)
vBB = 196
vT, vA, vG = 236, 240, 244
vOV = (54, 252, 254)
L_OVT = L_OVL + 264
GROUPS = [(0, (0, 1, 2)), (0, (3, 4)), (0, (5, 6)), (0, (7, 8)), (1, (0, 1, 2)), (1, (3, 4)), (1, (5, 6)), (1, (7, 8))]
GBUF = {0: 0, 1: 1, 2: 2, 3: 3, 4: 4, 5: 0, 6: 1, 7: 3, 8: 4}

def slot_luts():
    lt = ll = 0
    for p in range(16):
        r = p if p < 8 else 15 - p
        qb = 2 * (r >> 2) + (p >> 3)
        jj = r & 3
        lt |= (qb * 4 + jj) << (4 * p)
        ll |= (((jj // 2) * 2 + qb // 2) * 4 + (qb % 2) * 2 + jj % 2) << (4 * p)
    return lt, ll

def poll(o, v):
    if o["pf"] != "atom":
        return f"    buffer_load_dword v{v}, off, s[16:19], s96 {o['pf']}"
    return f"""    v_mov_b32 v{v}, 0
    s_mov_b64 exec, 1
    buffer_atomic_add v{v}, off, s[16:19], s96 sc0 sc1
    s_mov_b64 exec, -1"""

def kwait(o, first=""):
    return f"""    s_waitcnt lgkmcnt(0)
    s_mov_b64 s[4:5], s[74:75]
{first}
    s_mov_b64 s[16:17], s[82:83]
    s_mov_b64 s[8:9], s[72:73]
    s_mov_b64 s[84:85], s[76:77]
    s_mov_b64 s[68:69], s[80:81]
    ; what the arrival counter this wave will poll holds before this launch adds to it
{poll(o, vCI)}"""

def stail(o):
    c = o["stail"]
    if not c:
        return ""
    J = 9 * c
    mg = ((1 << 20) + J - 1) // J
    assert all((e * mg) >> 20 == e // J for e in range(700)) and 5 * J <= 700
    return f"""    s_mul_i32 s30, s20, {256 - NF}
    s_add_u32 s30, s30, s2
    s_sub_u32 s30, s30, {NF}
    s_min_u32 s30, s30, {5*J - 1}
    s_mul_i32 s31, s30, {mg}
    s_lshr_b32 s31, s31, 20                   ; row r holds line r-1 in its first c*r columns, then line 8-r
    s_mul_i32 s32, s31, {J}
    s_sub_u32 s30, s30, s32
    s_mul_i32 s32, s31, {c}
    s_sub_u32 s33, s30, s32
    s_sub_u32 s34, s31, 1
    s_sub_u32 s31, 8, s31
    s_cmp_lt_u32 s30, s32
    s_cselect_b32 s30, s30, s33
    s_cselect_b32 s31, s34, s31
    s_sub_u32 s30, {2047 - o["sfull"]}, s30
    s_mul_i32 s30, s30, {SLOT}
    s_lshl_b32 s31, s31, 7
    s_add_u32 s33, s30, s31"""

def biasloads():
    return "\n".join([f"    buffer_load_dwordx4 {vr(vBB+4*u,4)}, v25, s[84:87], s28 offen offset:{u*64}" for u in range(4)]
                     + [f"    buffer_load_dwordx2 {vr(vBB+16,2)}, v26, s[84:87], s97 offen offset:1024"])

def fsetup(o, l64):
    l = f"""    s_lshl_b32 s34, s31, 2
    s_add_u32 s34, s34, s20
    s_lshr_b32 s35, s20, 1
    s_lshl_b32 s35, s35, 6
    s_and_b32 s36, s20, 1
    s_lshl_b32 s36, s36, 3
    s_add_u32 s35, s35, s36
    s_lshl_b32 s36, s20, 5
    s_mul_i32 s39, s32, 10240
    s_add_u32 s39, s39, {u_idx(0)*1024}
    s_lshl_b32 s40, s34, 1
    s_add_u32 s40, s40, s39
    s_lshl_b32 s38, s32, 1
    s_cmp_eq_u32 s32, 8
    s_cselect_b32 s38, 1024, s38
    s_add_u32 s38, s38, {U_I8*1024}
    s_cmp_lt_u32 s33, 8
    s_cselect_b32 s34, s34, 8                 ; t
    s_cselect_b32 s35, s35, s36               ; byte column of the tile
    s_cselect_b32 s36, 4, 3                   ; log2 distance of its 4-column runs
    s_cselect_b32 s40, s40, s38
    s_cselect_b32 s46, 0, s20                 ; list number
    s_cselect_b32 s47, {RA//8}, {RB//8}                  ; entries incl. the header
    s_add_u32 s40, s40, s48                   ; index word
    s_lshl_b32 s38, s34, 10
    s_add_u32 s39, s39, s38
    s_add_u32 s39, s39, s48
    s_add_u32 s39, s39, 1024                  ; fragment
    v_and_b32 v15, 3, v14
    v_lshlrev_b32 v15, s36, v15
    v_add_u32 v15, s35, v15
    v_lshrrev_b32 v16, 3, v14
    v_lshlrev_b32 v16, 4, v16
    v_xor_b32 v15, v15, v16
    v_lshrrev_b32 v16, 2, v14
    v_lshl_add_u32 v16, v13, 4, v16
    v_lshl_add_u32 v15, v16, 7, v15
    v_add_u32 v24, {RAW}, v15
    v_xor_b32 v27, 32, v24
    v_xor_b32 v28, 64, v24
    v_xor_b32 v29, 0x60, v24
    s_lshl_b32 s31, s46, 2
    s_add_u32 s31, s31, {R_CNT}
    v_mov_b32 v60, s31
    v_mov_b32 v61, 1
    ds_write_b32 v60, v61                     ; next free entry (0 is the header)
    s_mul_i32 s49, s30, 81
    s_mul_i32 s31, s32, 9
    s_add_u32 s49, s49, s31
    s_add_u32 s49, s49, s34
    s_lshl_b32 s49, s49, 10
    s_add_u32 s49, s49, {EFB}
    s_lshl_b32 s31, s34, 24
    s_lshl_b32 s38, s32, 10
    s_add_u32 s31, s31, s38
    v_lshlrev_b32 v31, 18, v14
    v_lshl_add_u32 v31, v13, 5, v31
    v_add_u32 v31, s31, v31                   ; record entry of group 0
    s_mov_b32 s50, {l64 & 0xffffffff}
    s_mov_b32 s51, {l64 >> 32}
    s_mov_b32 s52, 0x00010001
    s_mov_b32 s53, 0x00200010
    s_mov_b32 s38, 0x0202
    s_mul_i32 s57, s30, {o['R']*256}
    s_add_u32 s57, s57, {SIG}
    s_cmp_eq_u32 s33, 8
    s_cselect_b32 s56, 0, s20                 ; line 8: every wave signals its own group
    s_cmp_eq_u32 s20, 0
    s_cselect_b32 s98, 1, 0                   ; this wave still has to add to the zero-based fallback counter
    v_add_u32 v74, {R_CNT + 64}, v{vL8}
    v_lshl_add_u32 v73, s20, 1, v74
    v_mov_b32 v41, 0x01000100
    v_mov_b32 v40, 0
    v_mov_b32 v63, -2.0                       ; header of an overflowed record""".split("\n")
    n = o["fpre"]
    while n < len(l) and ("cselect" in l[n] or "s_bfm" in l[n]):
        n += 1
    return "\n".join(l[:n]), "\n".join(l[n:])

def gen_ftask(o, bstride):
    L = []
    A = L.append
    l64, l32 = lut_tables()
    n1 = o["fx"]
    d = xdma(o, "s42", "s22")
    nb = o["fxb"]
    db = d[2 * n1:2 * (n1 + nb)]
    d2 = d[2 * (n1 + nb):]
    raw = f"""    buffer_load_dwordx4 v{vDma}, s[4:7], s54 offen lds
    s_add_u32 m0, m0, 4096
    s_mov_b32 s45, 0
    buffer_load_dwordx4 v{vDma}, s[4:7], s55 offen lds"""
    A(f"""    s_mul_i32 s32, s2, 57
    s_lshr_b32 s32, s32, 9                    ; k step
    s_mul_i32 s33, s32, 9
    s_sub_u32 s33, s2, s33
    s_mul_i32 s54, s32, {64*1152}
    s_lshl_b32 s35, s33, 7
    s_add_u32 s54, s54, s35
    s_add_u32 s55, s54, {32*1152}
    s_lshl_b32 s36, s20, 10
    s_add_u32 m0, s36, {RAW}
    s_lshr_b32 s30, s33, 1
    s_and_b32 s31, s33, 1
    s_lshl1_add_u32 s37, s32, s31
    s_mul_i32 s37, s37, {RA}
    s_mul_i32 s38, s32, {RB}
    s_add_u32 s38, s38, {18*RA}
    s_cmp_lt_u32 s33, 8
    s_cselect_b32 s30, s30, s20               ; w
    s_cselect_b32 s37, s37, s38
    s_cselect_b32 s44, {(1 << (RA//16)) - 1}, {(1 << (RB//16)) - 1}
    s_cselect_b32 s45, s20, 3
    s_cmp_eq_u32 s45, 3
    s_cselect_b32 s99, {WS_USED}, 0
    s_mul_i32 s48, s30, {WSTR}
    s_add_u32 s37, s37, s48
    v_mov_b32 v44, 2.0
    v_mov_b32 v45, 0
    v_mov_b32 v46, 2.0
    v_mov_b32 v47, 0
{fsetup(o, l64)[0]}
{kwait(o, raw)}
    s_mov_b64 exec, s[44:45]
    s_mov_b32 s18, s99
    buffer_store_dwordx4 v[44:47], v{vL16}, s[16:19], s37 offen sc1
    s_mov_b32 s18, {WS_USED}
    s_mov_b64 exec, -1
{biasloads() if not o["blate"] else ""}
{text(finalize(d[:2*n1]))}
{fsetup(o, l64)[1]}
{stamp(o) if o["diag"] == 2 else ""}
    s_waitcnt vmcnt({7 + n1 - 5 * o['blate']}) lgkmcnt(0)
{stamp(o) if o["diag"] == 2 else ""}
    s_barrier
    ds_read_b64_tr_b16 v[16:17], v24
    ds_read_b64_tr_b16 v[18:19], v27 offset:512
    ds_read_b64_tr_b16 v[20:21], v28 offset:1024
    ds_read_b64_tr_b16 v[22:23], v29 offset:1536
{text(finalize(db))}""")
    for g in range(4):
        a = 16 + 2 * g
        A(f"""    s_waitcnt lgkmcnt({3-g})
    v_and_b32 v44, 0x7fff7fff, v{a}
    v_and_b32 v45, 0x7fff7fff, v{a+1}
    v_pk_max_u16 v46, v44, v45
    v_pk_min_u16 v47, v44, v45
    v_pk_min_u16 v46, v46, v46 op_sel:[0,1] op_sel_hi:[1,0]
    v_pk_max_u16 v47, v47, v47 op_sel:[0,1] op_sel_hi:[1,0]
    v_pk_max_u16 v46, v46, s52
    v_pk_max_u16 v46, v46, v47
    v_pk_sub_i16 v44, v44, v46
    v_pk_sub_i16 v45, v45, v46
    v_pk_ashrrev_i16 v44, 15, v44 op_sel_hi:[0,1]           ; all ones where dropped
    v_pk_ashrrev_i16 v45, 15, v45 op_sel_hi:[0,1]
    v_alignbit_b32 v47, -1, v44, 16
    v_alignbit_b32 v46, v45, v45, 16
    v_and_b32 v48, 0x00080004, v44
    v_bitop3_b32 v46, v45, v46, v47 bitop3:0xe8
    v_and_or_b32 v{64+g}, v45, s53, v48
    v_bitop3_b32 v{36+g}, v{a}, v44, v46 bitop3:0x10
    v_min_u32 v{68+g}, 1, v{36+g}""")
    A(f"""    v_add_u32 v72, v68, v69
    v_add3_u32 v72, v72, v70, v71
    buffer_store_dwordx4 v[36:39], v{vL16}, s[16:19], s49 offen sc1
    v_cmp_ne_u32 vcc, 0, v72
    s_and_saveexec_b64 s[44:45], vcc
    ds_add_rtn_u32 v62, v60, v72
    s_mov_b64 exec, -1""")
    for g in range(4):
        A(f"""    v_lshrrev_b32 v48, 16, v{64+g}
    v_or_b32 v48, v48, v{64+g}                ; 4 * mask of dropped elements
    v_lshrrev_b64 v[52:53], v48, s[50:51]
    v_and_b32 v{64+g}, 15, v52
    v_lshl_or_b32 v40, v{64+g}, {4*g}, v40""")
    if o["align"]:
        A("""    v_lshrrev_b32 v44, 2, v40
    v_lshlrev_b32 v45, 2, v40
    s_movk_i32 s31, 0x3333
    v_not_b32 v47, v40
    v_bfi_b32 v44, s31, v44, v45              ; both indices swapped
    s_movk_i32 s31, 0x1111
    s_nop 0
    v_mov_b32_dpp v47, v44 row_shr:4 row_mask:0xf bank_mask:0xf
    v_xor_b32 v47, v47, v40
    v_lshrrev_b32 v45, 1, v47
    v_or_b32 v47, v47, v45                    ; bit 0 / 2 of a nibble clear: shared element in the other slot
    v_lshrrev_b32 v45, 2, v47
    v_bitop3_b32 v47, v47, v45, s31 bitop3:0x2a
    s_nop 1
    v_xor_b32_dpp v47, v47, v47 row_shr:4 row_mask:0xf bank_mask:0xe
    s_nop 1
    v_xor_b32_dpp v47, v47, v47 row_shr:8 row_mask:0xf bank_mask:0xc
    v_mul_u32_u24 v47, 15, v47
    v_bfi_b32 v40, v47, v44, v40""")
    A(f"    ds_write_b16 v73, v40")
    for g in range(4):
        a = 16 + 2 * g
        if g == 2:
            A(f"""    s_waitcnt vmcnt({6 + n1 + nb - 5 * o['blate']}) lgkmcnt(0)
    s_barrier
    ds_read_b64 v[50:51], v74""")
        if o["align"]:
            A(f"    v_bfe_u32 v{64+g}, v40, {4*g}, 4")
        A(f"""    v_mul_u32_u24 v46, 0x4001, v{64+g}
    v_and_b32 v46, 0x30003, v46
    v_mad_u32_u24 v46, v46, s38, v41
    v_perm_b32 v{32+g}, v{a+1}, v{a}, v46""")
    A(f"""{stamp(o) if o["diag"] == 2 else ""}
    buffer_store_dwordx4 v[32:35], v{vL16}, s[16:19], s39 offen sc1
    s_cmp_eq_u32 s33, 8
    s_cbranch_scc0 F_i1
    buffer_store_short v40, v{vL16}, s[16:19], s40 offen sc1
    s_branch F_i2
F_i1:
    s_cmp_eq_u32 s20, 0
    s_cbranch_scc0 F_i2
    s_waitcnt lgkmcnt(0)
    buffer_store_dwordx2 v[50:51], v{vL16}, s[16:19], s40 offen sc1
F_i2:
    s_cbranch_vccz F_z""")
    for g in range(4):
        A(f"""    v_cmp_ne_u32 vcc, 0, v{36+g}
    s_and_saveexec_b64 s[44:45], vcc
    s_cbranch_execz F_e{g}
    v_cmp_gt_u32 vcc, s47, v62
    v_add_u32 v42, {8*g}, v31
    v_lshlrev_b32 v44, 3, v62
    v_add_u32 v62, 1, v62
    v_cndmask_b32 v42, v63, v42, vcc
    v_cndmask_b32 v43, 0, v{36+g}, vcc
    v_cndmask_b32 v44, 0, v44, vcc
{"" if o["exp"] & 2 else "    buffer_store_dwordx2 v[42:43], v44, s[16:19], s37 offen sc1"}
F_e{g}:
    s_mov_b64 exec, -1""")
    A(f"""F_z:
{stamp(o)}
    s_cmp_lg_u32 s2, 0
    s_cbranch_scc1 M_set
    v_mov_b32 v64, 0
    v_mov_b32 v65, 0
    v_mov_b32 v66, 0
    v_mov_b32 v67, 0
    s_mov_b32 s40, {CTR}
    buffer_store_dwordx4 v[64:67], v{vL16}, s[16:19], s40 offen sc1
    s_branch M_set
F_sig:
    ; all stores of this workgroup done -> add to the replicas the consumers poll
    v_lshlrev_b32 v30, 8, v12
    s_waitcnt vmcnt(0)
{stamp(o)}
    s_barrier
    s_cmp_lg_u32 s56, 0
    s_cbranch_scc1 F_end
{f"    s_bfm_b64 exec, {o['R']}, 0" if o['R'] < 64 else ""}
    buffer_atomic_add v61, v30, s[16:19], s57 offen sc1
    s_mov_b64 exec, -1
{"    " + count_in("F_cnt") if o["cearly"] == 1 else ""}
F_end:
{text(finalize(d[2 * (n1 + nb):2 * o["xa"]]))}
    s_branch M_x2""")
    return "\n".join(L)

def wfrag(p):
    return vr(4 * p, 4, "a") if p < 64 else vr(vWF + 4 * (p - 64), 4)

def smf(rb, s, t, buf):
    p = s * 9 + t
    ir, ih = (4 * s + t // 2, t & 1) if t < 8 else (36 + s // 2, s & 1)
    return smfmac(vr(vACC[rb] + 4 * t, 4), wfrag(p), vr(buf, 8), vr(vIDX + ir), ih)

def group_smf(gi, chain=True):
    rb, ks = GROUPS[gi]
    if chain:
        return [smf(rb, s, t, vBB + 8 * GBUF[s]) for t in range(9) for s in ks]
    return [smf(rb, s, t, vBB + 8 * GBUF[s]) for s in ks for t in range(9)]

def bread_to(rb, s, b):
    off = rb * 18432 + s * 1024
    return [ds_read("ds_read_b128", vr(b, 4), vr(vB0), f"offset:{off}"),
            ds_read("ds_read_b128", vr(b + 4, 4), vr(vB1), f"offset:{off}")]

def group_reads(gi):
    rb, ks = GROUPS[gi]
    return sum([bread_to(rb, s, vBB + 8 * GBUF[s]) for s in ks], [])

def bias_init(rb, t):
    return ds_read("ds_read_b128", vr(vACC[rb] + 4 * t, 4), vr(vTQ), f"offset:{L_BIAS + t*64}")

def tread(t, tok=None):
    i = ds_read("ds_read_b128", vr(vT, 4), vr(vTQ), f"offset:{L_T0 + t*64}")
    if tok:
        i.rd |= regs(tok)
    return i

def aread(t):
    return ds_read("ds_read_b128", vr(vA, 4), vr(vTA), f"offset:{t*1024}")

def xad(j):
    return valu(f"v_xad_u32 v{vT+j}, v{vT+j}, v{vXor}, v{vRow}", [vr(vT + j), vr(vXor), vr(vRow)], [vr(vT + j)])

def gather(j):
    return ds_read("ds_read2st64_b32", vr(vG + 2 * j, 2), vr(vT + j), "offset0:0 offset1:72")

H = vBB + 16
def ov_gather():
    return [ds_read("ds_read_b64", vr(H + 4, 2), vr(vTQ), f"offset:{L_OVT}"),
            valu(f"v_xad_u32 v{H}, v{H+4}, v{vXor}, v{vRow}", [vr(H + 4), vr(vXor), vr(vRow)], [vr(H)]),
            ds_read("ds_read2st64_b32", vr(H, 2), vr(H), "offset0:0 offset1:72"),
            valu(f"v_xad_u32 v{H+2}, v{H+5}, v{vXor}, v{vRow}", [vr(H + 5), vr(vXor), vr(vRow)], [vr(H + 2)]),
            ds_read("ds_read2st64_b32", vr(H + 2, 2), vr(H + 2), "offset0:0 offset1:72")]

def ov_call(tag):
    return I(f"s_cmp_lt_i32 s81, 0\n    s_cbranch_scc1 M_ovr{tag}\n    s_swappc_b64 s[78:79], s[72:73]\nM_ovr{tag}:", "other", rd=[vr(H, 4), vr(vACC[1], 36)] + [vr(r, 2) for r in vOV])

def csmf(rb, t):
    return smfmac(vr(vACC[rb] + 4 * t, 4), vr(vA, 4), vr(vG, 8), vr(vCI), rb)

def epilogue(rb, soff, o, init=True, xoff=0):
    gs = []
    for ln in range(2):
        g = []
        a = vACC[rb] + 16 * ln
        X, Y, Z = a, a + 8, a + 4
        for j in range(4):
            g.append(valu(f"v_cvt_pk_bf16_f32 v{X+j}, v{a+2*j}, v{a+2*j+1}", [vr(a + 2 * j, 2)], [vr(X + j)]))
        for j in range(4):
            g.append(valu(f"v_cvt_pk_bf16_f32 v{Y+j}, v{a+8+2*j}, v{a+8+2*j+1}", [vr(a + 8 + 2 * j, 2)], [vr(Y + j)]))
        if init:
            g.append(bias_init(rb, 4 * ln + 3))
        for j in range(4):
            g.append(valu(f"v_cndmask_b32_dpp v{Z+j}, v{X+j}, v{Y+j}, vcc row_ror:8 row_mask:0xf bank_mask:0xf", [vr(X + j), vr(Y + j)], [vr(Z + j)]))
        g.append(I(f"buffer_store_dwordx4 {vr(Z,4)}, v{vS4}, s[12:15], {soff[1]} offen offset:{ln*128} {o['stf']}".rstrip(), "store", rd=[vr(Z, 4), vr(vS4)]))
        for j in range(4):
            g.append(valu(f"v_mov_b32_dpp v{X+j}, v{Y+j} row_ror:8 row_mask:0xf bank_mask:0xc", [vr(X + j), vr(Y + j)], [vr(X + j)]))
        g.append(I(f"buffer_store_dwordx4 {vr(X,4)}, v{vS4}, s[12:15], {soff[0]} offen offset:{ln*128} {o['stf']}".rstrip(), "store", rd=[vr(X, 4), vr(vS4)]))
        if init:
            g += [bias_init(rb, 4 * ln + 1), bias_init(rb, 4 * ln + 2), bias_init(rb, 4 * ln)]
        gs.append(g)
    g = []
    a = vACC[rb] + 32
    for j in range(2):
        g.append(valu(f"v_cvt_pk_bf16_f32 v{a+j}, v{a+2*j}, v{a+2*j+1}", [vr(a + 2 * j, 2)], [vr(a + j)]))
    g.append(I(f"ds_write_b64 v{vXw}, {vr(a,2)} offset:{(1-rb)*2*LTABW + xoff}", "dsw", rd=[vr(a, 2), vr(vXw)], wr=["@x2" if xoff else f"@x{rb}"]))
    if init:
        g.append(bias_init(rb, 8))
    gs.append(g)
    if o["nostore"]:
        gs = [[i for i in g if i.kind != "store"] for g in gs]
    return gs

def xch(o, soff, r=vG, xoff=0):
    return [ds_read("ds_read_b128", vr(r, 4), vr(vTA), f"offset:{L_X + xoff}"),
            I(f"buffer_store_dwordx4 {vr(r,4)}, v{vS2}, s[12:15], {soff} offen {o['stf']}".rstrip(), "store", rd=[vr(r, 4), vr(vS2)])]

def xdma(o, m0base, soff):
    g = []
    for s in range(9):
        if s == 0:
            g.append(salu(f"s_mov_b32 m0, {m0base}"))
        else:
            g.append(salu("s_add_u32 m0, m0, 896"))
        g.append(I(f"buffer_load_dwordx4 v{vDma}, s[8:11], {soff} offen offset:{s*128} {o['xnt']} lds", "dma", rd=[vr(vDma), soff]))
    return g

def count_in(tag):
    return f"""s_cmp_eq_u32 s98, 0
    s_cbranch_scc1 {tag}
    s_mov_b32 s98, 0
    v_mov_b32 v{vG+6}, 1
    s_mov_b64 exec, 1
    buffer_atomic_add v{vG+6}, off, s[68:71], 0 offset:{CNT_F} sc1
    s_mov_b64 exec, -1
    s_nop 3
{tag}:"""

def spin(tag, base, target):
    return f"""    v_readfirstlane_b32 s30, v0
    s_mov_b32 s31, 0
    s_sub_u32 s30, s30, {base}
    s_cmp_eq_u32 s30, {target}
    s_cbranch_scc0 {tag}_spin
{tag}_ok:"""

def spin_out(o, tag, base, target, soff):
    return f"""{tag}_spin:
    s_sleep {o['slp']}
{poll(o, 0)}
    s_add_u32 s31, s31, 1
    s_waitcnt vmcnt(0)
    v_readfirstlane_b32 s30, v0
    s_nop 0
    s_sub_u32 s30, s30, {base}
    s_cmp_eq_u32 s30, {target}
    s_cbranch_scc1 {tag}_ok
    s_cmp_lt_u32 s31, {o['nfast']}
    s_cbranch_scc1 {tag}_spin
    {count_in(tag + "_spin2")}
    buffer_load_dword v0, off, s[68:71], 0 offset:{CNT_F} sc1
    s_cmp_ge_u32 s31, {SPIN}
    s_cbranch_scc1 M_end
    s_waitcnt vmcnt(0)
    v_readfirstlane_b32 s30, v0
    s_nop 0
    s_cmp_eq_u32 s30, {NF}
    s_cbranch_scc0 {tag}_spin
    s_branch {tag}_ok"""

def ctouch(o):
    if not o["ctouch"]:
        return ""
    return f"""    s_getpc_b64 s[32:33]
    s_lshr_b32 s30, s2, 3
    s_and_b32 s30, s30, 15
    s_lshl_b32 s30, s30, 11
    s_and_b32 s32, s32, 0xffffff00
    s_cmp_ge_u32 s2, {88 if o["ctouch"] == 2 else 0}
    s_cselect_b32 s31, M_codeend-{NAME}_kernel-4, 0
    v_lshl_add_u32 v252, v0, 3, s30
    v_mov_b32 v253, 0
    v_min_u32 v252, s31, v252
    s_mov_b32 exec_lo, 0x00010001
    s_mov_b32 exec_hi, 0x00010001
    v_lshl_add_u64 v[252:253], v[252:253], 0, s[32:33]
    global_load_dword v254, v[252:253], off
    s_mov_b64 exec, -1"""

COST = {}
def gen_main(o):
    L = []
    A = L.append
    bstride = 256 * SLOT if o["inter"] else SLOT
    wgmul = SLOT if o["inter"] else 3 * SLOT
    tord = o["tord"]
    if len(o["early"]) != 1 or o["estat"]:
        o["e2"] = 0
    HB = (2048 - o["nh"] // 2) * SLOT
    A(f""".p2align 8
.type {NAME}_kernel,@function
{NAME}_kernel:
    s_cmp_ge_u32 s2, 256
    s_cbranch_scc1 M_end
{stamp(o, True)}
    s_load_dwordx8 s[72:79], s[0:1], 0        ; x w b out
    s_load_dwordx4 s[80:83], s[0:1], 32
{ctouch(o)}
    v_lshrrev_b32 v20, 6, v0
    v_and_b32 v12, 63, v0                     ; lane
    v_readfirstlane_b32 s20, v20              ; wave
    ; DMA lane offset: (tid/8)*1152 + ((tid%8) ^ ((tid/16)%8))*16
    v_lshrrev_b32 v22, 3, v0
    v_mul_u32_u24 v22, 1152, v22
    v_lshrrev_b32 v23, 4, v0
    v_xor_b32 v23, v23, v0
    v_and_b32 v23, 7, v23
    v_lshl_add_u32 v{vDma}, v23, 4, v22
    v_lshrrev_b32 v13, 4, v12                 ; q
    v_and_b32 v14, 15, v12                    ; m
    v_lshlrev_b32 v{vL16}, 4, v12
    v_lshlrev_b32 v{vL8}, 3, v12
    v_lshlrev_b32 v25, 4, v13
    v_lshlrev_b32 v26, 3, v13
    s_mov_b32 s6, {576*576*2}
    s_mov_b32 s7, 0x20000
    s_mov_b32 s10, {XB}
    s_mov_b32 s11, s7
    s_mov_b32 s18, {WS_USED}
    s_mov_b32 s19, s7
    s_movk_i32 s70, 256
    s_mov_b32 s71, s7
    s_movk_i32 s86, 1152
    s_mov_b32 s87, s7
    s_mov_b32 s98, 0
    s_mul_i32 s96, s20, {o['R']}
    s_and_b32 s97, s2, {o['R']-1}
    s_add_u32 s96, s96, s97
    s_lshl_b32 s96, s96, 8
    s_add_u32 s96, s96, {SIG}
    s_mul_i32 s22, s2, {wgmul}
    s_mul_i32 s26, s20, 9216
    s_mov_b32 s24, s22
    s_mov_b32 s42, s26
    s_lshl_b32 s28, s20, 8
    s_lshl_b32 s97, s20, 5
    s_cmp_lt_u32 s2, {NF}
    s_cbranch_scc0 M_x1
{gen_ftask(o, bstride)}
M_x1:
{kwait(o)}
{(stamp(o) + chr(10)) * 3 if o["diag"] == 2 else ""}
{stamp(o)}
{biasloads() if not o["blate"] else ""}
{text(finalize(xdma(o, "s42", "s22")[:2 * o["xa"]]))}""")
    A(f"""M_set:                                        ; set-up while the first loads (or the prep stores) are under way
    s_mov_b32 s12, s78
    s_mov_b32 s13, s79
    s_mov_b32 s14, {XB}
    s_mov_b32 s15, 0x20000
    s_mul_i32 s29, s20, {LTABW}
    s_add_u32 s29, s29, {LTAB}
    v_lshrrev_b32 v24, 1, v14                 ; f(m)
    v_and_b32 v27, 7, v14
    v_lshlrev_b32 v22, 7, v27
    v_lshl_or_b32 v{vXor}, v24, 4, v22        ; (f<<4) | (m%8)<<7
    v_lshrrev_b32 v23, 3, v14
    v_mul_u32_u24 v{vRow}, 9216, v23
    v_xad_u32 v{vB0}, v25, v{vXor}, v{vRow}
    v_xor_b32 v{vB1}, 64, v{vB0}
    v_add_u32 v{vTQ}, s29, v25
    v_add_u32 v{vTA}, s29, v{vL16}
    v_mul_u32_u24 v24, 1152, v27
    v_lshl_add_u32 v24, v23, 6, v24
    v_add3_u32 v{vS4}, v24, v25, s28          ; (m%8)*1152 + (m/8)*64 + q*16 + w*256
    v_lshrrev_b32 v24, 3, v12
    v_xor_b32 v28, v24, v12
    v_and_b32 v28, 7, v28
    v_mul_u32_u24 v24, 1152, v24
    v_lshl_add_u32 v24, v28, 4, v24
    v_add_u32 v{vS2}, 1024, v24               ; (l/8)*1152 + 1024 + ((l%8)^(l/8))*16
    s_lshl_b32 s30, s20, 1
    v_lshrrev_b32 v24, 1, v13
    v_add_u32 v24, s30, v24
    v_xor_b32 v24, v24, v27
    v_lshl_add_u32 v24, v24, 4, v22
    v_and_b32 v28, 8, v26
    v_mul_u32_u24 v29, {LTABW}, v23
    v_add3_u32 v24, v24, v28, v29
    v_add_u32 v{vXw}, {LTAB+L_X}, v24
    s_lshr_b32 s30, s2, 3
    s_and_b32 s30, s30, {o['nsh']-1}          ; shard
    s_mul_i32 s92, s30, {1024//max(o['nsh'],4)}
    s_add_u32 s92, s92, {CTR - L_MB}
    s_add_u32 s30, s30, {768 + (256 * o['early'][-1][0] if o['estat'] else 0)}
    s_mul_i32 s93, s30, {SLOT}
    s_mov_b32 s94, {o['nsh']*SLOT}
    s_and_b32 s95, s20, 1
    s_mul_i32 s95, s95, 9216
    s_add_u32 s59, s24, 9216
    s_mul_i32 s43, s20, {WSTR}
    s_add_u32 s47, s29, {L_T0}
    s_add_u32 s48, s29, {L_OVL}
    s_add_u32 s49, s29, {L_CNT}
    s_add_u32 s54, s29, {L_OVL + 256 + MDUM}  ; outside the LDS allocation: writes are dropped
    s_add_u32 s38, s26, {2*SLOT}
    s_add_u32 s35, s38, {128*8}
    s_add_u32 s39, s38, {192*8}
    s_mov_b32 s40, s48
    s_add_u32 s41, s48, 256
    s_mov_b32 s50, {slot_luts()[0] & 0xffffffff}
    s_mov_b32 s51, {slot_luts()[0] >> 32}
    s_mov_b32 s52, {slot_luts()[1] & 0xffffffff}
    s_mov_b32 s53, {slot_luts()[1] >> 32}
    v_mov_b32 v16, 0
    v_mov_b32 v17, 0
    v_mov_b32 v18, 0
    v_mov_b32 v19, 0
    v_cmp_gt_u32 s[44:45], 36, v12
    v_mov_b32 v20, {"2.0" if o["toob"] else "0"}
    s_nop 0
    v_cndmask_b32 v20, 0, v20, s[44:45]
    v_mov_b32 v21, v20
    v_mov_b32 v22, v20
    v_mov_b32 v23, v20
    v_mov_b32 v{vR+12}, {MDUM}
    v_mov_b32 v{vR+13}, 0
    v_mov_b32 v{vR+14}, {MDUM}
    v_mov_b32 v{vR+15}, 0
    v_lshl_add_u32 v{vD0}, v12, 2, s49
    v_add_u32 v{vD1}, s38, v{vL8}
    v_add_u32 v24, s38, v{vL16}""")
    for t in range(9):
        A(f"    ds_write_b128 v{vTA}, v[16:19] offset:{t*1024}")
    assert not o["x2pre"]
    A(f"""    ds_write_b128 v24, {vr(vR+12,4)}
    ds_write_b128 v24, {vr(vR+12,4)} offset:1024
    ds_write_b128 v{vTA}, v[20:23] offset:{L_T0}
    s_cmp_lt_u32 s2, {NF}
    s_cbranch_scc1 F_sig
{stamp(o)}
{text(finalize(xdma(o, "s42", "s22")[2 * o["xa"]:2 * max(o["xa"], o["fx"] + o["fxb"])]))}
M_x2:
{text(finalize(xdma(o, "s42", "s22")[2 * max(o["xa"], o["fx"] + o["fxb"]):]))}
    s_add_u32 s22, s22, {bstride}
    s_add_u32 s42, s42, {SLOT}
{"    " + count_in("M_cnt") if o["cearly"] == 2 else ""}
{biasloads() if o["blate"] else ""}
{text(finalize(xdma(o, "s42", "s22")))}
    s_add_u32 s22, s22, {bstride}
    s_add_u32 s42, s42, {SLOT}
{stamp(o) if o["diag"] != 3 else ""}
    s_waitcnt vmcnt({o['pw']})
{stamp(o) if o["diag"] != 3 else ""}
{poll(o, 0)}
    v_readlane_b32 s100, v{vCI}, 0
    v_mov_b32 v{vCI}, 0xeeee4444
{"    s_add_u32 s100, s100, 5" if o["testfb"] else ""}""")
    for j in range(18):
        A(f"    v_lshlrev_b32 v{vACC[0]+2*j}, 16, v{vBB+j}\n    v_and_b32 v{vACC[0]+2*j+1}, 0xffff0000, v{vBB+j}")
    A("    s_mov_b32 exec_lo, 0x00010001\n    s_mov_b32 exec_hi, 0x00010001")
    for t in range(9):
        A(f"    ds_write_b128 v{vTQ}, {vr(vACC[0]+4*t,4)} offset:{L_BIAS+t*64}")
    A("    s_mov_b64 exec, -1")
    if o["xtail"]:
        wd = o["xw"] or [o["xfull"] + o["xtail"] * (q + 1) for q in range(9)]
        g0 = vG
        n0 = NF if o["xA"] == 1 else 0
        ft, fn = o["ftouch"], o["ftn"]
        assert sum(wd) <= (8 * fn * ft if ft else 8 * (256 - n0))
        if ft:
            A(f"""    s_cmp_lt_u32 s2, {fn}
    s_cbranch_scc0 M_ft2
    s_lshl2_add_u32 s30, s2, s20
    s_lshl_b32 s30, s30, 1
    s_add_u32 m0, s29, {L_X + 1024}
M_ft:""")
        else:
            A(f"""    s_mul_i32 s30, s20, {256 - n0}
    s_xor_b32 s31, s2, {255 if o["xA"] == 2 else 0}
    s_add_u32 s30, s30, s31
    s_sub_u32 s30, s30, {n0}
    s_cmp_lt_u32 s2, {n0}
    s_cselect_b32 s30, 1023, s30
    s_lshl_b32 s30, s30, 1""")
        A(f"""    v_lshrrev_b32 v{g0}, 5, v12
    v_add_u32 v{g0+4}, s30, v{g0}             ; e
    v_mov_b32 v{g0}, -1
    v_mov_b32 v{g0+1}, 0""")
        for q in range(9):
            if wd[q]:
                A(f"""    v_subrev_u32 v{g0+2}, {sum(wd[q+1:])}, v{g0+4}
    v_cmp_gt_u32 vcc, {wd[q]}, v{g0+2}
    v_mov_b32 v{g0+3}, {q}
    s_nop 0
    v_cndmask_b32 v{g0}, v{g0}, v{g0+2}, vcc
    v_cndmask_b32 v{g0+1}, v{g0+1}, v{g0+3}, vcc""")
        A(f"""    v_sub_u32 v{g0}, 2047, v{g0}
    v_mul_u32_u24 v{g0}, {SLOT}, v{g0}
    v_lshl_add_u32 v{g0}, v{g0+1}, 7, v{g0}
    v_and_b32 v{g0+1}, 31, v12
    v_mul_u32_u24 v{g0+1}, 1152, v{g0+1}
    v_add_u32 v{g0+5}, v{g0}, v{g0+1}""")
        if ft:
            A(f"""    buffer_load_dword v{g0+5}, s[8:11], 0 offen lds
    s_add_u32 s30, s30, {8*fn}
    s_cmp_lt_u32 s30, {8*fn*ft}
    s_cbranch_scc1 M_ft
M_ft2:""")
    A("    s_mov_b32 vcc_lo, 0xff00ff00\n    s_mov_b32 vcc_hi, 0xff00ff00")
    if o["pp"]:
        A(poll(o, vG + 7) + "\n    s_waitcnt vmcnt(1)")
    else:
        A("    s_waitcnt vmcnt(0)")
    A(stamp(o))
    A(spin("M_pf", "s100", NARR).replace("M_pf_spin", "M_pf_pp" if o["pp"] else "M_pf_spin"))
    A(stamp(o))

    lag, e_cor, cper = o["lag"], o["ecor"], o["cper"]
    def uload(u, dst, n):
        g = [salu("s_add_u32 s43, s43, 4096")] if u % 4 == 0 and u else []
        g.append(I(f"buffer_load_dword{'x4' if n == 4 else ''} {dst}, v{vL16}, s[16:19], s43 offen offset:{(u%4)*1024} {o['wsc']}", "load", rd=[vr(vL16)], wr=[dst]))
        return g
    def wload(p):
        s, t = divmod(p, 9)
        g = uload(u_idx(s), vr(vIDX + 4 * s, 4), 4) if t == 0 else []
        return g + uload(u_frag(s, t), wfrag(p), 4)
    def pbuf(rb, s):
        return vBB + 8 * ((0, 1)[s & 1] if rb == 0 else (4, 3)[s & 1])
    seq = []
    if o["touch"]:
        nl = o["touch"]
        t0 = WSTR - 21 * nl * 128
        A(f"""    s_lshr_b32 s30, s2, 3
    s_sub_u32 s31, s30, 11
    s_cselect_b32 s30, s30, s31
    s_mul_i32 s30, s30, {nl*128}
    s_add_u32 s30, s30, s43
    s_add_u32 s30, s30, {t0}
    v_lshlrev_b32 v{vG}, 3, v{vL16}""")
    SR5 = [66, 60, 64, 56, 88, 90, 96, 100, 58, 84, 86, 4, 6, 68, 70, 0]
    if o["diag"] == 5:
        seq.append(I(f"s_memtime s[{SR5[0]}:{SR5[0]+1}]", "other"))
    seq.append(valu(f"v_mov_b32 v0, v{vG+5}", [], ["v0"]))
    R = vR
    seq += uload(0, vr(R, 4), 4) + uload(1, vr(R + 4, 4), 4) + uload(2, vr(R + 8, 4), 4)
    seq += [salu(f"s_mov_b32 exec_hi, {(1 << ((18*RA + 9*RB)//16 - 224)) - 1}")] + uload(3, vr(R + 12, 4), 4) + [salu("s_mov_b32 exec_hi, -1")]
    seq += uload(4, vr(vIDX + 36, 4), 4) + uload(5, vr(vIDX + 40), 1)
    for p in range(lag):
        seq += wload(p)
    if o["touch"]:
        j = [q for q, i in enumerate(seq) if i.kind == "load"][o["tpos"]]
        assert o["tpos"] != 3
        seq[j:j] = [salu(f"s_bfm_b64 exec, {o['touch']}, 0"), I(f"buffer_load_dword v{vG}, v{vG}, s[16:19], s30 offen sc1", "load", wr=[vr(vG)]), salu("s_mov_b64 exec, -1")]
    def V(txt, rd, wr):
        return valu(txt, [f"v{r}" if isinstance(r, int) else r for r in rd], [f"v{r}" if isinstance(r, int) else r for r in wr])
    OLD, X = R + 6, R + 18
    DUM = X + 8
    build = [V(f"v_mov_b32 v{DUM}, s54", [], [DUM]),
             V(f"v_or3_b32 v{X+4}, v{R}, v{R+4}, v{R+8}", [R, R + 4, R + 8], [X + 4]),
             V(f"v_or_b32 v{X+4}, v{X+4}, v{R+12}", [R + 12, X + 4], [X + 4]),
             V(f"v_cmp_gt_i32 s[32:33], 0, v{X+4}", [X + 4], ["s[32:33]"])]
    for j in range(8):
        M, Y, K = R + 2 * j, X + (j & 1), "s[44:45]" if j & 1 else "s[36:37]"
        k0 = 44 if j & 1 else 36
        build += [V(f"v_cmp_gt_u32 {K}, 2.0, v{M}", [M], [K]),
                  V(f"v_mbcnt_lo_u32_b32 v{Y}, s{k0}, 0", [K], [Y]),
                  V(f"v_mbcnt_hi_u32_b32 v{Y}, s{k0+1}, v{Y}", [K, Y], [Y]),
                  V(f"v_lshl_add_u32 v{Y}, v{Y}, 3, s38", [Y], [Y]),
                  V(f"v_min_u32 v{Y}, s39, v{Y}", [Y], [Y]),
                  V(f"v_cndmask_b32 v{Y}, v{DUM}, v{Y}, {K}", [DUM, Y, K], [Y]),
                  I(f"ds_write_b64 v{Y}, {vr(M,2)}", "dsw", rd=[vr(Y), vr(M, 2)]),
                  salu(f"s_bcnt1_i32_b64 s30, {K}"),
                  salu(f"s_lshl3_add_u32 s38, s30, s38")]
    build += [ds_read("ds_read_b64", vr(R + 2 * j, 2), vr(vD1), f"offset:{j*512}") for j in range(3)] + [None] * 10
    def rank(j):
        M, Y = R + 2 * j, X + 2 * (j & 1)
        return [V(f"v_bfe_u32 v{Y}, v{M}, 24, 4", [M], [Y]),
                V(f"v_lshlrev_b32 v{Y+1}, 1, v{M}", [M], [Y + 1]),
                V(f"v_lshl_add_u32 v{Y}, v{Y}, 2, s49", [Y], [Y]),
                V(f"v_and_b32 v{Y+1}, 16, v{Y+1}", [Y + 1], [Y + 1]),
                V(f"v_and_or_b32 v{Y}, v{M}, 2.0, v{Y}", [M, Y], [Y]),
                V(f"v_lshlrev_b32 v{Y+1}, v{Y+1}, 1", [Y + 1], [Y + 1]),
                I(f"ds_add_rtn_u32 v{OLD+j}, v{Y}, v{Y+1}", "ds", rd=[vr(Y, 2)], wr=[vr(OLD + j)])]
    def place(j):
        M, E, O = R + 2 * j, R + 2 * j + 1, OLD + j
        return [V(f"v_and_b32 v{X}, 8, v{M}", [M], [X]),
                V(f"v_lshrrev_b32 v{X+3}, 14, v{M}", [M], [X + 3]),
                V(f"v_cmp_ne_u32 s[44:45], 0, v{X}", [X], ["s[44:45]"]),
                V(f"v_and_b32 v{X+6}, 0x3cf0, v{X+3}", [X + 3], [X + 6]),
                V(f"v_lshrrev_b32 v{X+1}, 16, v{O}", [O], [X + 1]),
                V(f"v_and_b32 v{X+2}, 0xffff, v{O}", [O], [X + 2]),
                V(f"v_sub_u32 v{X}, 15, v{X+1}", [X + 1], [X]),
                V(f"v_and_b32 v{O}, 2.0, v{M}", [M], [O]),
                V(f"v_add3_u32 v{O}, v{X+2}, v{X+1}, v{O}", [X + 2, X + 1, O], [O]),
                V(f"v_cndmask_b32 v{X}, v{X+2}, v{X}, s[44:45]", [X + 2, X, "s[44:45]"], [X]),
                V(f"v_cmp_gt_u32 s[44:45], 16, v{O}", [O], ["s[44:45]"]),
                V(f"v_cmp_gt_u32 s[36:37], 2.0, v{O}", [O], ["s[36:37]"]),
                V(f"v_lshlrev_b32 v{X}, 2, v{X}", [X], [X]),
                V(f"v_lshrrev_b64 v[{X+2}:{X+3}], v{X}, s[50:51]", [X], [X + 2, X + 3]),
                salu("s_andn2_b64 s[36:37], s[36:37], s[44:45]"),
                V(f"v_lshrrev_b64 v[{X+4}:{X+5}], v{X}, s[52:53]", [X], [X + 4, X + 5]),
                V(f"v_bfe_u32 v{X}, v{M}, 24, 4", [M], [X]),
                V(f"v_mbcnt_lo_u32_b32 v{X+1}, s36, 0", [], [X + 1]),
                V(f"v_and_b32 v{X+2}, 15, v{X+2}", [X + 2], [X + 2]),
                V(f"v_mbcnt_hi_u32_b32 v{X+1}, s37, v{X+1}", [X + 1], [X + 1]),
                V(f"v_and_b32 v{X+4}, 15, v{X+4}", [X + 4], [X + 4]),
                V(f"v_lshl_add_u32 v{X+1}, v{X+1}, 3, s40", [X + 1], [X + 1]),
                V(f"v_lshl_add_u32 v{X+2}, v{X}, 4, v{X+2}", [X, X + 2], [X + 2]),
                V(f"v_min_u32 v{X+1}, s41, v{X+1}", [X + 1], [X + 1]),
                V(f"v_mul_u32_u24 v{X+4}, 68, v{X+4}", [X + 4], [X + 4]),
                V(f"v_cndmask_b32 v{X+1}, v{DUM}, v{X+1}, s[36:37]", [DUM, X + 1], [X + 1]),
                I(f"ds_write_b64 v{X+1}, {vr(M,2)}", "dsw", rd=[vr(X + 1), vr(M, 2)]),
                salu("s_bcnt1_i32_b64 s30, s[36:37]"),
                salu("s_lshl3_add_u32 s40, s30, s40"),
                V(f"v_lshl_add_u32 v{X+2}, v{X+2}, 2, s47", [X + 2], [X + 2]),
                V(f"v_and_b32 v{X+4}, 0x30c, v{X+4}", [X + 4], [X + 4]),
                V(f"v_cndmask_b32 v{X+2}, v{DUM}, v{X+2}, s[44:45]", [DUM, X + 2, "s[44:45]"], [X + 2]),
                V(f"v_add3_u32 v{X+3}, v{X+6}, v{X+4}, s29", [X + 6, X + 4], [X + 3]),
                V(f"v_and_b32 v{X+4}, 0x3fff, v{M}", [M], [X + 4]),
                V(f"v_cndmask_b32 v{X}, v{DUM}, v{X+3}, s[44:45]", [DUM, X + 3, "s[44:45]"], [X]),
                I(f"ds_write_b32 v{X+2}, v{X+4}", "dsw", rd=[vr(X + 2), vr(X + 4)]),
                I(f"ds_write_b32 v{X}, v{E}", "dsw", rd=[vr(X), vr(E)])]
    C = X + 7
    build += rank(0) + rank(1)
    build += [I("s_cmp_gt_u32 s38, s35\n    s_cbranch_scc1 M_r3\nM_r3r:", "other", rd=[vr(R + 4, 2)]),
              ds_read("ds_read_b32", vr(C), vr(vD0))]
    build += place(0) + place(1)
    build += [V(f"v_lshrrev_b32 v{X}, 16, v{C}", [C], [X]),
              V(f"v_and_b32 v{C}, 0xffff, v{C}", [C], [C]),
              V(f"v_add_u32 v{C}, v{C}, v{X}", [C, X], [C]),
              V(f"v_cmp_lt_u32 s[34:35], 16, v{C}", [C], ["s[34:35]"]),
              salu("s_sub_u32 s46, s40, s48"),
              salu("s_add_u32 s46, s46, 56"),
              salu("s_lshr_b32 s46, s46, 6"),
              salu("s_mov_b32 s21, 0"),
              salu("s_and_b32 s27, s34, " + ("0" if o["exp"] & 4 else "0x1ff")),
              I("""s_cmp_gt_u32 s46, 4
    s_cselect_b32 s32, 1, s32
    s_or_b32 s32, s32, s33
    s_cbranch_scc1 M_dn
M_dnr:""", "other")]
    nov = 2 if o["diag"] else 3
    build += [ds_read("ds_read_b128", vr(R, 4), vr(vTQ), f"offset:{L_OVL}"),
              I(f"""s_bcnt1_i32_b32 s30, s27
    s_cmp_gt_u32 s30, {nov}
    s_cselect_b32 s34, 0, s27
    s_cselect_b32 s80, 0, 1""", "other"),
              I("s_getpc_b64 s[36:37]\nM_pc:", "other"),
              V(f"v_bfe_u32 v{X}, v{vL16}, 4, 4", [], [X])]
    for j in range(nov):
        build += [I(f"""s_ff1_i32_b32 s{81+j}, s34
    s_bitset0_b32 s34, s{81+j}
    s_mul_i32 s30, s{81+j}, 20""", "other"),
                  I(f"""s_add_u32 s31, s30, M_ovc{min(j,1)}-M_pc
    s_add_u32 s30, s30, M_ovl{j}-M_pc""", "other"),
                  I(f"""s_cmp_lg_u32 s34, 0
    s_cselect_b32 s30, s31, s30
    s_cmp_lt_i32 s{81+j}, 0
    s_cselect_b32 s30, M_ovn-M_pc, s30""", "other"),
                  I(f"""s_add_u32 s{72+2*j}, s36, s30
    s_addc_u32 s{73+2*j}, s37, 0""", "other")]
    build += [V(f"v_lshrrev_b32 v{X+2}, 18, v{R}", [R], [X + 2]),
              V(f"v_lshrrev_b32 v{X+3}, 18, v{R+2}", [R + 2], [X + 3]),
              V(f"v_and_b32 v{X+4}, 0x3fff, v{R}", [R], [X + 4]),
              V(f"v_and_b32 v{X+5}, 0x3fff, v{R+2}", [R + 2], [X + 5]),
              I(f"ds_write_b64 v{vTQ}, {vr(X+4,2)} offset:{L_OVT}", "dsw", rd=[vr(X + 4, 2)])]
    for j in range(nov):
        build += [V(f"v_lshl_or_b32 v{X+1}, s{81+j}, 6, v{X}", [X], [X + 1]),
                  V(f"v_cmp_eq_u32 s[44:45], v{X+2}, v{X+1}", [X + 1, X + 2], ["s[44:45]"]),
                  V(f"v_cmp_eq_u32 s[36:37], v{X+3}, v{X+1}", [X + 1, X + 3], ["s[36:37]"]),
                  V(f"v_cndmask_b32 v{vOV[j]}, 0, v{R+1}, s[44:45]", [R + 1, "s[44:45]"], [vOV[j]]),
                  V(f"v_cndmask_b32 v{vOV[j]+1}, 0, v{R+3}, s[36:37]", [R + 3, "s[36:37]"], [vOV[j] + 1])]
    seq += [bias_init(1, t) for t in range(9)]
    if not o["cearly"]:
        seq.append(I(count_in("M_cnt"), "other"))
    bar = I("s_barrier", "other", rd=[wfrag(0)])
    seq.append(bar)
    seq += bread_to(0, 0, pbuf(0, 0)) + bread_to(1, 0, pbuf(1, 0))
    assert e_cor + 9 * cper <= 81 and e_cor <= 73 - lag, e_cor
    build.append(tread(tord[0]))
    queue = [(j * (e_cor - 2) // len(build), ins) for j, ins in enumerate(build) if ins]
    build = [i for i in build if i]
    for k in range(9):
        e = e_cor + k * cper
        queue += [(e - 1, xad(0)), (e - 1, xad(1)), (e, gather(0)), (e, gather(1)), (e, xad(2)), (e, xad(3)), (e, gather(2)), (e, gather(3)), (e, aread(tord[k]))]
        queue += [(e, tread(tord[k + 1]))] if k < 8 else []
        if k == 0:
            og = ov_gather()
            queue.insert(len(build), (e - 2, og[0]))
            queue += [(e + 1, i) for i in og[1:]]
        if k == 1:
            queue += [(e + 2, ov_call(0))]
        queue += [(e + cper - 1, csmf(0, tord[k])), (e + cper - 1, csmf(1, tord[k]))]
    def pop(e, nv):
        out = []
        while queue and queue[0][0] <= e and queue[0][1].kind != "valu":
            out.append(queue.pop(0)[1])
        while queue and queue[0][0] <= e and queue[0][1].kind == "valu" and nv:
            out.append(queue.pop(0)[1])
            nv -= 1
        return out
    n2 = o["n2"]
    assert o["nA"] == 2 and o["nF"] == 2
    x2n = o["x2n"] or n2
    assert x2n == n2 or o["early"][0][0] == 1
    x2 = xdma(o, "s42", "s22")[:2 * x2n]
    for e in range(81):
        s, t = divmod(e, 9)
        seq.append(smf(0, s, t, pbuf(0, s)))
        if o["diag"] == 5 and e % 6 == 0:
            seq.append(I(f"s_memtime s[{SR5[1+e//6]}:{SR5[1+e//6]+1}]", "other"))
        if e + lag < 81:
            seq += wload(e + lag)
        if e + lag == o["xat"] and o["xtail"] and not o["ftouch"]:
            assert o["xat"] <= o["x2at"]
            seq += [salu(f"s_add_u32 m0, s29, {L_X + 1024}"), I("buffer_load_dword v0, s[8:11], 0 offen lds", "dma", rd=["v0"])]
        if e + lag >= o["x2at"] and (e + lag - o["x2at"]) % o["x2step"] == 0 and x2:
            seq += x2[:2]
            x2 = x2[2:]
        if e in o["tst"]:
            j = o["tst"].index(e)
            seq.append(I(f"buffer_store_dwordx4 v[12:15], v{vS4}, s[12:15], {('s24', 's59')[j % 2]} offen offset:{(j // 2) * 128} {o['stf']}", "store", rd=["v[12:15]"]))
        if s < 7:
            seq += pop(e, 1)
            seq.append(smf(1, s, t, pbuf(1, s)))
        if t == 0 and s < 8:
            seq += bread_to(0, s + 1, pbuf(0, s + 1))
        if t == 1 and s < 8:
            seq += bread_to(1, s + 1, pbuf(1, s + 1))
        seq += pop(e, 6)
        if e == 72 - lag:
            assert not any(i in build for _, i in queue)
    while queue:
        seq += pop(99, 9)
    if o["x2pre"] == 1:
        seq.append(I(f"s_cmp_lt_u32 s2, {NF}\n    s_cbranch_scc0 M_x4\n" + text(finalize(x2)) + "\nM_x4:", "other"))
    elif not o["x2pre"]:
        seq += x2
    if o["diag"] == 5:
        seq.append(I(f"s_memtime s[{SR5[15]}:{SR5[15]+1}]\n    s_waitcnt lgkmcnt(0)\n    s_mov_b32 s62, 16\n" + "\n".join(f"    v_writelane_b32 v255, s{SR5[q]}, {q}\n    v_writelane_b32 v255, s{SR5[q]}, {q+32}" for q in range(16)), "lgkm0"))
    elif o["diag"]:
        seq.append(I(stamp(o).strip(), "lgkm0"))
    seq.append(I(f"""s_cmp_gt_u32 s46, s80
    s_cbranch_scc1 M_slow
M_slowr0:""", "other"))
    seq.append(I(f"""s_cmp_eq_u32 s20, 0
    s_mov_b32 s31, {0x40000000 + L_MB + 8}
    s_cselect_b32 s30, {L_MB}, s31
    v_mov_b32 v{vAt}, s31
    v_writelane_b32 v{vAt}, s30, 0""", "other"))
    seq += sum(epilogue(0, ("s24", "s59"), o), [])
    seq += [salu("s_mov_b32 s89, 0"), salu(f"s_mov_b32 s101, {(768 + o['wth']) * SLOT}"), salu("s_mov_b32 s91, 0"), salu(f"s_mov_b32 s25, {SLOT}"),
            salu(f"s_add_u32 s90, s24, {bstride}"),
            salu(f"s_mov_b32 s28, s26"),
            salu("s_add_u32 s23, s24, 18432"),
            salu("s_cmp_lt_u32 s20, 2"),
            salu("s_cselect_b32 s66, s23, s24"),
            salu(f"s_cselect_b32 s99, s14, {HB}"),
            salu("s_add_u32 s66, s66, s95"),
            ]
    seq += [valu(f"v_add_u32 v{r}, {SLOT}, v{r}", [vr(r)], [vr(r)]) for r in (vRow, vB0, vB1)]
    A(text(finalize(seq, vm=True)))

    vers = [("L", o["win"], 0, False)] + [(f"E{j}", w_, 0, False) for j, (n_, w_) in enumerate(o["early"])]
    vers += ([("W", o["wwin"], 0, False)] if o["wwin"] else []) + ([("P", o["pwin"], 0, False)] if o["pn"] else []) + ([("Q", o["win"], 0, False)] if o["q"] else []) + [("F", o["fwin"], 0, True)]
    dispatch = f"s_cmp_lt_u32 s22, {XB}\n    s_cbranch_scc0 M_bF"
    if o["pn"]:
        dispatch += f"\n    s_cmp_ge_u32 s22, {(2048 - o['pn']) * SLOT}\n    s_cbranch_scc1 M_bP"
    if o["wwin"]:
        dispatch += "\n    s_cmp_eq_u32 s89, 0\n    s_cbranch_scc1 M_bE0\n    s_cmp_eq_u32 s89, 2\n    s_cbranch_scc1 M_bW"
    else:
        dispatch += "\n    s_cmp_eq_u32 s91, 1\n    s_cbranch_scc1 M_bE0" if o["e2"] else "".join(f"\n    s_cmp_lt_u32 s91, {n_}\n    s_cbranch_scc1 M_bE{j}" for j, (n_, w_) in enumerate(o["early"]))
    LPRE = []
    def version(vid, nm, wn, wns, final, resv=()):
        KS = [(0, 1, 2), (3, 4), (5, 6), (7, 8)]
        T9 = list(range(9))
        glist = [(1, KS[3], T9)] + [(0, ks, T9) for ks in KS]
        if final:
            glist += [(1, ks, [8, 0, 1, 2, 3]) for ks in KS] + [(1, ks, [4, 5, 6, 7]) for ks in KS]
        else:
            glist += [(1, ks, T9) for ks in KS[:3]]
        P = {k: o["f" + k] if final and o.get("f" + k) else o[k] for k in ("b0", "per", "e0", "slowat", "e1", "ov", "bar2", "gstep", "rstep")}
        b0, per = P["b0"], P["per"]
        glist = [(rb, ks, list(ts)) for rb, ks, ts in glist]
        cat = {}
        k = nxt = 0
        for rb, ks, ts in glist:
            fixed = set()
            for c in range(len(ts)):
                k += len(ks)
                if nxt < 9 and k >= b0 + per * (nxt + 1):
                    cat[k - 1] = (nxt, rb)
                    if o["cchain"] and tord[nxt] in ts and ts.index(tord[nxt]) not in fixed:
                        j = ts.index(tord[nxt])
                        ts[j], ts[c] = ts[c], ts[j]
                        fixed.add(c)
                    nxt += 1
        mains = []
        gstart = []
        for rb, ks, ts in glist:
            gstart.append(len(mains))
            mains += [smf(rb, s_, t, vBB + 8 * GBUF[s_]) for t in ts for s_ in ks]
        stream = []
        pos = {}
        cpos = {}
        for k in range(len(mains)):
            pos[k] = len(stream)
            stream.append(mains[k])
            if k in cat:
                nxt, rb = cat[k]
                stream.append(csmf(rb, tord[nxt]))
                cpos[nxt] = len(stream)
                stream.append(csmf(1 - rb, tord[nxt]))
        gp = Gaps(len(stream) + 40)
        gp.exact = o["exact"]
        for k in set(resv) - {c - 2 for c in cpos.values()}:
            gp.reserve(k)
        x = xch(o, "s66")
        top_reads = [x[0]]
        bar2 = I("s_barrier", "other", rd=[vr(vG, 4)])
        def greads(j):
            rb, ks, _ = glist[j % len(glist)]
            return sum([bread_to(rb, s_, vBB + 8 * GBUF[s_]) for s_ in ks], [])
        gp.chain(greads(1), 0, step=1)
        gp.nv[1] += [I(dispatch, "other"), I(f"M_b{nm}:", "label")]
        if final and o["nh"]:
            gp.nv[1] += [I(f"s_cmp_ge_u32 s24, {HB}\n    s_cbranch_scc1 M_bH", "other")]
        gp.res[1] += 2
        k = cpos[P["slowat"]]
        gp.nv[k] += [salu("s_cmp_gt_u32 s46, s80"), I("s_cbranch_scc1 M_slow", "other"), I(f"M_slowr{nm}:", "label")]
        gp.put(tread(tord[0]), 7)
        for t in range(9):
            gp.reserve(cpos[t] - 2)
            k = pos[b0] - 2 if t == 0 else cpos[t - 1] - 2
            kg = k + 2
            for j in range(4):
                k = gp.put(xad(j), k) + 1
            for j in range(4):
                kg = gp.put(gather(j), max(kg, k - 3 + j), 3)
                if j == (2 if o["exact"] else 0):
                    gp.put(aread(tord[t]), kg, 3)
                kg += P["gstep"] if j < 3 else 0
            if t < 8:
                gp.put(tread(tord[t + 1]), kg, 3)
        for j in range(1, len(glist) - (1 if final else 0)):
            r = greads(j + 1)
            if j == 4:
                hrel = r[4:]
                r = r[:4]
            if j == 8:
                gp.chain(r[4:], pos[gstart[6] + 4], 2, step=1)
                r = r[:4]
            if o["theta"] >= 0 and (j < 5 or not final):
                nxt_ = pos[gstart[j + 1] - 1] if j + 1 < len(glist) else pos[o["lastrd"]] + o["rlead"]
                gp.lds_chain(r, pos[gstart[j] - 1], nxt_ - o["rlead"], o["theta"], 2)
            else:
                gp.chain(r, pos[gstart[j] - 1], 2 if j < 5 or not final else 3, step=P["rstep"] if j < 5 or not final else 1)
        def win(lst):
            out = []
            for i in lst:
                if i.kind in ("store", "dma") and wn:
                    out.append(I("WIN", "wait"))
                out.append(i)
            return out
        def echain(g, k):
            st = [j for j, i in enumerate(g) if i.kind == "store"]
            if len(st) < 2 or final or not o["sgap"]:
                return gp.chain(win(g), k, 3)
            k1 = gp.chain(win(g[:st[0] + 1]), k, 3)
            k = gp.chain(g[st[0] + 1:st[1]] + g[st[1] + 1:st[1] + 3], k1, 3)
            k = gp.chain(win([g[st[1]]]), max(k, k1 + o["sgap"]), 3)
            return gp.chain(g[st[1] + 3:], k + 2, 3)
        gp.chain(win(x[1:]), o['xst'], 3)
        gp.put(bar2, P["bar2"])
        ovl = ov_gather()
        k = gp.put(ovl[0], pos[P["ov"][0]], 3)
        k = gp.chain(ovl[1:], max(k + 5, pos[P["ov"][1]]), 3)
        for u, g in enumerate(epilogue(1, ("s23", "s58"), o)):
            k = max(k, echain(g, pos[P["e1"][u]]))
        k = max(k + 6, pos[P["ov"][2]])
        while gp.load(k) > 0:
            k += 1
        ovchk = [ov_call(nm)]
        gp.nv[k].append(ovchk[0])
        gp.res[k] += 2
        gp.chain(hrel, max(k + 1, pos[P["ov"][3]]), 2, step=1)
        atom = I(f"buffer_atomic_add v0, v{vAt}, s[16:19], s92 offen sc0 sc1", "store", rd=["v0", vr(vAt)])
        dyn = not final and not (o["estat"] and nm[0] == "E")
        if not final and not dyn:
            krf = gp.put(salu(f"s_add_u32 s88, s22, {bstride}"), 9)
        if dyn:
            if o["nh"]:
                gp.nv[2] += [salu(f"s_cmp_lt_u32 s22, {HB}"), salu("s_cselect_b32 s30, 1, 0")]
            gp.put(valu("v_mov_b32 v0, " + ("s30" if o["nh"] else "1"), [], ["v0"]), 3)
            gp.chain(win([atom]), pos[o["claim"][0]], 2)
        awt = I("s_waitcnt vmcnt(0)", "wait")
        mbw = I(f"ds_write_b32 v{vAt}, v0", "dsw", rd=["v0", vr(vAt)], wr=["@mb"])
        bar3 = I("s_barrier", "other", rd=["@mb"])
        sel10 = salu(f"s_cselect_b32 s10, {XB}, 0")
        if dyn: gp.chain([awt, valu("v_mul_u32_u24 v0, s94, v0", ["v0"], ["v0"]), valu("v_add_u32 v0, s93, v0", ["v0"], ["v0"]),
                  ] + ([] if o["nh"] else [valu(f"v_min_u32 v0, {XB}, v0", ["v0"], ["v0"])]) + [
                  mbw, valu(f"v_mov_b32 v0, {L_MB}", [], ["v0"])], pos[o["claim"][1]], 3)
        if dyn:
            k = gp.chain([bar3, ds_read("ds_read_b32", "v0", "v0")], pos[o["claim"][2]], 3)
            k = gp.put(valu("v_readfirstlane_b32 s88, v0", ["v0"], ["s88"]), k + 5)
            if o["nh"]:
                k = gp.chain([salu(f"s_add_u32 s30, s88, {HB}"), salu("s_lshr_b32 s30, s30, 1"), salu("s_min_u32 s88, s88, s30"), salu("s_min_u32 s88, s88, s14")], k + 1, 3) + 1
                while gp.load(k, sel10) > 2:
                    k += 1
                gp.nv[k] += [salu(f"s_cmp_lt_u32 s22, {HB}"), salu("s_cselect_b32 s88, s88, s14")]
            krf = k
        for u, g in sorted(enumerate(epilogue(0, ("s24", "s59"), o, init=not final)), key=lambda z: z[0] != 2):
            echain(g, pos[P["e0"][u]])
        d = xdma(o, "s28", "s22")[2 * n2:] + xdma(o, "s28", "s88")[:2 * n2]
        gp.put(salu(f"s_mov_b32 s21, {vid}"), 8)
        kd = 0
        for j in range(0 if final else 9):
            if j == 9 - n2:
                kd = max(kd, krf) + 1
                while gp.load(kd, sel10) > 2:
                    kd += 1
                gp.nv[kd] += [salu("s_cmp_lt_u32 s88, s99"), sel10]
                if o["q"] and nm in "LQ":
                    kd += 1
                    while gp.load(kd) > 0:
                        kd += 1
                    gp.nv[kd] += [I("s_cmp_lt_u32 s88, s14\n    s_cbranch_scc0 M_q", "other"), I("M_q:" if nm == "Q" else "M_nq:", "label")]
                    gp.res[kd] += 2
            k = gp.put(d[2 * j], max(kd + 1, pos[o["pdma" if nm == "P" and o["pdma"] else "dma"][j]]), 2)
            kd = gp.chain(win([d[2 * j + 1]]), k if wn and o["exact"] else k + 1, 3)
        book = [salu(f"s_add_u32 s28, s28, {SLOT}"),
                salu(f"s_cmp_ge_u32 s28, {NSLOT*SLOT}"),
                salu(f"s_cselect_b32 s28, s26, s28"),
                salu(f"s_add_u32 s30, s25, {SLOT}"),
                salu(f"s_cmp_eq_u32 s30, {NSLOT*SLOT}"),
                salu(f"s_cselect_b32 s30, 0, s30"),
                salu(f"s_sub_u32 s31, s30, s25"),
                salu(f"s_mov_b32 s25, s30"),
                salu("s_mov_b32 s90, s22"),
                salu("s_mov_b32 s22, s88"),
                salu("s_add_u32 s91, s91, 1")] + ([
                salu(f"s_cmp_ge_u32 s91, {o['early'][0][0]}"),
                salu("s_cselect_b32 s89, 1, 0"),
                salu(f"s_cmp_ge_u32 s91, {o['wfrom']}"),
                salu("s_cselect_b32 s30, s101, -1"),
                salu("s_cmp_gt_u32 s88, s30"),
                salu("s_addc_u32 s89, s89, 0"),
                salu(f"s_add_u32 s101, s101, {256*SLOT}")] if o["wwin"] else []) + [
                salu("s_cmp_lt_u32 s20, 2"),
                salu("s_cselect_b32 s66, s23, s24"),
                salu("s_add_u32 s66, s66, s95")]
        if final:
            book = book[-3:] + [salu("s_add_u32 s23, s24, 18432"), salu("s_add_u32 s58, s24, 27648"), salu("s_add_u32 s67, s23, s95")]
            fl = o["fl"]
            xa, xb = xch(o, "s66", vT), xch(o, "s67", vT, 1024)
            barx = [I("s_barrier", "other", rd=["@x0"]), I("s_barrier", "other", rd=["@x2"])]
            k = gp.chain([barx[0], xa[0]], pos[fl[0]], 3)
            gp.put(xa[1], k + 6)
            ep = epilogue(1, ("s23", "s58"), o, init=False, xoff=1024)
            k = gp.chain(ep[2], pos[fl[1]], 3)
            k = gp.chain([barx[1], xb[0]], k + 4, 3)
            k += 6
            while gp.load(k) > 0:
                k += 1
            gp.nv[k] += [salu("s_cmp_lt_u32 s20, 2"), I("s_cbranch_scc0 M_fx", "other", rd=[vr(vT, 4)]), xb[1], I("M_fx:", "label")]
            gp.chain(ep[0], pos[fl[2]], 3)
            gp.chain(ep[1], pos[fl[3]], 3)
        kb = gp.chain(book, pos[o["fbook" if final else "book"]], 3)
        if not final: k = gp.chain([valu(f"v_add_u32 v{r}, s31, v{r}", [vr(r)], [vr(r)]) for r in (vRow, vB0, vB1)], max(kb + 1, pos[152]))
        body = []
        for k in range(len(stream) + 40):
            if k < len(stream):
                body.append(stream[k])
            else:
                assert final or not gp.gap(k)
            body += gp.gap(k)
        for j, i in enumerate([i for i in body if i.text == "WIN"]):
            i.text = f"s_waitcnt vmcnt({(wn * (j + 1)) // 10 - (wn * j) // 10 - 1})"
        if final:
            wr23 = body.index(book[3])
            assert all((j < wr23) == (i not in ep[0] + ep[1]) for j, i in enumerate(body) if i.kind == "store" and ("s23" in i.text or "s58" in i.text))
            assert body.index(book[2]) < body.index(xa[1]) and body.index(book[5]) < body.index(xb[1]) and body.index(x[1]) < body.index(book[1])
            assert max(j for j, i in enumerate(body) if "read2st64" in i.text) < body.index(xa[0]) and body.index(xa[1]) < body.index(xb[0])
            assert all(j < body.index(barx[0]) for j, i in enumerate(body) if i.kind == "dsw" and ("@", "@x2") not in i.wr)
        for r in (vRow, vB0, vB1) if not final else ():
            w = [j for j, i in enumerate(body) if ("v", r) in i.wr]
            u = [j for j, i in enumerate(body) if ("v", r) in i.rd]
            assert len(w) == 1 and max(u) == w[0], r
        for rb in range(2):
            for t in range(9):
                RR = regs(vr(vACC[rb] + 4 * t, 4))
                ev = "".join("I" if i.kind == "ds" else "M" if i.kind == "mfma" else "E" for i in body if (i.rd | i.wr) & RR and i.kind != "other")
                assert re.fullmatch("M{10}E+I?" if rb == 0 else "MME+IM{10}E+" if final else "MME+IM{8}", ev), (rb, t, ev)
        sl = [j for j, i in enumerate(body) if "M_slowr" in i.text][0]
        assert all(j < sl for j, i in enumerate(body) if i.kind == "ds" and i.wr & regs(vr(vACC[1], 36)))
        assert all(j > sl for j, i in enumerate(body) if i.kind == "valu" and i.rd & regs(vr(vACC[0], 36)))
        assert body[sl - 3] is stream[cpos[P["slowat"]]]
        dm = [j for j, i in enumerate(body) if i.kind == "dma"]
        lastdma = dm[8 - n2] if dm else 0
        if dm:
            assert [body[j] for j in dm] == d[1::2]
            assert lastdma < body.index(sel10) < dm[9 - n2] and body.index(d[2 * (9 - n2)]) < body.index(book[0])
            assert lastdma < body.index(book[8]) and body.index(sel10) < body.index(book[9])
            assert not dyn or body.index(mbw) < body.index(bar3)
            if dyn:
                ev = [i.text.split()[0] for i in body if ("v", 0) in i.rd | i.wr or i is awt]
                assert ev[:4] == ["v_mov_b32", "buffer_atomic_add", "s_waitcnt", "v_mul_u32_u24"] and ev[-4:] == ["ds_write_b32", "v_mov_b32", "ds_read_b32", "v_readfirstlane_b32"], ev
            for j in range(9):
                assert body.index(d[2 * j]) < dm[j] and (j == 0 or body.index(d[2 * j]) > dm[j - 1])
        hw = [j for j, i in enumerate(body) if i.kind == "ds" and "read_b" in i.text and i.wr & regs(vr(H, 8))]
        hm = [j for j, i in enumerate(body) if i.kind == "mfma" and i.rd & regs(vr(H, 8))]
        assert hm[8] < hw[2] and body.index(ovchk[-1]) < hw[3]
        assert all(j < body.index(ovchk[0]) for j, i in enumerate(body) if i.kind == "ds" and i.wr & regs(vr(vACC[1], 36)))
        assert all(j > body.index(bar2) for j, i in enumerate(body) if i.kind == "dsw")
        assert body.index(x[1]) < min(j for j, i in enumerate(body) if "read2st64" in i.text)
        for j, i in enumerate(body):
            if ("cselect" in i.text or "s_cbranch_scc" in i.text or "s_addc" in i.text) and "\n" not in i.text:
                p = max(q for q in range(j) if (body[q].kind == "salu" and "s_mov" not in body[q].text) or "\n" in body[q].text)
                assert body[p].text.startswith("s_cmp") and "\n" not in body[p].text, (i.text, body[p].text)
        isvm = lambda i: i.kind in ("dma", "store")
        if dyn: awt.text = f"s_waitcnt vmcnt({sum(isvm(i) for i in body[body.index(atom) + 1:body.index(awt)])})"
        nstrict = sum(isvm(i) for i in body[lastdma + 1:])
        if nm == "Q":
            c = [j for j, i in enumerate(body) if i.text == "M_q:"][0]
            assert sl > c or True
            body = body[:c] + [i for i in body[c:] if i not in d and not (i.kind == "wait" and "vmcnt" in i.text)]
            nstrict -= n2
            if o["qplain"]:
                for i in body[c:]:
                    if i.kind == "store":
                        i.text = i.text.replace(" sc1", "")
        if final and o["fplain"]:
            st = [i for i in body if i.kind == "store"]
            for i in st[:o["fplain"]]:
                i.text = i.text.replace(" sc1", "")
            if o["wb"]:
                j = body.index(st[o["wb"][0]])
                body.insert(j + 1, I(f"s_add_u32 s30, s24, s28\n    s_sub_u32 s30, s30, {(2048 - o['wb'][1]) * SLOT}\n    s_cmp_lt_u32 s30, {o['wb'][2] * SLOT}\n    s_cbranch_scc0 M_nwb\n    buffer_wbl2 sc1\nM_nwb:", "other"))
                body.insert(body.index(st[0]) + 1, salu("s_lshl_b32 s28, s20, 28"))
        if nm == "E0" and x2n > n2:
            for j in range(x2n - n2):
                q_ = body.index(d[2 * j + 1])
                w_ = max(z for z in range(q_) if body[z].kind == "wait" and "vmcnt" in body[z].text and body[z] is not awt)
                body = [i for z, i in enumerate(body) if z not in (q_, w_) and i is not d[2 * j]]
            if dyn:
                awt.text = f"s_waitcnt vmcnt({sum(isvm(i) for i in body[body.index(atom) + 1:body.index(awt)])})"
        seq = []
        seq.append(I("M_top:", "label"))
        if o["diag"] == 3:
            seq.append(I(stamp(o).strip(), "other"))
        seq.append(I("M_top1:", "label"))
        if o["diag"]:
            seq.append(I(stamp(o).strip(), "other"))
        seq.append(salu(f"s_add_u32 s23, s24, 18432"))
        seq.append(salu(f"s_add_u32 s58, s24, 27648"))
        seq.append(salu(f"s_mov_b32 s24, s90"))
        seq.append(salu(f"s_add_u32 s59, s90, 9216"))
        seq.append(I(f"s_waitcnt lgkmcnt(0)", "lgkm0"))
        seq.append(I("s_barrier", "other"))
        if o["diag"] == 3:
            seq.append(I(stamp(o).strip(), "other"))
        seq += top_reads
        seq += body
        if not final:
            seq.append(I(f"s_waitcnt vmcnt({nstrict})", "wait"))
            seq.append(I("s_branch M_top1", "other"))
        if o["diag"] == 4 and final:
            seq2, nm_, on = [], 0, False
            sr = list(range(32, 44, 2)) + [48, 50, 52, 60, 64, 98, 90, 88, 92, 96, 84, 86, 8, 10, 4, 6, 68, 70]
            st_ = o["dstep"]
            for i in seq:
                on = on or i.text == "M_bF:"
                if on and i.kind == "mfma":
                    if nm_ % st_ == 0:
                        seq2.append(i); seq2.append(I(f"s_memtime s[{sr[nm_//st_]}:{sr[nm_//st_]+1}]", "other")); nm_ += 1
                        continue
                    nm_ += 1
                seq2.append(i)
            j = (nm_ + st_ - 1) // st_
            seq2.append(I(f"s_memtime s[{sr[j]}:{sr[j]+1}]\n    s_waitcnt lgkmcnt(0)\n    v_mov_b32 v255, 0\n    s_mov_b32 s62, {j+1}\n" + "\n".join(f"    v_writelane_b32 v255, s{sr[q]}, {q}\n    v_writelane_b32 v255, s{sr[q]}, {q+32}" for q in range(j + 1)), "other"))
            seq = seq2
        out = finalize(seq, hoist=o["exact"])
        if o["exact"]:
            k, found = -1, set()
            for i in out:
                k += i.kind == "mfma"
                if i.kind == "wait" and "lgkm" in i.text and k >= 2:
                    found.add(k)
            if not found <= set(resv) and len(resv) < o["maxres"]:
                return version(vid, nm, wn, wns, final, tuple(found | set(resv)))
        COST[nm] = gap_cost(out)
        if o["cost"]:
            print(nm, "modelled loss", COST[nm], "reserved", len(resv), file=sys.stderr)
        cut = [j for j, i in enumerate(out) if i.text == f"M_b{nm}:"][0]
        if nm == "Q":
            c = [j for j, i in enumerate(out) if i.text == "M_q:"][0]
            norm = lambda l: re.sub(r"s_mov_b32 s21, \d+|(?<=M_ovr)[LQ]|(?<=M_slowr)[LQ]", "", text(l))
            assert norm(out[cut + 1:c]) == norm(LPRE[0])
            return out[:cut], out[c:c + 1] + [salu(f"s_mov_b32 s21, {vid}")] + out[c + 1:], nstrict
        if nm == "L" and o["q"]:
            LPRE.append(out[cut + 1:[j for j, i in enumerate(out) if i.text == "M_nq:"][0]])
        return out[:cut], out[cut:], nstrict
    def half(vid):
        TA, TB = [8, 0, 1, 2, 3], [4, 5, 6, 7]
        glist = [(1, {7: 3, 8: 4}, list(range(9))), (0, {0: 0, 1: 1, 2: 2}, TA), (0, {3: 3, 4: 4}, TA), (0, {5: 0, 6: 1}, TA), (0, {7: 3, 8: 4}, TA),
                 (0, {0: 0, 1: 1}, TB), (0, {2: 3, 3: 4}, TB), (0, {4: 0, 5: 1}, TB), (0, {6: 3, 7: 4, 8: 2}, TB)]
        b0, per, hp = o["hb0"], o["hper"], o["hp"]
        to = [8, 0, 1, 2, 3, 4, 5, 6, 7]
        stream, pos, cpos, gstart, nxt, k = [], {}, {}, [], 0, 0
        for rb, kb_, ts in glist:
            gstart.append(k)
            for t in ts:
                for s_, b_ in kb_.items():
                    pos[k] = len(stream)
                    stream.append(smf(rb, s_, t, vBB + 8 * b_))
                    k += 1
                if nxt < 9 and k >= b0 + per * (nxt + 1):
                    cpos[nxt] = len(stream)
                    stream.append(csmf(0, to[nxt]))
                    nxt += 1
        assert nxt == 9
        gp = Gaps(len(stream) + 60)
        greads = lambda j: sum([bread_to(glist[j][0], s_, vBB + 8 * b_) for s_, b_ in glist[j][1].items()], [])
        x = xch(o, "s66")
        gp.chain(greads(1), 0, step=1)
        gp.nv[1] += [I(dispatch, "other"), I("M_bH:", "label")]
        gp.res[1] += 2
        gp.put(tread(to[0]), 2)
        gp.put(x[1], 5)
        gp.put(salu(f"s_mov_b32 s21, {vid}"), 6)
        slow = I("s_cbranch_scc1 M_slow", "other")
        gp.nv[cpos[hp[0]]] += [salu("s_cmp_gt_u32 s46, s80"), slow, I("M_slowrH:", "label")]
        for t in range(9):
            gp.reserve(cpos[t] - 1)
            k = pos[b0] - 1 if t == 0 else cpos[t - 1] - 1
            kg = k + 1
            for j in range(4):
                k = gp.put(xad(j), k) + 1
                kg = gp.put(ds_read("ds_read_b32", vr(vG + 2 * j), vr(vT + j)), max(kg, k), 3)
                if j == 0:
                    gp.put(aread(to[t]), kg, 3)
            if t < 8:
                gp.put(tread(to[t + 1]), kg, 3)
        for j in range(1, len(glist) - 1):
            gp.chain(greads(j + 1)[:4], pos[gstart[j] - 1], 3, step=1)
        bar2 = I("s_barrier", "other", rd=[vr(vG, 4)])
        gp.put(bar2, 6)
        ovl = ov_gather()
        k = gp.put(ovl[0], pos[33], 3)
        k = gp.chain(ovl[1:], k + 5, 3) + 5
        e1 = epilogue(1, ("s23", "s58"), o, init=False)
        for u in (2, 0, 1):
            k = max(k, gp.chain(e1[u], pos[hp[1 + u]], 3) + 1)
        while gp.load(k) > 1 or gp.v[k] is not None:
            k += 1
        call = ov_call("H")
        gp.nv[k].append(call)
        gp.res[k] += 2
        gp.chain(greads(8)[4:], k + 1, 3, step=1)
        book = [salu("s_cmp_lt_u32 s20, 2"), salu("s_cselect_b32 s66, s23, s24"), salu("s_add_u32 s66, s66, s95")]
        gp.nv[7] = book + gp.nv[7]
        e0 = epilogue(0, ("s24", "s59"), o, init=False)
        k0 = max(k + 5, cpos[hp[0]] + 1, pos[hp[4]])
        k = gp.chain(e0[2], k0, 3)
        xa = xch(o, "s66", vACC[1])
        barx = I("s_barrier", "other", rd=["@x0"])
        k = gp.chain([barx, xa[0]], k + 4, 3)
        gp.put(xa[1], k + 6)
        k = gp.chain(e0[0], k0, 3)
        gp.chain(e0[1], max(k + 1, len(stream) - 3), 3)
        body = []
        for k in range(len(stream) + 60):
            body += ([stream[k]] if k < len(stream) else []) + gp.gap(k)
        for rb in range(2):
            for t in range(9):
                RR = regs(vr(vACC[rb] + 4 * t, 4))
                ev = "".join("I" if i.kind == "ds" else "M" if i.kind == "mfma" else "E" for i in body if (i.rd | i.wr) & RR and i.kind != "other")
                assert re.fullmatch("M{10}E+" if rb == 0 else "MME+(IE)?", ev), (rb, t, ev)
        ix = lambda l: [body.index(i) for i in l]
        for c in (slow, call):
            assert max(ix(sum(e1, []))) < body.index(c) < min(ix(sum(e0, []) + xa))
        hw = [j for j, i in enumerate(body) if i.kind == "ds" and "read_b" in i.text and i.wr & regs(vr(H, 8))]
        hm = [j for j, i in enumerate(body) if i.kind == "mfma" and i.rd & regs(vr(H, 8))]
        assert hm[4] < hw[2] and body.index(call) < hw[3] and hw[4] < hm[5]
        assert body.index(x[1]) < body.index(book[1]) and body.index(x[1]) < min(j for j, i in enumerate(body) if "read_b32" in i.text)
        assert all(body.index(bar2) < j < body.index(barx) for j, i in enumerate(body) if i.kind == "dsw")
        out = finalize([I("s_waitcnt lgkmcnt(0)", "lgkm0"), x[0]] + body + [I("s_branch M_done", "other")])
        COST["H"] = gap_cost(out)
        if o["cost"]:
            print("H modelled loss", COST["H"], file=sys.stderr)
        cut = [j for j, i in enumerate(out) if i.text == "M_bH:"][0]
        return out[:cut], out[cut:]
    built = [version(j + 1, *v) for j, v in enumerate(vers)]
    assert all(text(h[3:]) == text(built[0][0][3:]) for h, _, _ in built)
    A(text(built[0][0]))
    for _, bd, _ in built[:-1]:
        A(text(bd))
    if o["nh"]:
        vers.append(("H",))
        hh, hb = half(len(vers))
        assert text(built[0][0]).endswith(text(hh[1:]))
        A(text(hb))
    A(text(built[-1][1]))
    A("M_done:")
    A(stamp(o))
    A(stamp_out(o))
    A("M_end:\n    s_endpgm")
    if o["pp"]:
        A("M_pf_pp:")
        for a_, b_ in [(vG + 4, vG + 7), (vG + 7, vG + 4)] * o["pp"]:
            A(f"""{poll(o, a_)}
    s_waitcnt vmcnt(1)
    v_readfirstlane_b32 s30, v{b_}
    s_nop 0
    s_sub_u32 s30, s30, s100
    s_cmp_eq_u32 s30, {NARR}
    s_cbranch_scc1 M_pf_ok""")
    A(spin_out(o, "M_pf", "s100", NARR, "s96"))
    A("M_r3:")
    A(text(finalize(rank(2) + place(2))))
    A("""    s_cmp_gt_u32 s38, s39
    s_cselect_b32 s32, 1, s32
    s_branch M_r3r""")
    A("M_dn:\n    s_mov_b32 s27, 0\n    s_mov_b32 s46, 0x80000000")
    for j in range(4):
        A(f"    v_mov_b32 v{vG+j}, 0")
    for t in range(9):
        A(f"    ds_write_b128 v{vTA}, {vr(vG,4)} offset:{t*1024}")
    A("    s_waitcnt lgkmcnt(0)\n    s_branch M_dnr")
    def ret(lab, lab0):
        return "".join(f"    s_cmp_eq_u32 s21, {j+1}\n    s_cbranch_scc1 {lab}{v[0]}\n" for j, v in enumerate(vers) if any(f"{lab}{v[0]}:" in x for x in L)) + f"    s_branch {lab0}"
    def ovtile(t, E, G, a):
        return f"""    v_lshrrev_b32 v{a}, 18, v{E}
    v_lshrrev_b32 v{a+1}, 18, v{E+2}
    v_or_b32 v{vA+1}, {t << 6}, v{vA}
    v_cmp_eq_u32 s[44:45], v{a}, v{vA+1}
    v_cmp_eq_u32 s[54:55], v{a+1}, v{vA+1}
    s_nop 0
    v_cndmask_b32 v{a}, 0, v{E+1}, s[44:45]
    v_cndmask_b32 v{a+1}, 0, v{E+3}, s[54:55]
    s_nop 1
    v_smfmac_f32_16x16x32_bf16 {vr(vACC[0]+4*t,4)}, {vr(a,2)}, {vr(G,4)}, v{vCI}
    v_smfmac_f32_16x16x32_bf16 {vr(vACC[1]+4*t,4)}, {vr(a,2)}, {vr(G,4)}, v{vCI} abid:2"""
    for kind, j in (("c", 0), ("l", 0), ("c", 1), ("l", 1), ("l", 2)):
        A(f"M_ov{kind}{j}:")
        for t in range(9):
            A(f"""    v_smfmac_f32_16x16x32_bf16 {vr(vACC[0]+4*t,4)}, {vr(vOV[j],2)}, {vr(H,4)}, v{vCI}
    v_smfmac_f32_16x16x32_bf16 {vr(vACC[1]+4*t,4)}, {vr(vOV[j],2)}, {vr(H,4)}, v{vCI} abid:2
    s_setpc_b64 {f"s[{74+2*j}:{75+2*j}]" if kind == "c" else "s[78:79]"}""")
    A("M_ovn:\n    s_setpc_b64 s[78:79]")
    G = vG
    A(f"""M_slow:
    s_bitcmp1_b32 s46, 31
    s_cbranch_scc1 M_dense
    s_mov_b32 s56, s80
M_sl:
    s_lshl_b32 s57, s56, 6
    v_add_u32 v{vA}, s57, v{vTQ}
    ds_read_b128 {vr(G+4,4)}, v{vA} offset:{L_OVL}
    s_waitcnt lgkmcnt(0)
    v_and_b32 v{vA}, 0x3fff, v{G+4}
    v_and_b32 v{vA+1}, 0x3fff, v{G+6}
    v_xad_u32 v{vA}, v{vA}, v{vXor}, v{vRow}
    v_xad_u32 v{vA+1}, v{vA+1}, v{vXor}, v{vRow}
    ds_read2st64_b32 {vr(G,2)}, v{vA} offset0:0 offset1:72
    ds_read2st64_b32 {vr(G+2,2)}, v{vA+1} offset0:0 offset1:72
    v_subrev_u32 v{vA}, s29, v{vTA}
    v_bfe_u32 v{vA}, v{vA}, 4, 4
    s_waitcnt lgkmcnt(0)""")
    for t in range(9):
        A(f"""    s_bitcmp1_b32 s27, {t}
    s_cbranch_scc0 M_sle{t}
{ovtile(t, G + 4, G, vA + 2)}
M_sle{t}:""")
    A(f"""    s_add_u32 s56, s56, 1
    s_cmp_lt_u32 s56, s46
    s_cbranch_scc1 M_sl
M_slx:
    s_nop 7
{ret("M_slowr", "M_slowr0")}
M_dense:""")
    for rb in range(2):
        A(f"""    s_mul_i32 s57, s20, {81*1024}
    s_add_u32 s57, s57, {EFB}
    s_mov_b32 s56, 0
    v_mov_b32 v54, v{vB0}
    v_mov_b32 v55, v{vB1}
    v_subrev_u32 v252, s29, v{vTA}
M_dn{rb}:
    ds_read_b128 {vr(G,4)}, v54 offset:{rb*18432}
    ds_read_b128 {vr(G+4,4)}, v55 offset:{rb*18432}
    v_add_u32 v54, 1024, v54
    v_add_u32 v55, 1024, v55""")
        for t in range(9):
            A(f"""    buffer_load_dwordx4 {vr(vA,4)}, v252, s[16:19], s57 offen sc1
    s_add_u32 s57, s57, 1024
    s_waitcnt vmcnt(0) lgkmcnt(0)
    v_smfmac_f32_16x16x64_bf16 {vr(vACC[rb]+4*t,4)}, {vr(vA,4)}, {vr(G,8)}, v{vCI}""")
        A(f"""    s_add_u32 s56, s56, 1
    s_cmp_lt_u32 s56, 9
    s_cbranch_scc1 M_dn{rb}""")
    A("    s_branch M_slx")
    A("M_codeend:")
    return "\n".join(L)

def gen(**kw):
    o = dict(DEF)
    o.update(kw)
    hdr = f"""; out = x @ prune_2of4(w) + b   (bf16, M=65536 K=576 N=576); generated by dev/gen6.py
; @launch grid=(256,1,1) block=(256,1,1) lds={LDS_BYTES}
.amdgcn_target "amdgcn-amd-amdhsa--gfx950"
; (v_smfmac A operands + index words) in registers; x streams through a 3-slot LDS ring (32 rows each, LDS-DMA).
;    waits until its counter has grown by 27 since entry (or the zero-based counter in d_debug shows all 81).
;  - groups with more than two survivors (equal magnitudes) keep the last two in the sparse operand; the others are listed,
;    and applied per 16-column tile by one more v_smfmac on gathered x pairs (M_ov*, M_slow, M_dense: longer lists).
;  - the vmcnt wait in front of each load / store of the loop bounds the requests a wave has in flight: DRAM is saturated
.text
.globl {NAME}_kernel
"""
    kd = f"""
.section .rodata,"a"
.p2align 6
.amdhsa_kernel {NAME}_kernel
  .amdhsa_next_free_vgpr 512
  .amdhsa_next_free_sgpr 102
  .amdhsa_accum_offset 256
  .amdhsa_group_segment_fixed_size 0
  .amdhsa_kernarg_size 48
  .amdhsa_user_sgpr_count 2
  .amdhsa_user_sgpr_kernarg_segment_ptr 1
  .amdhsa_system_sgpr_workgroup_id_x 1
  .amdhsa_float_denorm_mode_32 3
.end_amdhsa_kernel
"""
    src = hdr + gen_main(o) + kd
    return "\n".join(l for l in src.split("\n") if l.strip()) + "\n"

if __name__ == "__main__":
    kw = {}
    out = f"/code/{NAME}.s"
    for a in sys.argv[1:]:
        if "=" in a:
            k, v = a.split("=", 1)
            assert k in DEF, k
            kw[k] = int(v) if v.lstrip("-").isdigit() else (eval(v) if v.startswith("[") else v.replace("+", " "))
        else:
            out = a
    open(out, "w").write(gen(**kw))
    print("wrote", out)
```
